```python
import torch

def _softmax(x, axis=-1):
    return torch.softmax(x, dim=axis)

def _gelu(x):
    return torch.nn.functional.gelu(x, approximate='tanh')

def _silu(x):
    return torch.nn.functional.silu(x)

def _sigmoid(x):
    return torch.sigmoid(x)

def _layernorm(x, axis=-1, eps=1e-05):
    m = x.mean(dim=axis, keepdim=True)
    v = x.var(dim=axis, keepdim=True, unbiased=False)
    return (x - m) / torch.sqrt(v + eps)

def _scatter_add(tgt, idx, src, axis=0):
    return tgt.clone().index_add_(axis, idx, src)

def _segment_sum(src, seg, n):
    out = torch.zeros((n,) + src.shape[1:], dtype=src.dtype)
    return out.index_add_(0, seg, src)

def _pad(x, pw):
    flat = tuple((v for pair in reversed(pw) for v in pair))
    return torch.nn.functional.pad(x, flat)
kernel_name = 'adaLN_cond__gqa_block_cached__swiglu_ffn__decode'

def setup_inputs():

    _w = lambda a: (lambda t: t.to(torch.bfloat16) if t.is_floating_point() else t)(torch.as_tensor(a))

    def _A_setup():
        B, Sq, D = (1, 1, 448)
        Hq, Hkv, Sk, Dh = (16, 8, 32768, 256)
        assert Hq % Hkv == 0, (Hq, Hkv)
        return {'x': _w((lambda *s: torch.randn(*s, dtype=torch.bfloat16) * 0.1)(B, Sq, D)), 'k_cache': _w((lambda *s: torch.randn(*s, dtype=torch.bfloat16) * 0.8)(B, Hkv, Sk, Dh)), 'v_cache': _w((lambda *s: torch.randn(*s, dtype=torch.bfloat16) * 0.8)(B, Hkv, Sk, Dh)), 'wq': _w((lambda *s: torch.randn(*s, dtype=torch.bfloat16) * 0.8)(D, Hq * Dh) * D ** (-0.5)), 'wo': _w((lambda *s: torch.randn(*s, dtype=torch.bfloat16) * 0.8)(Hq * Dh, D) * (Hq * Dh) ** (-0.5))}
    _A_in = _A_setup()

    def _B_setup():
        B, S, D, F = (1, 1, 448, 1792)
        return {'x': _w((lambda *s: torch.randn(*s, dtype=torch.bfloat16) * 0.1)(B, S, D)), 'w_gate': _w((lambda *s: torch.randn(*s, dtype=torch.bfloat16) * 0.1)(D, F)), 'w_up': _w((lambda *s: torch.randn(*s, dtype=torch.bfloat16) * 0.1)(D, F)), 'w_down': _w((lambda *s: torch.randn(*s, dtype=torch.bfloat16) * 0.1)(F, D))}
    _B_in = _B_setup()
    return {'A_x': _A_in['x'], 'A_k_cache': _A_in['k_cache'], 'A_v_cache': _A_in['v_cache'], 'A_wq': _A_in['wq'], 'A_wo': _A_in['wo'], 'B_x': _B_in['x'], 'B_w_gate': _B_in['w_gate'], 'B_w_up': _B_in['w_up'], 'B_w_down': _B_in['w_down'], 'c': _w((lambda *s: torch.randn(*s, dtype=torch.bfloat16) * 0.4)(1, 448) * 8.0), 'w_mod': _w((lambda *s: torch.randn(*s, dtype=torch.bfloat16) * 0.4)(448, 6 * 448) * 448 ** (-0.5) * 8.0)}

def reference(A_x, A_k_cache, A_v_cache, A_wq, A_wo, B_x, B_w_gate, B_w_up, B_w_down, c, w_mod):

    def _A_ref(x, k_cache, v_cache, wq, wo):
        B, Sq, D = x.shape
        Hq, Dh = (16, 256)
        Hkv = k_cache.shape[1]
        rep = Hq // Hkv
        q = (lambda x, *d: x.permute(*d))((x @ wq).reshape(B, Sq, Hq, Dh), 0, 2, 1, 3)
        k = (lambda x, n, axis: torch.repeat_interleave(x, n, dim=axis))(k_cache, rep, axis=1)
        v = (lambda x, n, axis: torch.repeat_interleave(x, n, dim=axis))(v_cache, rep, axis=1)
        scores = torch.einsum('bhqd,bhkd->bhqk', q, k) * Dh ** (-0.5)
        p = _softmax(scores, axis=-1)
        o = torch.einsum('bhqk,bhkd->bhqd', p, v)
        return (lambda x, *d: x.permute(*d))(o, 0, 2, 1, 3).reshape(B, Sq, Hq * Dh) @ wo

    def _B_ref(x, w_gate, w_up, w_down):
        g = _silu(x @ w_gate)
        u = x @ w_up
        return g * u @ w_down
    x = A_x
    mod = (_silu(c) @ w_mod).reshape(c.shape[0], 6, 1, -1)
    sa, ca, ga, sb, cb, gb = (mod[:, 0].clone(), mod[:, 1].clone(), mod[:, 2].clone(), mod[:, 3].clone(), mod[:, 4].clone(), mod[:, 5].clone())
    h = _layernorm(x, axis=-1) * (1 + ca) + sa
    x = x + ga * _A_ref(h, A_k_cache, A_v_cache, A_wq, A_wo)
    h = _layernorm(x, axis=-1) * (1 + cb) + sb
    x = x + gb * _B_ref(h, B_w_gate, B_w_up, B_w_down)
    return x
```

```python
import re

TRANS = ('v_exp_f32', 'v_log_f32', 'v_rcp_f32', 'v_rsq_f32', 'v_sqrt_f32', 'v_sin_f32', 'v_cos_f32')
DPP_RE = re.compile(r'quad_perm|row_shl|row_shr|row_ror|row_mirror|row_half_mirror|row_bcast|row_newbcast|wave_')

def regs_of(tok):
    tok = tok.strip()
    if tok.startswith('-'): tok = tok[1:]
    m = re.fullmatch(r'abs\((.*)\)', tok)
    if m: tok = m.group(1)
    m = re.fullmatch(r'\|(.*)\|', tok)
    if m: tok = m.group(1)
    m = re.fullmatch(r'([vsa])(\d+)', tok)
    if m: return {(m.group(1), int(m.group(2)))}
    m = re.fullmatch(r'([vsa])\[(\d+):(\d+)\]', tok)
    if m: return {(m.group(1), i) for i in range(int(m.group(2)), int(m.group(3)) + 1)}
    if tok in ('vcc', 'vcc_lo', 'vcc_hi'): return {('s', 'vcc')}
    if tok in ('exec', 'exec_lo', 'exec_hi'): return {('s', 'exec')}
    if tok == 'm0': return {('s', 'm0')}
    return set()

def split_ops(s):
    out = []; depth = 0; cur = ''
    for ch in s:
        if ch in '[(': depth += 1
        if ch in '])': depth -= 1
        if ch == ',' and depth == 0: out.append(cur); cur = ''
        else: cur += ch
    if cur.strip(): out.append(cur)
    return [o.strip() for o in out]

class Ins:
    def __init__(self, text):
        self.text = text
        t = text.split(';')[0].strip()
        self.label = None; self.mn = None
        self.w = set(); self.r = set(); self.cls = None; self.srcC = set(); self.srcAB = set()
        self.ws = 1; self.target = None; self.dpp = False; self.wide_data = set()
        if not t or t.startswith('.'):
            self.cls = 'dir'; self.ws = 0; return
        if t.endswith(':'):
            self.label = t[:-1]; self.cls = 'label'; self.ws = 0; return
        p = t.split(None, 1)
        mn = self.mn = p[0]; rest = p[1] if len(p) > 1 else ''
        ops = split_ops(rest)
        if ops:
            last = ops[-1].split()
            ops[-1] = last[0] if last else ''
        R = [regs_of(o) for o in ops]
        U = lambda xs: set().union(*xs) if xs else set()
        if mn == 's_nop':
            self.cls = 'salu'; self.ws = int(ops[0], 0) + 1
        elif mn.startswith('s_cbranch') or mn == 's_branch':
            self.cls = 'branch'; self.target = ops[0]
        elif mn.startswith('s_'):
            self.cls = 'salu'
            if mn.startswith(('s_cmp', 's_bitcmp', 's_waitcnt', 's_barrier', 's_sleep', 's_setprio', 's_endpgm')):
                self.r = U(R)
            else:
                self.w = R[0] if R else set(); self.r = U(R[1:])
                if 'saveexec' in mn: self.w = self.w | {('s', 'exec')}
        elif mn.startswith('v_mfma'):
            self.cls = 'mfma'; self.w = R[0]; self.srcAB = R[1] | R[2]; self.srcC = R[3]; self.r = self.srcAB | self.srcC
            self.passes = 4 if '16x16x32' in mn else 8
        elif mn.startswith('v_'):
            self.cls = 'valu'; self.dpp = bool(DPP_RE.search(rest))
            if mn.startswith('v_permlane'):
                self.w = R[0] | R[1]; self.r = R[0] | R[1]
            elif mn.startswith(('v_add_co', 'v_sub_co', 'v_addc_co', 'v_subb_co')):
                self.w = R[0] | R[1]; self.r = U(R[2:])
            else:
                self.w = R[0]; self.r = U(R[1:])
                if mn.startswith(('v_fmac', 'v_writelane')) or self.dpp: self.r = self.r | R[0]
        elif mn.startswith(('buffer_', 'global_')):
            self.cls = 'vmem'
            if '_load' in mn:
                self.w = R[0]; self.r = U(R[1:])
            elif 'atomic' in mn:
                self.r = U(R); self.w = R[0] if ' sc0' in rest else set()
            else:
                self.r = U(R)
                d = R[0] if mn.startswith('buffer_') else R[1]
                if len(d) >= 3: self.wide_data = d
        elif mn.startswith('ds_'):
            self.cls = 'ds'
            if mn.startswith(('ds_read', 'ds_swizzle', 'ds_bpermute', 'ds_permute')) or '_rtn' in mn:
                self.w = R[0]; self.r = U(R[1:])
            else:
                self.r = U(R)
        else:
            raise ValueError('unknown instr ' + text)

def vec(s): return {x for x in s if x[0] in 'va'}
def sca(s): return {x for x in s if x[0] == 's'}

def need(p, c):
    n = 0
    if p.cls == 'valu':
        pv = vec(p.w); ps = sca(p.w)
        if c.cls == 'mfma' and pv & c.r: n = max(n, 2)
        if c.cls == 'valu':
            if c.dpp and pv & c.r: n = max(n, 2)
            if c.mn.startswith('v_permlane') and pv & c.r: n = max(n, 2)
            if c.mn.startswith(('v_readlane', 'v_readfirstlane')) and pv & c.r: n = max(n, 1)
            if p.mn.startswith(TRANS) and pv & c.r: n = max(n, 1)
            if ps & c.r:
                n = max(n, 4 if c.mn.startswith(('v_readlane', 'v_writelane')) else 2)
        if c.cls == 'vmem' and ps & c.r: n = max(n, 5)
    if p.cls == 'mfma':
        full = {4: 8, 8: 12}[p.passes]
        if c.cls == 'valu' and p.w & (c.r | c.w): n = max(n, full)
        if c.cls in ('vmem', 'ds') and p.w & (c.r | c.w): n = max(n, full)
        if c.cls == 'mfma':
            if p.w & c.srcAB: n = max(n, full)
            if p.w & c.srcC and p.w != c.srcC: n = max(n, full - 2)
            if p.w & c.w and not (p.w == c.srcC): n = max(n, full)
        if c.cls == 'valu' and p.srcC & c.w: n = max(n, {4: 3, 8: 7}[p.passes])
    if p.cls == 'vmem' and p.wide_data:
        if c.cls in ('valu', 'mfma') and p.wide_data & c.w: n = max(n, 2)
        if c.cls in ('vmem', 'ds') and p.wide_data & c.w: n = max(n, 1)
    if p.cls == 'salu' and ('s', 'm0') in p.w and c.cls in ('vmem', 'ds'): n = max(n, 1)
    return n

MAXD = 12
def fix_hazards(lines):
    ins = [Ins(l) for l in lines]
    changed = True; rounds = 0
    while changed:
        changed = False; rounds += 1
        assert rounds < 50
        labels = {x.label: i for i, x in enumerate(ins) if x.label}
        preds = {}
        for i, x in enumerate(ins):
            if x.cls == 'branch' and x.target in labels: preds.setdefault(labels[x.target], []).append(i)
        out = [];
        add = {}
        for i, c in enumerate(ins):
            if c.cls in ('dir', 'label', 'salu', 'branch'): continue
            worst = 0
            stack = [(i - 1, 0)]; seen = set()
            while stack:
                j, d = stack.pop()
                while j >= 0 and d < MAXD:
                    if (j, d) in seen: break
                    seen.add((j, d))
                    p = ins[j]
                    if p.cls == 'label':
                        for b in preds.get(j, []): stack.append((b, d))
                        k = j - 1
                        while k >= 0 and ins[k].cls in ('dir',): k -= 1
                        if k >= 0 and ins[k].mn in ('s_branch', 's_endpgm'): break
                        j -= 1; continue
                    if p.cls == 'dir': j -= 1; continue
                    worst = max(worst, need(p, c) - d)
                    d += p.ws; j -= 1
            if worst > 0: add[i] = worst
        if add:
            new = []; lastins = -100
            for i, x in enumerate(ins):
                if i in add and i - lastins > MAXD:
                    new.append(Ins(f's_nop {add[i]-1}')); lastins = i; changed = True
                new.append(x)
            ins = new
            rounds = 0 if changed else rounds
    return [x.text for x in ins]

class Asm:
    def __init__(self): self.L = []; self.n = 0
    def __call__(self, s):
        for l in s.split('\n'):
            l = l.strip()
            if l: self.L.append(l)
    def uniq(self, p):
        self.n += 1; return f'{p}_{self.n}'
    def text(self): return '\n'.join(fix_hazards(self.L)) + '\n'
```

```python
import sys
sys.path.insert(0, 'work')
from asmlib import Asm

NAME = 'adaLN_cond__gqa_block_cached__swiglu_ffn__decode'
W_EPOCH = 0
W_MOD = 0x1000
W_Q = 0x4000
W_STATS = 0x8000
W_PART = 0x10000
W_Y = 0x90000
W_Z = 0x98000
W_END = W_Z + 56 * 1792
W_PROF = 0x200000
F_Q, F_SCNT, F_P, F_TRIG, F_PCNT, F_OCNT, F_TCNT = 0, 4, 8, 12, 16, 20, 24
L_Q = 0x100
L_BC = 0x800
L_RED = 0x1000
L_SC = 0x3000
HS = 4096 + 64
L_X1 = 0x5100
L_ST2 = 0x5900
L_RED2 = 0x6000
LDS_BYTES = 0x8000
BIG = 0x40000000
LOG2E = 0x3fb8aa3b
NLOG2E = 0xbfb8aa3b
CEXP = 0x3db8aa3b
INV448 = 0x3b124925
EPS = 0x3727c5ac
SPIN = 0x40000
DPPF = 'row_mask:0xf bank_mask:0xf'

def gen(D=5, R=54, CATCH=4, gmap='xcd', prof=False, UNTH=0, TRIG=232, DV=None, wpol='nt', codepf=True):
    a = Asm()
    DV = DV or D
    def stamp(k):
        if prof:
            a(f's_memrealtime s[96:97]\ns_waitcnt lgkmcnt(0)\ns_mov_b32 s{80+k}, s96')
    def finish():
        if prof:
            a('s_branch L_prof_end')
        else:
            a('s_endpgm')
    def srd(d, lo, size):
        a(f's_mov_b32 s{d}, s{lo}\ns_mov_b32 s{d+1}, s{lo+1}\ns_mov_b32 s{d+2}, {size}\ns_mov_b32 s{d+3}, 0x20000')
    def masks():
        a('''v_and_b32 v6, 1, v0
             v_lshlrev_b32 v6, 4, v6
             v_mov_b32 v5, 0xffff
             v_lshlrev_b32 v5, v6, v5
             v_bfe_u32 v6, v0, 1, 2''')
        for j in range(4):
            a(f'v_cmp_eq_u32 vcc, {j}, v6\nv_cndmask_b32 v{8+j}, 0, v5, vcc')
    def abuild(dst, src):
        for j in range(4): a(f'v_and_b32 v{dst+j}, v{src}, v{8+j}')
    def ldswait(flag, val, tmp, extra='', sleep=1):
        L = a.uniq('L_w'); Ld = L + '_d'
        a(f's_mov_b32 s30, {SPIN}')
        a(f'{L}:\nds_read_b32 v{tmp}, v7 offset:{flag}')
        a(extra)
        a(f'''s_waitcnt lgkmcnt(0)
              v_readfirstlane_b32 s7, v{tmp}
              s_cmp_ge_u32 s7, {val}
              s_cbranch_scc1 {Ld}
              s_sleep {sleep}
              s_sub_u32 s30, s30, 1
              s_cmp_lg_u32 s30, 0
              s_cbranch_scc1 {L}
              {Ld}:''')
    def ldsflag(flag, add=False):
        a('v_mov_b32 v6, 1\ns_mov_b64 exec, 1')
        a(f'ds_add_u32 v7, v6 offset:{flag}' if add else f'ds_write_b32 v7, v6 offset:{flag}')
        a('s_mov_b64 exec, -1')
    def allred(op, regs, tmps, width):
        steps = ['quad_perm:[1,0,3,2]', 'quad_perm:[2,3,0,1]', 'row_half_mirror', 'row_mirror']
        n = {8: 3, 16: 4, 32: 4, 64: 4}[width]
        for st in steps[:n]:
            for r in regs: a(f'{op}_dpp v{r}, v{r}, v{r} {st} {DPPF}')
        for wd, ins in ((32, 'v_permlane16_swap_b32'), (64, 'v_permlane32_swap_b32')):
            if width >= wd:
                for r, t in zip(regs, tmps): a(f'v_mov_b32 v{t}, v{r}')
                for r, t in zip(regs, tmps): a(f'{ins} v{r}, v{t}')
                for r, t in zip(regs, tmps): a(f'{op} v{r}, v{r}, v{t}')
    def rnd2(x, y, t):
        a(f'v_cvt_pk_bf16_f32 v{t}, v{x}, v{y}\nv_lshlrev_b32 v{x}, 16, v{t}\nv_and_b32 v{y}, 0xffff0000, v{t}')
    def rnd1(x):
        a(f'v_cvt_pk_bf16_f32 v{x}, v{x}, v{x}\nv_and_b32 v{x}, 0xffff0000, v{x}')
    def unpack(x, y, src):
        a(f'v_lshlrev_b32 v{x}, 16, v{src}\nv_and_b32 v{y}, 0xffff0000, v{src}')
    def poll_begin():
        L = a.uniq('L_p')
        a(f's_mov_b32 s30, {SPIN}\n{L}:')
        return L
    def poll_end(L, sleep=0, mask=True):
        Ld = L + '_d'
        a(f's_cbranch_vccz {Ld}')
        if sleep: a(f's_sleep {sleep}')
        if mask: a('s_mov_b64 exec, vcc')
        a(f's_sub_u32 s30, s30, 1\ns_cmp_lg_u32 s30, 0\ns_cbranch_scc1 {L}')
        if mask: a('s_mov_b64 exec, -1')
        a(f'{Ld}:')

    a(f'{NAME}_kernel:')
    a('''s_load_dwordx16 s[32:47], s[0:1], 0
         s_load_dwordx8 s[48:55], s[0:1], 64
         s_load_dwordx4 s[56:59], s[0:1], 96
         s_cmp_ge_u32 s2, 256
         s_cbranch_scc1 L_exit
         v_lshrrev_b32 v1, 6, v0
         v_and_b32 v0, 63, v0
         v_readfirstlane_b32 s3, v1
         v_mov_b32 v7, 0
         v_lshlrev_b32 v2, 2, v0
         ds_write_b32 v2, v7''')
    if gmap == 'xcd':
        a('s_and_b32 s4, s2, 7\ns_lshr_b32 s5, s2, 3')
    else:
        a('s_lshr_b32 s4, s2, 5\ns_and_b32 s5, s2, 31')
    a('''s_lshl_b32 s6, s4, 5
         s_add_u32 s6, s6, s5
         s_lshl_b32 s7, s6, 19
         v_lshrrev_b32 v5, 4, v0
         v_bfe_u32 v6, v0, 2, 2
         v_and_b32 v1, 3, v0
         v_lshlrev_b32 v1, 4, v1
         v_lshl_add_u32 v1, v5, 6, v1
         v_lshl_add_u32 v1, v6, 9, v1
         s_lshl_b32 s28, s3, 12
         s_mov_b32 s10, 0x80000
         s_mov_b32 s11, 0x20000''')
    if prof:
        for k in range(16): a(f's_mov_b32 s{80+k}, 0')
        a('s_memrealtime s[96:97]')
    a('''s_waitcnt lgkmcnt(0)
         s_add_u32 s8, s34, s7
         s_addc_u32 s9, s35, 0
         s_barrier''')
    if prof: a('s_mov_b32 s80, s96')
    a('''s_cmp_ge_u32 s3, 4
         s_cbranch_scc1 L_helper''')

    RB = 36
    st = dict(issued=0, done=-1)
    def slot(i): return RB + 4 * (i % R)
    def vwait(n):
        a(f's_waitcnt vmcnt({n})'); st['done'] = max(st['done'], st['issued'] - 1 - n)
    def issue():
        i = st['issued']
        assert i < 256
        d = D if i < 128 else DV
        if i >= d and i < 256 - UNTH and st['done'] < i - d: vwait(d - 1)
        G, jh = (i >> 1) & 1, i & 1
        r = slot(i)
        if i < 128:
            a(f'buffer_load_dwordx4 v[{r}:{r+3}], v1, s[8:11], s28 offen offset:{G*2048+jh*256} nt')
            if i % 4 == 3 and i < 127: a('s_add_u32 s28, s28, 0x4000')
        else:
            a(f'buffer_load_dwordx4 v[{r}:{r+3}], v2, s[12:15], s29 offen offset:{G*2048+jh*256} nt')
            if i % 4 == 3 and i < 255: a('s_add_u32 s29, s29, 0x4000')
        st['issued'] += 1
        if i == TRIG:
            a('s_cmp_lg_u32 s3, 0\ns_cbranch_scc1 L_notrig')
            ldsflag(F_TRIG)
            a('L_notrig:')
    def ensure(i):
        if st['done'] < i: vwait(st['issued'] - 1 - i)
    for i in range(min(D, R)): issue()
    a(f'''s_add_u32 s12, s36, s7
          s_addc_u32 s13, s37, 0
          s_mov_b32 s14, 0x80000
          s_mov_b32 s15, 0x20000
          s_lshl_b32 s29, s3, 12
          v_and_b32 v2, 15, v0
          v_lshlrev_b32 v2, 4, v2
          v_lshl_add_u32 v2, v5, 9, v2
          s_lshl_b32 s7, s3, 10
          s_add_u32 s7, s7, {L_SC}
          v_and_b32 v3, 1, v5
          v_mul_u32_u24 v3, {HS}, v3
          v_lshl_add_u32 v3, v6, 4, v3
          v_lshrrev_b32 v4, 5, v0
          v_lshl_add_u32 v3, v4, 2, v3
          v_add_u32 v3, s7, v3
          v_bfe_u32 v4, v0, 3, 1
          v_mul_u32_u24 v4, {HS}, v4
          v_lshl_add_u32 v4, v5, 4, v4
          v_add_u32 v4, s7, v4
          v_bfe_u32 v12, v0, 2, 1
          v_lshlrev_b32 v12, 9, v12
          v_lshl_add_u32 v12, v5, 6, v12
          v_and_b32 v13, 3, v0
          v_lshl_add_u32 v12, v13, 4, v12''')
    srd(16, 58, W_END)
    masks()
    while st['issued'] < R: issue()
    stamp(1)
    ldswait(F_Q, 1, 5, extra=f'ds_read_b128 v[28:31], v12 offset:{L_Q}\nds_read_b128 v[32:35], v12 offset:{L_Q+256}')
    stamp(2)
    a('v_bfe_u32 v5, v0, 3, 1\nv_cmp_eq_u32 vcc, 0, v5')
    for k in range(8): a(f'v_cndmask_b32 v{20+k}, 0, v{28+k}, vcc')
    a('v_cmp_eq_u32 vcc, 1, v5')
    for k in range(8): a(f'v_cndmask_b32 v{28+k}, 0, v{28+k}, vcc')
    pend = []
    def post_group(gm):
        d = 12 + 4 * (gm & 1)
        return [f'v_mov_b32_dpp v5, v{d} quad_perm:[0,0,0,0] {DPPF}',
                f'v_add_f32_dpp v5, v{d+1}, v5 quad_perm:[1,1,1,1] {DPPF}',
                f'v_add_f32_dpp v5, v{d+2}, v5 quad_perm:[2,2,2,2] {DPPF}',
                f'v_add_f32_dpp v5, v{d+3}, v5 quad_perm:[3,3,3,3] {DPPF}',
                f'ds_write_b32 v3, v5 offset:{(gm>>1)*64+(gm&1)*8}']
    def consumeK(i):
        ensure(i)
        gm, q = i >> 2, i & 3
        d = 12 + 4 * (gm & 1); r = slot(i); qa = 20 + 4 * q
        c = '0' if q == 0 else f'v[{d}:{d+3}]'
        a(f'v_mfma_f32_16x16x32_bf16 v[{d}:{d+3}], v[{qa}:{qa+3}], v[{r}:{r+3}], {c}')
        if q == 2 and gm > 0:
            for x in post_group(gm - 1): a(x)
        if i == 127:
            for x in post_group(31): a(x)
            ldsflag(F_SCNT, add=True)
    def consumeV(i):
        ensure(i)
        ii = i - 128; tau, half = ii >> 1, ii & 1
        ab = 20 + 4 * (tau & 1); r = slot(i); acc = 12 + 4 * half
        if half == 0:
            pb = 28 + 4 * ((tau >> 2) & 1)
            if tau & 3 == 0:
                a('s_waitcnt lgkmcnt(0)')
                if tau + 4 < 64:
                    pn = 28 + 4 * (((tau >> 2) + 1) & 1)
                    a(f'ds_read_b128 v[{pn}:{pn+3}], v4 offset:{((tau>>2)+1)*64}')
            abuild(ab, pb + (tau & 3))
        c = '0' if tau == 0 else f'v[{acc}:{acc+3}]'
        a(f'v_mfma_f32_16x16x32_bf16 v[{acc}:{acc+3}], v[{ab}:{ab+3}], v[{r}:{r+3}], {c}')
    def run(consume, c0, c1, dd):
        c = c0
        while c < c1:
            lag = st['issued'] - c
            if lag > dd or st['issued'] >= 256:
                n = min(CATCH, c1 - c, max(1, lag - dd)) if st['issued'] < 256 else c1 - c
                for _ in range(n): consume(c); c += 1
            if st['issued'] < 256 and st['issued'] - c < R: issue()
    run(consumeK, 0, 128, D)
    stamp(3)
    while st['issued'] < 128 + R: issue()
    stamp(4)
    ldswait(F_P, 1, 5, extra='ds_read_b128 v[28:31], v4')
    stamp(5)
    def runV():
        c = 128
        while c < 256:
            lag = st['issued'] - c
            if st['issued'] >= 256 - UNTH and st['issued'] < 256 and lag < R:
                issue(); continue
            if lag > DV or st['issued'] >= 256:
                n = min(CATCH, 256 - c, max(1, lag - DV)) if st['issued'] < 256 else 256 - c
                for _ in range(n): consumeV(c); c += 1
            if st['issued'] < 256 and st['issued'] - c < R: issue()
            if c == 200 and not st.get('pre'):
                st['pre'] = True
                a(f'''s_lshl_b32 s7, s3, 11
                      s_add_u32 s7, s7, {L_RED2}
                      v_lshlrev_b32 v1, 4, v0
                      v_add_u32 v3, s7, v1
                      v_lshrrev_b32 v5, 5, v0
                      v_lshlrev_b32 v5, 10, v5
                      v_and_b32 v6, 15, v0
                      v_lshl_add_u32 v5, v6, 5, v5
                      v_bfe_u32 v6, v0, 4, 1
                      v_lshl_add_u32 v0, v6, 4, v5
                      s_lshl_b32 s28, s6, 11
                      s_add_u32 s28, s28, {W_PART}''')
    runV()
    assert st['pre']
    stamp(6)
    a(f'''v_mov_b32 v6, 1
          ds_write_b128 v3, v[12:15]
          ds_write_b128 v3, v[16:19] offset:1024
          s_mov_b64 exec, 1
          ds_add_rtn_u32 v5, v7, v6 offset:{F_OCNT}
          s_mov_b64 exec, -1''')
    for w in range(4):
        for h in range(2):
            r = 40 + 8 * w + 4 * h
            a(f'ds_read_b128 v[{r}:{r+3}], v1 offset:{L_RED2 + w*2048 + h*1024}')
    a('''s_waitcnt lgkmcnt(0)
         v_readfirstlane_b32 s7, v5
         s_cmp_lg_u32 s7, 3
         s_cbranch_scc1 L_stream_end''')
    for h in range(2):
        b = 40 + 4 * h
        for k in (0, 2):
            a(f'v_pk_add_f32 v[{b+k}:{b+k+1}], v[{b+k}:{b+k+1}], v[{b+8+k}:{b+8+k+1}]')
            a(f'v_pk_add_f32 v[{b+16+k}:{b+16+k+1}], v[{b+16+k}:{b+16+k+1}], v[{b+24+k}:{b+24+k+1}]')
        for k in (0, 2):
            a(f'v_pk_add_f32 v[{b+k}:{b+k+1}], v[{b+k}:{b+k+1}], v[{b+16+k}:{b+16+k+1}]')
        a(f'buffer_store_dwordx4 v[{b}:{b+3}], v0, s[16:19], s28 offen offset:{h*512} sc1')
    stamp(7)
    a('L_stream_end:')
    finish()

    a('.p2align 6\nL_helper:')
    a('s_load_dword s31, s[58:59], 0')
    srd(16, 58, W_END)
    a(f'''s_sub_u32 s60, s3, 4
          s_mul_i32 s64, s60, 112
          v_lshrrev_b32 v1, 3, v0
          v_and_b32 v2, 7, v0
          v_mul_u32_u24 v13, 14, v1
          v_add_u32 v13, s64, v13
          v_lshl_add_u32 v12, v2, 1, v13
          v_cmp_eq_u32 vcc, 7, v2
          v_lshlrev_b32 v14, 1, v12
          v_lshlrev_b32 v15, 2, v12
          v_mov_b32 v3, {BIG}
          v_cndmask_b32 v14, v14, v3, vcc
          v_cndmask_b32 v15, v15, v3, vcc
          s_lshr_b32 s7, s2, 3
          s_lshl_b32 s7, s7, 2
          s_and_b32 s62, s2, 3
          s_add_u32 s62, s62, s7
          s_bitcmp1_b32 s2, 2
          s_cselect_b32 s62, 127, s62
          s_cmp_ge_u32 s62, 106
          s_cbranch_scc1 L_noP
          s_cmp_lt_u32 s62, 14
          s_cbranch_scc1 L_P1
          s_cmp_lt_u32 s62, 78
          s_cbranch_scc1 L_P2
          s_sub_u32 s62, s62, 64''')
    def wtile(base, srdn, stride, n, voff, sreg):
        for m in range(n):
            a(f'buffer_load_dwordx4 v[{base+4*m}:{base+4*m+3}], v{voff}, s[{srdn}:{srdn+3}], s{sreg} offen {wpol}')
            if m < n - 1: a(f's_add_u32 s{sreg}, s{sreg}, {stride}')
    def common_addrs():
        a(f'''s_lshl_b32 s7, s60, 9
              s_add_u32 s7, s7, {L_BC}
              v_lshl_add_u32 v16, v0, 3, s7
              v_lshl_add_u32 v17, v1, 6, s7
              s_lshl_b32 s7, s60, 10
              s_add_u32 s7, s7, {L_RED}
              v_lshl_add_u32 v18, v0, 4, s7
              v_bfe_u32 v5, v0, 2, 3
              v_bfe_u32 v6, v0, 1, 1
              v_lshl_add_u32 v5, v6, 4, v5
              v_and_b32 v6, 1, v0
              v_lshlrev_b32 v6, 3, v6
              v_lshl_add_u32 v19, v5, 4, v6
              v_lshlrev_b32 v4, 3, v0
              v_cmp_lt_u32 vcc, 31, v0
              v_cndmask_b32 v4, v4, v3, vcc''')
        masks()
    def mktag():
        a('s_waitcnt lgkmcnt(0)\ns_mul_i32 s31, s31, 1664525\ns_add_u32 s31, s31, 1013904223')
    a('L_P1:')
    srd(8, 52, 448 * 5376)
    srd(12, 50, 896)
    a('''buffer_load_dword v52, v14, s[12:15], 0 offen
         v_mul_u32_u24 v5, 5376, v13
         v_lshl_add_u32 v5, v2, 4, v5
         s_lshl_b32 s28, s62, 7''')
    wtile(64, 8, 5376, 14, 5, 28)
    a(f's_lshl_b32 s63, s62, 8\ns_add_u32 s63, s63, {W_MOD}')
    common_addrs()
    mktag()
    a('s_waitcnt vmcnt(14)')
    unpack(54, 55, 52)
    for r in (54, 55): a(f'v_mul_f32 v{r+2}, {NLOG2E}, v{r}')
    for r in (54, 55): a(f'v_exp_f32 v{r+2}, v{r+2}')
    for r in (54, 55): a(f'v_add_f32 v{r+2}, 1.0, v{r+2}')
    for r in (54, 55): a(f'v_rcp_f32 v{r+2}, v{r+2}')
    for r in (54, 55): a(f'v_mul_f32 v{r}, v{r}, v{r+2}')
    a('s_branch L_Pgemv')

    a('L_P2:\ns_sub_u32 s62, s62, 14')
    srd(8, 38, 448 * 8192)
    srd(12, 32, 896)
    a('''v_lshlrev_b32 v5, 4, v0
         buffer_load_dwordx4 v[20:23], v5, s[12:15], 0 offen
         buffer_load_dword v52, v14, s[12:15], 0 offen
         v_lshlrev_b32 v5, 13, v13
         v_lshl_add_u32 v5, v2, 4, v5
         s_lshl_b32 s28, s62, 7''')
    wtile(64, 8, 8192, 14, 5, 28)
    a(f's_lshl_b32 s63, s62, 8\ns_add_u32 s63, s63, {W_Q}')
    common_addrs()
    mktag()
    a('s_waitcnt vmcnt(14)')
    for k in range(4): unpack(24 + 2 * k, 25 + 2 * k, 20 + k)
    a('v_add_f32 v32, v24, v25')
    for k in range(2, 8): a(f'v_add_f32 v32, v32, v{24+k}')
    allred('v_add_f32', [32], [33], 64)
    a(f'v_mul_f32 v32, {INV448}, v32')
    for k in range(8): a(f'v_sub_f32 v{24+k}, v{24+k}, v32')
    a('v_mul_f32 v34, v24, v24')
    for k in range(1, 8): a(f'v_fmac_f32 v34, v{24+k}, v{24+k}')
    a('v_cmp_gt_u32 vcc, 56, v0\nv_cndmask_b32 v34, 0, v34, vcc')
    allred('v_add_f32', [34], [33], 64)
    a(f'v_mul_f32 v34, {INV448}, v34')
    def ln_tail(mu, var, t, x0, x1):
        rnd2(mu, var, t)
        a(f'v_add_f32 v{var}, {EPS}, v{var}')
        a(f'v_sub_f32 v{x0}, v{x0}, v{mu}\nv_sub_f32 v{x1}, v{x1}, v{mu}')
        rnd1(var)
        a(f'v_sqrt_f32 v{var}, v{var}')
        rnd2(x0, x1, t)
        rnd1(var)
        a(f'v_rcp_f32 v{var}, v{var}')
        a(f'v_mul_f32 v{x0}, v{x0}, v{var}\nv_mul_f32 v{x1}, v{x1}, v{var}')
        rnd2(x0, x1, t)
    unpack(54, 55, 52)
    ln_tail(32, 34, 33, 54, 55)
    a(f's_mov_b32 s28, {W_MOD}\nv_cmp_ne_u32 s[70:71], 7, v2')
    L = poll_begin()
    a('''buffer_load_dwordx2 v[56:57], v15, s[16:19], s28 offen sc1
         buffer_load_dwordx2 v[58:59], v15, s[16:19], s28 offen offset:1792 sc1
         s_waitcnt vmcnt(0)
         v_cmp_ne_u32 vcc, s31, v57
         v_cmp_ne_u32 s[72:73], s31, v59
         s_or_b64 vcc, vcc, s[72:73]
         s_and_b64 vcc, vcc, s[70:71]''')
    poll_end(L, sleep=0, mask=False)
    stamp(2)
    unpack(60, 61, 58)
    a('v_add_f32 v60, 1.0, v60\nv_add_f32 v61, 1.0, v61')
    rnd2(60, 61, 33)
    a('v_mul_f32 v54, v54, v60\nv_mul_f32 v55, v55, v61')
    rnd2(54, 55, 33)
    unpack(60, 61, 56)
    a('v_add_f32 v54, v54, v60\nv_add_f32 v55, v55, v61')

    a('L_Pgemv:')
    def bcast14(x0, x1):
        a(f'''v_cvt_pk_bf16_f32 v{x0}, v{x0}, v{x0}
              v_cvt_pk_bf16_f32 v{x1}, v{x1}, v{x1}
              ds_write_b64 v16, v[{x0}:{x1}]''')
        for k in range(4): a(f'ds_read_b128 v[{20+4*k}:{23+4*k}], v17 offset:{16*k}')
    bcast14(54, 55)
    a('s_waitcnt lgkmcnt(0)')
    for m in range(14):
        ab = 36 + 4 * (m & 1)
        abuild(ab, 20 + m)
        a(f's_waitcnt vmcnt({13-m})')
        c = '0' if m == 0 else 'v[44:47]'
        a(f'v_mfma_f32_16x16x32_bf16 v[44:47], v[{ab}:{ab+3}], v[{64+4*m}:{67+4*m}], {c}')
    def red8(cnt, skip):
        a(f'''v_mov_b32 v6, 1
              ds_write_b128 v18, v[44:47]
              s_mov_b64 exec, 1
              ds_add_rtn_u32 v5, v7, v6 offset:{cnt}
              s_mov_b64 exec, -1''')
        for w in range(4):
            for x in range(2):
                r = 20 + 4 * w + 2 * x
                a(f'ds_read_b64 v[{r}:{r+1}], v19 offset:{L_RED + w*1024 + x*640}')
        a(f'''s_waitcnt lgkmcnt(0)
              v_readfirstlane_b32 s7, v5
              s_cmp_lg_u32 s7, 3
              s_cbranch_scc1 {skip}''')
        for stp in (2, 4, 8):
            for r in range(20, 36, 2 * stp):
                a(f'v_pk_add_f32 v[{r}:{r+1}], v[{r}:{r+1}], v[{r+stp}:{r+stp+1}]')
    red8(F_PCNT, 'L_Pdone')
    a('''v_cvt_pk_bf16_f32 v20, v20, v21
         v_mov_b32 v21, s31
         buffer_store_dwordx2 v[20:21], v4, s[16:19], s63 offen sc1''')
    stamp(3)
    a('s_branch L_Pdone')

    a('L_noP:')
    if codepf:
        a(f'''s_cmp_lt_u32 s2, 216
              s_cbranch_scc1 L_nopf
              s_getpc_b64 s[64:65]
              L_pc:
              s_sub_u32 s64, s64, L_pc-{NAME}_kernel
              s_subb_u32 s65, s65, 0
              s_mul_i32 s7, s60, CODE_Q
              v_lshl_add_u32 v5, v0, 4, s7
              .rept CODE_Q/1024
              global_load_dwordx4 v[20:23], v5, s[64:65]
              v_add_u32 v5, 0x400, v5
              .endr
              L_nopf:''')
    common_addrs()
    mktag()
    a('L_Pdone:')
    a('''s_mov_b32 s61, 1
         s_cmp_lt_u32 s5, 14
         s_cbranch_scc1 L_roled
         s_sub_u32 s62, s5, 14
         s_lshl_b32 s62, s62, 3
         s_add_u32 s62, s62, s4
         s_cmp_lt_u32 s62, 28
         s_cselect_b32 s61, 2, 0
         L_roled:
         s_cmp_lg_u32 s60, 0
         s_cbranch_scc1 L_tail''')
    a(f'''s_lshl_b32 s28, s4, 11
          s_add_u32 s28, s28, {W_Q}
          v_lshlrev_b32 v5, 4, v0
          v_lshlrev_b32 v6, 3, v0
          v_mov_b32 v40, -1
          v_mov_b32 v41, -1
          v_mov_b32 v42, -1
          v_mov_b32 v43, -1
          s_lshl_b32 s29, s6, 11
          s_add_u32 s29, s29, {W_PART}
          buffer_store_dwordx4 v[40:43], v5, s[16:19], s29 offen sc1
          buffer_store_dwordx4 v[40:43], v5, s[16:19], s29 offen offset:1024 sc1
          s_cmp_lg_u32 s61, 1
          s_cbranch_scc1 L_rs1
          s_and_b32 s7, s5, 1
          s_lshl_b32 s29, s4, 1
          s_add_u32 s29, s29, s7
          s_mul_i32 s29, s29, 1792
          s_lshr_b32 s7, s5, 1
          s_lshl_b32 s7, s7, 8
          s_add_u32 s29, s29, s7
          s_add_u32 s29, s29, {W_Y}
          buffer_store_dwordx2 v[40:41], v4, s[16:19], s29 offen sc1
          L_rs1:
          s_cmp_lg_u32 s61, 2
          s_cbranch_scc1 L_rs2
          s_mul_i32 s29, s62, 3584
          s_add_u32 s29, s29, {W_Z}
          buffer_store_dwordx4 v[40:43], v5, s[16:19], s29 offen sc1
          buffer_store_dwordx4 v[40:43], v5, s[16:19], s29 offen offset:1024 sc1
          buffer_store_dwordx4 v[40:43], v5, s[16:19], s29 offen offset:2048 sc1
          buffer_store_dwordx2 v[40:41], v6, s[16:19], s29 offen offset:3072 sc1
          L_rs2:''')
    a('''s_lshl_b32 s7, s6, 19
         s_add_u32 s12, s36, s7
         s_addc_u32 s13, s37, 0
         s_mov_b32 s14, 0x80000
         s_mov_b32 s15, 0x20000
         buffer_load_dword v44, v7, s[12:15], 0 offen nt''')
    L = poll_begin()
    a('''buffer_load_dwordx4 v[20:23], v5, s[16:19], s28 offen sc1
         buffer_load_dwordx4 v[24:27], v5, s[16:19], s28 offen offset:1024 sc1
         s_waitcnt vmcnt(0)
         v_cmp_ne_u32 vcc, s31, v21
         v_cmp_ne_u32 s[72:73], s31, v23
         s_or_b64 vcc, vcc, s[72:73]
         v_cmp_ne_u32 s[72:73], s31, v25
         s_or_b64 vcc, vcc, s[72:73]
         v_cmp_ne_u32 s[72:73], s31, v27
         s_or_b64 vcc, vcc, s[72:73]''')
    poll_end(L, sleep=2, mask=False)
    a(f'''v_add_u32 v6, {L_Q}, v6
          ds_write2_b32 v6, v20, v22 offset0:0 offset1:1
          ds_write2_b32 v6, v24, v26 offset0:128 offset1:129''')
    ldsflag(F_Q)
    stamp(4)
    a(f'''v_lshrrev_b32 v5, 5, v0
          v_mul_u32_u24 v5, {HS}, v5
          v_and_b32 v6, 31, v0
          v_lshlrev_b32 v61, 4, v6
          v_add_u32 v60, v5, v61
          v_mov_b32 v62, {CEXP}
          s_lshl_b32 s28, s6, 4
          s_add_u32 s28, s28, {W_STATS}
          s_lshl_b32 s29, s4, 9
          s_add_u32 s29, s29, {W_STATS}''')
    ldswait(F_SCNT, 4, 5, sleep=4)
    stamp(5)
    for n in range(8): a(f'ds_read_b128 v[{64+4*n}:{67+4*n}], v60 offset:{L_SC + 512*n}')
    for n in range(8):
        a(f's_waitcnt lgkmcnt({7-n})')
        rnd2(64 + 4 * n, 65 + 4 * n, 5)
        rnd2(66 + 4 * n, 67 + 4 * n, 6)
    a('v_max_f32 v20, v64, v65')
    for k in range(66, 96, 2): a(f'v_max3_f32 v20, v20, v{k}, v{k+1}')
    allred('v_max_f32', [20], [21], 32)
    for k in range(64, 96): a(f'v_sub_f32 v{k}, v{k}, v20')
    for k in range(64, 96): a(f'v_mul_f32 v{k}, v62, v{k}')
    for k in range(64, 96): a(f'v_exp_f32 v{k}, v{k}')
    a('v_add_f32 v22, v64, v65\nv_add_f32 v23, v66, v67')
    for k in range(68, 96, 2): a(f'v_add_f32 v22, v22, v{k}\nv_add_f32 v23, v23, v{k+1}')
    a('v_add_f32 v22, v22, v23')
    allred('v_add_f32', [22], [21], 32)
    a('''v_readlane_b32 s64, v20, 0
         v_readlane_b32 s65, v20, 32
         v_readlane_b32 s66, v22, 32
         s_pack_hh_b32_b16 s64, s64, s65
         v_mov_b32 v24, s64
         v_mov_b32 v25, v22
         v_mov_b32 v26, s66
         v_mov_b32 v27, s31
         s_mov_b64 exec, 1
         buffer_store_dwordx4 v[24:27], v7, s[16:19], s28 offen sc1
         s_mov_b64 exec, -1''')
    stamp(6)
    L = poll_begin()
    a('''buffer_load_dwordx4 v[28:31], v61, s[16:19], s29 offen sc1
         s_waitcnt vmcnt(0)
         v_cmp_ne_u32 vcc, s31, v31''')
    poll_end(L, sleep=2, mask=False)
    stamp(7)
    unpack(32, 33, 28)
    a('''v_cmp_lt_u32 vcc, 31, v0
         v_cndmask_b32 v32, v32, v33, vcc
         v_cndmask_b32 v29, v29, v30, vcc
         v_mov_b32 v34, v32''')
    allred('v_max_f32', [34], [21], 32)
    a('''v_sub_f32 v32, v32, v34
         v_sub_f32 v20, v20, v34
         v_mul_f32 v32, v62, v32
         v_mul_f32 v20, v62, v20
         v_exp_f32 v32, v32
         v_exp_f32 v20, v20
         v_mul_f32 v29, v29, v32''')
    allred('v_add_f32', [29], [21], 32)
    a('v_rcp_f32 v29, v29\nv_mul_f32 v20, v20, v29')
    for n in range(8):
        for k in range(64 + 4 * n, 68 + 4 * n): a(f'v_mul_f32 v{k}, v20, v{k}')
        for k in range(64 + 4 * n, 68 + 4 * n): a(f'v_cvt_pk_bf16_f32 v{k}, v{k}, v{k}')
        a(f'ds_write_b128 v60, v[{64+4*n}:{67+4*n}] offset:{L_SC + 512*n}')
    ldsflag(F_P)
    stamp(8)

    a('''L_tail:
         s_cmp_eq_u32 s61, 0
         s_cbranch_scc1 L_helper_end
         s_cmp_eq_u32 s61, 2
         s_cbranch_scc1 L_T2''')
    srd(8, 40, 4096 * 896)
    a(f'''s_and_b32 s64, s5, 1
          s_lshr_b32 s65, s5, 1
          s_lshl_b32 s66, s4, 1
          s_add_u32 s66, s66, s64
          s_lshl_b32 s7, s66, 8
          s_lshl_b32 s67, s60, 6
          s_add_u32 s7, s7, s67
          s_mul_i32 s28, s7, 896
          s_lshl_b32 s7, s65, 7
          s_add_u32 s28, s28, s7
          s_add_u32 s29, s28, {32*896}
          v_mul_u32_u24 v12, 3584, v1
          v_lshl_add_u32 v12, v2, 4, v12
          s_mul_i32 s63, s66, 1792
          s_lshl_b32 s7, s65, 8
          s_add_u32 s63, s63, s7
          s_add_u32 s63, s63, {W_Y}
          s_lshl_b32 s72, s4, 16
          s_lshl_b32 s7, s64, 10
          s_add_u32 s72, s72, s7
          s_lshl_b32 s7, s60, 8
          s_add_u32 s72, s72, s7
          s_add_u32 s72, s72, {W_PART}
          s_add_u32 s73, s72, 0x4000
          s_add_u32 s74, s72, 0x8000
          s_add_u32 s75, s72, 0xc000
          v_lshlrev_b32 v13, 11, v2
          v_lshl_add_u32 v13, v1, 4, v13''')
    ldswait(F_TRIG, 1, 5, sleep=4)
    stamp(9)
    for u in range(2):
        for m in range(4):
            r = 64 + 16 * u + 4 * m
            a(f'buffer_load_dwordx4 v[{r}:{r+3}], v12, s[8:11], s{28+u} offen offset:{896*m} {wpol}')
    L = poll_begin()
    for u in range(2):
        for n in range(4):
            r = 96 + 16 * u + 4 * n
            a(f'buffer_load_dwordx4 v[{r}:{r+3}], v13, s[16:19], s{72+n} offen offset:{128*u} sc1')
    a('s_waitcnt vmcnt(0)\ns_mov_b64 exec, -1')
    for u in range(2):
        b = 96 + 16 * u; o = 20 + 4 * u; t = 28 + 4 * u
        for k in (0, 2):
            a(f'v_pk_add_f32 v[{o+k}:{o+k+1}], v[{b+k}:{b+k+1}], v[{b+4+k}:{b+4+k+1}]')
            a(f'v_pk_add_f32 v[{t+k}:{t+k+1}], v[{b+8+k}:{b+8+k+1}], v[{b+12+k}:{b+12+k+1}]')
    for k in range(0, 8, 2):
        a(f'v_pk_add_f32 v[{20+k}:{21+k}], v[{20+k}:{21+k}], v[{28+k}:{29+k}]')
    a('''v_pk_add_f32 v[28:29], v[20:21], v[22:23]
         v_pk_add_f32 v[30:31], v[24:25], v[26:27]
         v_pk_add_f32 v[28:29], v[28:29], v[30:31]
         v_cmp_u_f32 vcc, v28, v29''')
    poll_end(L)
    stamp(10)
    allred('v_add_f32', list(range(20, 28)), [], 8)
    for k in range(20, 28): a(f'v_cvt_pk_bf16_f32 v{k}, v{k}, v{k}')
    for m in range(8):
        ab = 36 + 4 * (m & 1)
        abuild(ab, 20 + m)
        c = '0' if m == 0 else 'v[44:47]'
        a(f'v_mfma_f32_16x16x32_bf16 v[44:47], v[{ab}:{ab+3}], v[{64+4*m}:{67+4*m}], {c}')
    red8(F_TCNT, 'L_helper_end')
    a('buffer_store_dwordx2 v[20:21], v4, s[16:19], s63 offen sc1')
    stamp(11)
    a('L_helper_end:')
    finish()

    a('.p2align 6\nL_T2:')
    ldswait(F_P, 1, 5, sleep=8)
    a(f's_mov_b32 s28, {W_STATS}\nv_lshlrev_b32 v5, 4, v0')
    L = poll_begin()
    for n in range(4): a(f'buffer_load_dword v{20+n}, v5, s[16:19], s28 offen offset:{1024*n+12} sc1')
    a('s_waitcnt vmcnt(0)\nv_cmp_ne_u32 vcc, s31, v20')
    for n in range(1, 4): a(f'v_cmp_ne_u32 s[72:73], s31, v{20+n}\ns_or_b64 vcc, vcc, s[72:73]')
    poll_end(L, sleep=8, mask=False)
    srd(12, 32, 896)
    a(f'''buffer_load_dword v52, v14, s[12:15], 0 offen
          s_mov_b32 s28, {W_MOD + 4*896}
          s_lshl_b32 s7, s62, 4
          v_and_b32 v61, 3, v0
          v_lshlrev_b32 v61, 2, v61
          v_lshrrev_b32 v5, 4, v0
          v_add3_u32 v61, v61, v5, s7
          v_lshrrev_b32 v62, 1, v61
          v_lshlrev_b32 v62, 3, v62
          s_mov_b32 s29, {W_MOD + 4*2240}
          v_cmp_ne_u32 s[70:71], 7, v2''')
    L = poll_begin()
    a('''buffer_load_dwordx2 v[20:21], v15, s[16:19], s28 offen sc1
         buffer_load_dwordx2 v[22:23], v15, s[16:19], s28 offen offset:1792 sc1
         buffer_load_dwordx2 v[24:25], v15, s[16:19], s28 offen offset:3584 sc1
         buffer_load_dwordx2 v[26:27], v62, s[16:19], s29 offen sc1
         s_waitcnt vmcnt(0)
         v_cmp_ne_u32 vcc, s31, v21
         v_cmp_ne_u32 s[72:73], s31, v23
         s_or_b64 vcc, vcc, s[72:73]
         v_cmp_ne_u32 s[72:73], s31, v25
         s_or_b64 vcc, vcc, s[72:73]
         s_and_b64 vcc, vcc, s[70:71]
         v_cmp_ne_u32 s[72:73], s31, v27
         s_or_b64 vcc, vcc, s[72:73]''')
    poll_end(L, sleep=8, mask=False)
    a('v_mov_b32 v28, v52')
    unpack(52, 53, 28)
    unpack(54, 55, 20)
    unpack(58, 59, 22)
    unpack(56, 57, 24)
    a('v_add_f32 v56, 1.0, v56\nv_add_f32 v57, 1.0, v57')
    rnd2(56, 57, 28)
    unpack(60, 28, 26)
    a(f'''v_and_b32 v5, 1, v61
          v_cmp_eq_u32 vcc, 1, v5
          v_cndmask_b32 v60, v60, v28, vcc
          v_lshlrev_b32 v240, 2, v12
          v_add_u32 v240, {L_X1}, v240
          v_mov_b32 v5, {L_X1 + 1792}
          v_cndmask_b32 v240, v5, v240, s[70:71]
          v_lshlrev_b32 v241, 2, v61
          v_lshlrev_b32 v242, 1, v61
          v_bfe_u32 v5, v0, 2, 2
          v_cmp_ne_u32 vcc, 0, v5
          v_cndmask_b32 v242, v242, v3, vcc
          s_lshl_b32 s7, s60, 3
          s_add_u32 s7, s7, {L_ST2}
          v_mov_b32 v243, s7
          s_lshl_b32 s7, s60, 11
          s_add_u32 s7, s7, {L_RED}
          v_lshl_add_u32 v244, v0, 4, s7
          v_bfe_u32 v5, v0, 2, 1
          v_lshl_add_u32 v5, v5, 4, v1
          v_and_b32 v6, 3, v0
          v_lshlrev_b32 v6, 2, v6
          v_lshl_add_u32 v245, v5, 4, v6
          v_add_u32 v245, {L_RED}, v245
          v_add_u32 v246, 640, v245
          v_lshrrev_b32 v5, 5, v0
          v_bfe_u32 v6, v0, 3, 1
          v_cmp_ne_u32 vcc, v5, v6
          v_mul_u32_u24 v247, 1792, v5
          v_lshl_add_u32 v247, v2, 5, v247
          v_bfe_u32 v6, v0, 4, 1
          v_lshl_add_u32 v247, v6, 4, v247
          v_cndmask_b32 v247, v247, v3, vcc
          s_mul_i32 s63, s62, 3584
          s_lshl_b32 s7, s60, 9
          s_add_u32 s63, s63, s7
          s_add_u32 s63, s63, {W_Z}
          v_mov_b32 v248, v247
          v_lshrrev_b32 v5, 2, v0
          v_mul_u32_u24 v249, 1792, v5
          v_and_b32 v6, 3, v0
          v_lshl_add_u32 v249, v6, 4, v249
          v_mul_u32_u24 v250, 3584, v13
          v_lshl_add_u32 v250, v2, 4, v250
          v_mul_u32_u24 v251, 7168, v1
          v_lshl_add_u32 v251, v2, 4, v251
          v_add_u32 v252, 128, v251
          s_cmp_lg_u32 s60, 3
          s_cbranch_scc1 L_T2a
          v_mov_b32 v248, v3
          v_mov_b32 v252, v3
          L_T2a:''')
    srd(8, 44, 448 * 3584)
    srd(12, 46, 448 * 3584)
    srd(20, 48, 1792 * 896)
    srd(24, 54, 896)
    for n in range(8): a(f's_mov_b32 s{72+n}, {W_Y + 3584*n}')
    a(f'''s_lshl_b32 s28, s62, 7
          s_mul_i32 s29, s62, {64*896}
          s_lshl_b32 s7, s60, 8
          s_add_u32 s29, s29, s7
          s_lshl_b32 s64, s62, 6
          s_add_u32 s64, s64, {W_Z}
          s_add_u32 s65, s64, {16*1792}
          s_add_u32 s66, s64, {32*1792}
          s_add_u32 s67, s64, {48*1792}''')
    ldswait(F_TRIG, 1, 5, sleep=4)
    stamp(9)
    for m in range(14):
        a(f'buffer_load_dwordx4 v[{64+4*m}:{67+4*m}], v250, s[8:11], s28 offen {wpol}')
        a(f'buffer_load_dwordx4 v[{120+4*m}:{123+4*m}], v250, s[12:15], s28 offen {wpol}')
        if m < 13: a('s_add_u32 s28, s28, 3584')
    for m in range(8):
        a(f'buffer_load_dwordx4 v[{176+8*m}:{179+8*m}], v251, s[20:23], s29 offen {wpol}')
        a(f'buffer_load_dwordx4 v[{180+8*m}:{183+8*m}], v252, s[20:23], s29 offen {wpol}')
        if m < 7: a('s_add_u32 s29, s29, 896')
    a('s_waitcnt vmcnt(0)')
    stamp(10)
    L = poll_begin()
    for n in range(16):
        a(f'buffer_load_dwordx2 v[{20+2*n}:{21+2*n}], v15, s[16:19], s{72+(n>>1)} offen offset:{1792*(n&1)} sc1')
    a('s_waitcnt vmcnt(0)')
    for stp in (2, 4, 8, 16):
        for r in range(20, 52, 2 * stp):
            a(f'v_pk_add_f32 v[{r}:{r+1}], v[{r}:{r+1}], v[{r+stp}:{r+stp+1}]')
    a('v_cmp_u_f32 vcc, v20, v21')
    poll_end(L, mask=False)
    stamp(11)
    rnd2(20, 21, 22)
    a('v_mul_f32 v20, v54, v20\nv_mul_f32 v21, v55, v21')
    rnd2(20, 21, 22)
    a('v_add_f32 v52, v52, v20\nv_add_f32 v53, v53, v21')
    rnd2(52, 53, 22)
    a('''v_add_f32 v24, v52, v53
         v_mul_f32 v25, v52, v52
         v_fmac_f32 v25, v53, v53
         ds_write_b64 v240, v[52:53]''')
    allred('v_add_f32', [24, 25], [26, 27], 64)
    a(f'''s_mov_b64 exec, 1
          ds_write_b64 v243, v[24:25]
          s_mov_b64 exec, -1
          s_waitcnt lgkmcnt(0)
          s_barrier
          ds_read_b128 v[24:27], v7 offset:{L_ST2}
          ds_read_b128 v[28:31], v7 offset:{L_ST2+16}
          ds_read_b32 v63, v241 offset:{L_X1}
          s_waitcnt lgkmcnt(1)
          v_pk_add_f32 v[24:25], v[24:25], v[26:27]
          v_pk_add_f32 v[28:29], v[28:29], v[30:31]
          v_pk_add_f32 v[24:25], v[24:25], v[28:29]
          v_mul_f32 v24, {INV448}, v24
          v_mul_f32 v25, {INV448}, v25
          v_fma_f32 v25, -v24, v24, v25
          v_max_f32 v25, 0, v25''')
    ln_tail(24, 25, 22, 52, 53)
    a('v_mul_f32 v52, v52, v56\nv_mul_f32 v53, v53, v57')
    rnd2(52, 53, 22)
    a('v_add_f32 v52, v52, v58\nv_add_f32 v53, v53, v59')
    bcast14(52, 53)
    for m in range(14):
        if m % 4 == 0: a(f's_waitcnt lgkmcnt({3 - m//4})')
        ab = 36 + 4 * (m & 1)
        abuild(ab, 20 + m)
        for k, (acc, wb) in enumerate(((44, 64), (48, 120))):
            c = '0' if m == 0 else f'v[{acc}:{acc+3}]'
            a(f'v_mfma_f32_16x16x32_bf16 v[{acc}:{acc+3}], v[{ab}:{ab+3}], v[{wb+4*m}:{wb+4*m+3}], {c}')
    a('''ds_write_b128 v244, v[44:47]
         ds_write_b128 v244, v[48:51] offset:1024
         s_waitcnt lgkmcnt(0)
         s_barrier''')
    for w in range(4):
        for x in range(2):
            r = 20 + 4 * w + 2 * x
            a(f'ds_read2st64_b32 v[{r}:{r+1}], v{245+x} offset0:{8*w} offset1:{8*w+4}')
    a('s_waitcnt lgkmcnt(0)')
    for stp in (2, 4, 8):
        for r in range(20, 36, 2 * stp):
            a(f'v_pk_add_f32 v[{r}:{r+1}], v[{r}:{r+1}], v[{r+stp}:{r+stp+1}]')
    rnd2(20, 21, 22)
    a(f'''v_mul_f32 v22, {NLOG2E}, v20
          v_exp_f32 v22, v22
          v_add_f32 v22, 1.0, v22
          v_rcp_f32 v22, v22
          v_mul_f32 v20, v20, v22''')
    rnd1(20)
    a('v_mul_f32 v20, v20, v21\nv_cvt_pk_bf16_f32 v20, v20, v20')
    for m in range(8): a(f'ds_swizzle_b32 v{24+m}, v20 offset:swizzle(BROADCAST,8,{m})')
    for m in range(8):
        a(f's_waitcnt lgkmcnt({7-m})')
        ab = 36 + 4 * (m & 1)
        abuild(ab, 24 + m)
        for k, acc in enumerate((44, 48)):
            c = '0' if m == 0 else f'v[{acc}:{acc+3}]'
            wb = 176 + 8 * m + 4 * k
            a(f'v_mfma_f32_16x16x32_bf16 v[{acc}:{acc+3}], v[{ab}:{ab+3}], v[{wb}:{wb+3}], {c}')
    a('''buffer_store_dwordx4 v[44:47], v247, s[16:19], s63 offen sc1
         buffer_store_dwordx4 v[48:51], v248, s[16:19], s63 offen offset:256 sc1''')
    stamp(12)
    a('s_cmp_lg_u32 s60, 3\ns_cbranch_scc1 L_T2_end')
    L = poll_begin()
    for n in range(4): a(f'buffer_load_dwordx4 v[{64+4*n}:{67+4*n}], v249, s[16:19], s{64+n} offen sc1')
    a('s_waitcnt vmcnt(0)\ns_mov_b64 exec, -1')
    for k in (0, 2):
        a(f'v_pk_add_f32 v[{20+k}:{21+k}], v[{64+k}:{65+k}], v[{68+k}:{69+k}]')
        a(f'v_pk_add_f32 v[{24+k}:{25+k}], v[{72+k}:{73+k}], v[{76+k}:{77+k}]')
    a('''v_pk_add_f32 v[20:21], v[20:21], v[24:25]
         v_pk_add_f32 v[22:23], v[22:23], v[26:27]
         v_pk_add_f32 v[24:25], v[20:21], v[22:23]
         v_cmp_u_f32 vcc, v24, v25''')
    poll_end(L)
    stamp(13)
    a(f'''v_permlane32_swap_b32 v20, v22
          v_permlane32_swap_b32 v21, v23
          v_add_f32 v20, v20, v22
          v_add_f32 v21, v21, v23
          v_permlane16_swap_b32 v20, v21
          v_add_f32 v20, v20, v21
          v_add_f32_dpp v20, v20, v20 row_ror:4 {DPPF}
          v_add_f32_dpp v20, v20, v20 row_ror:8 {DPPF}''')
    rnd1(20)
    a('v_mul_f32 v20, v60, v20')
    rnd1(20)
    a('''v_add_f32 v20, v63, v20
         v_cvt_pk_bf16_f32 v20, v20, v20
         buffer_store_short v20, v242, s[24:27], 0 offen
         s_cmp_lg_u32 s62, 0
         s_cbranch_scc1 L_T2_end
         v_mov_b32 v21, s31
         s_mov_b64 exec, 1
         buffer_store_dword v21, v7, s[16:19], 0 offen sc1''')
    a('L_T2_end:')
    stamp(14)
    finish()
    if prof:
        a('L_prof_end:\ns_mov_b64 exec, -1\ns_getreg_b32 s95, hwreg(HW_REG_XCC_ID)')
        for k in range(16): a(f'v_writelane_b32 v1, s{80+k}, {k}')
        a(f'''s_lshl_b32 s7, s2, 3
              s_add_u32 s7, s7, s3
              s_lshl_b32 s7, s7, 6
              s_add_u32 s7, s7, {W_PROF}
              v_mbcnt_lo_u32_b32 v2, -1, 0
              v_lshlrev_b32 v2, 2, v2
              s_mov_b32 s18, 0x400000
              s_mov_b64 exec, 0xffff
              buffer_store_dword v1, v2, s[16:19], s7 offen''')
    a('L_exit:\ns_endpgm\nL_code_end:')
    body = a.text()
    head = open('cdna_kernels/' + NAME + '.s.ref').read().split('; Override launch')[0]
    head += f'; @launch grid=(256,1,1) block=(512,1,1) lds={LDS_BYTES}\n'
    nbytes_est = sum(8 for l in body.split('\n') if l and not l.endswith(':'))
    return head, body

def assemble_text(head, body, code_q):
    return head + f'''.amdgcn_target "amdgcn-amd-amdhsa--gfx950"
.text
.set CODE_Q, {code_q}
.globl {NAME}_kernel
.p2align 8
.type {NAME}_kernel,@function
''' + body + f'''.fill 1024, 4, 0xbf810000
.section .rodata,"a"
.p2align 6
.amdhsa_kernel {NAME}_kernel
  .amdhsa_next_free_vgpr 256
  .amdhsa_next_free_sgpr 102
  .amdhsa_accum_offset 256
  .amdhsa_group_segment_fixed_size 0
  .amdhsa_kernarg_size 112
  .amdhsa_user_sgpr_count 2
  .amdhsa_user_sgpr_kernarg_segment_ptr 1
  .amdhsa_system_sgpr_workgroup_id_x 1
.end_amdhsa_kernel
'''

def code_size(text):
    import subprocess, re, tempfile, os
    d = tempfile.mkdtemp()
    open(d + '/k.s', 'w').write(text)
    r = subprocess.run(['clang', '-x', 'assembler', '-target', 'amdgcn-amd-amdhsa', '-mcpu=gfx950', '-c', d + '/k.s', '-o', d + '/k.o'], capture_output=True, text=True)
    if r.returncode: print(r.stderr[:3000]); raise SystemExit(1)
    o = subprocess.run(['llvm-objdump', '-t', d + '/k.o'], capture_output=True, text=True).stdout
    return int(re.search(r'([0-9a-f]+) .* L_code_end', o).group(1), 16)

def full(**kw):
    head, body = gen(**kw)
    sz = code_size(assemble_text(head, body, 4096))
    q = -(-(sz + 128) // 4096) * 1024
    return assemble_text(head, body, q)

if __name__ == '__main__':
    kw = eval('dict(' + (sys.argv[2] if len(sys.argv) > 2 else '') + ')')
    t = full(**kw)
    open(sys.argv[1], 'w').write(t)
    print('code bytes', code_size(t), 'lines', t.count('\n'))
```

```python
import sys
sys.path.insert(0, 'work')
from asmlib import Asm

NAME = 'adaLN_cond__gqa_block_cached__swiglu_ffn__decode'
W_EPOCH = 0
W_MOD = 0x1000
W_Q = 0x4000
W_STATS = 0x8000
W_PART = 0x10000
W_Y = 0x90000
W_Z = 0x98000
W_END = W_Z + 56 * 1792
W_PROF = 0x200000
F_Q, F_SCNT, F_P, F_TRIG, F_PCNT, F_OCNT, F_TCNT = 0, 4, 8, 12, 16, 20, 24
L_Q = 0x100
L_BC = 0x800
L_RED = 0x1000
L_SC = 0x3000
HS = 4096 + 64
L_X1 = 0x5100
L_ST2 = 0x5900
L_RED2 = 0x6000
LDS_BYTES = 0x8000
BIG = 0x40000000
LOG2E = 0x3fb8aa3b
NLOG2E = 0xbfb8aa3b
CEXP = 0x3db8aa3b
INV448 = 0x3b124925
EPS = 0x3727c5ac
SPIN = 0x40000
DPPF = 'row_mask:0xf bank_mask:0xf'

def gen(D=5, R=54, CATCH=4, gmap='xcd', prof=False, UNTH=0, TRIG=232, DV=None, wpol='nt', codepf=True, cal=None):
    a = Asm()
    DV = DV or D
    if cal: prof = True
    def stamp(k):
        if prof:
            a(f's_memrealtime s[96:97]\ns_waitcnt lgkmcnt(0)\ns_mov_b32 s{80+k}, s96')
    def finish():
        if prof:
            a('s_branch L_prof_end')
        else:
            a('s_endpgm')
    def srd(d, lo, size):
        a(f's_mov_b32 s{d}, s{lo}\ns_mov_b32 s{d+1}, s{lo+1}\ns_mov_b32 s{d+2}, {size}\ns_mov_b32 s{d+3}, 0x20000')
    def masks():
        a('''v_and_b32 v6, 1, v0
             v_lshlrev_b32 v6, 4, v6
             v_mov_b32 v5, 0xffff
             v_lshlrev_b32 v5, v6, v5
             v_bfe_u32 v6, v0, 1, 2''')
        for j in range(4):
            a(f'v_cmp_eq_u32 vcc, {j}, v6\nv_cndmask_b32 v{8+j}, 0, v5, vcc')
    def abuild(dst, src):
        for j in range(4): a(f'v_and_b32 v{dst+j}, v{src}, v{8+j}')
    def ldswait(flag, val, tmp, extra='', sleep=1):
        L = a.uniq('L_w'); Ld = L + '_d'
        a(f's_mov_b32 s30, {SPIN}')
        a(f'{L}:\nds_read_b32 v{tmp}, v7 offset:{flag}')
        a(extra)
        a(f'''s_waitcnt lgkmcnt(0)
              v_readfirstlane_b32 s7, v{tmp}
              s_cmp_ge_u32 s7, {val}
              s_cbranch_scc1 {Ld}
              s_sleep {sleep}
              s_sub_u32 s30, s30, 1
              s_cmp_lg_u32 s30, 0
              s_cbranch_scc1 {L}
              {Ld}:''')
    def ldsflag(flag, add=False):
        a('v_mov_b32 v6, 1\ns_mov_b64 exec, 1')
        a(f'ds_add_u32 v7, v6 offset:{flag}' if add else f'ds_write_b32 v7, v6 offset:{flag}')
        a('s_mov_b64 exec, -1')
    def allred(op, regs, tmps, width):
        steps = ['quad_perm:[1,0,3,2]', 'quad_perm:[2,3,0,1]', 'row_half_mirror', 'row_mirror']
        n = {8: 3, 16: 4, 32: 4, 64: 4}[width]
        for st in steps[:n]:
            for r in regs: a(f'{op}_dpp v{r}, v{r}, v{r} {st} {DPPF}')
        for wd, ins in ((32, 'v_permlane16_swap_b32'), (64, 'v_permlane32_swap_b32')):
            if width >= wd:
                for r, t in zip(regs, tmps): a(f'v_mov_b32 v{t}, v{r}')
                for r, t in zip(regs, tmps): a(f'{ins} v{r}, v{t}')
                for r, t in zip(regs, tmps): a(f'{op} v{r}, v{r}, v{t}')
    def rnd2(x, y, t):
        a(f'v_cvt_pk_bf16_f32 v{t}, v{x}, v{y}\nv_lshlrev_b32 v{x}, 16, v{t}\nv_and_b32 v{y}, 0xffff0000, v{t}')
    def rnd1(x):
        a(f'v_cvt_pk_bf16_f32 v{x}, v{x}, v{x}\nv_and_b32 v{x}, 0xffff0000, v{x}')
    def unpack(x, y, src):
        a(f'v_lshlrev_b32 v{x}, 16, v{src}\nv_and_b32 v{y}, 0xffff0000, v{src}')
    def poll_begin():
        L = a.uniq('L_p')
        a(f's_mov_b32 s30, {SPIN}\n{L}:')
        return L
    def poll_end(L, sleep=0, mask=True):
        Ld = L + '_d'
        a(f's_cbranch_vccz {Ld}')
        if sleep: a(f's_sleep {sleep}')
        if mask: a('s_mov_b64 exec, vcc')
        a(f's_sub_u32 s30, s30, 1\ns_cmp_lg_u32 s30, 0\ns_cbranch_scc1 {L}')
        if mask: a('s_mov_b64 exec, -1')
        a(f'{Ld}:')

    a(f'{NAME}_kernel:')
    a('''s_load_dwordx16 s[32:47], s[0:1], 0
         s_load_dwordx8 s[48:55], s[0:1], 64
         s_load_dwordx4 s[56:59], s[0:1], 96
         s_cmp_ge_u32 s2, 256
         s_cbranch_scc1 L_exit
         v_lshrrev_b32 v1, 6, v0
         v_and_b32 v0, 63, v0
         v_readfirstlane_b32 s3, v1
         v_mov_b32 v7, 0
         v_lshlrev_b32 v2, 2, v0
         ds_write_b32 v2, v7''')
    if gmap == 'xcd':
        a('s_and_b32 s4, s2, 7\ns_lshr_b32 s5, s2, 3')
    else:
        a('s_lshr_b32 s4, s2, 5\ns_and_b32 s5, s2, 31')
    a('''s_lshl_b32 s6, s4, 5
         s_add_u32 s6, s6, s5
         s_lshl_b32 s7, s6, 19
         v_lshrrev_b32 v5, 4, v0
         v_bfe_u32 v6, v0, 2, 2
         v_and_b32 v1, 3, v0
         v_lshlrev_b32 v1, 4, v1
         v_lshl_add_u32 v1, v5, 6, v1
         v_lshl_add_u32 v1, v6, 9, v1
         s_lshl_b32 s28, s3, 12
         s_mov_b32 s10, 0x80000
         s_mov_b32 s11, 0x20000''')
    if prof:
        for k in range(16): a(f's_mov_b32 s{80+k}, 0')
        a('s_memrealtime s[96:97]')
    a('''s_waitcnt lgkmcnt(0)
         s_add_u32 s8, s34, s7
         s_addc_u32 s9, s35, 0
         s_barrier''')
    if prof: a('s_mov_b32 s80, s96')
    a('''s_cmp_ge_u32 s3, 4
         s_cbranch_scc1 L_helper''')

    RB = 36
    st = dict(issued=0, done=-1)
    def slot(i): return RB + 4 * (i % R)
    def vwait(n):
        a(f's_waitcnt vmcnt({n})'); st['done'] = max(st['done'], st['issued'] - 1 - n)
    def issue():
        i = st['issued']
        assert i < 256
        d = D if i < 128 else DV
        if i >= d and i < 256 - UNTH and st['done'] < i - d: vwait(d - 1)
        G, jh = (i >> 1) & 1, i & 1
        r = slot(i)
        if i < 128:
            a(f'buffer_load_dwordx4 v[{r}:{r+3}], v1, s[8:11], s28 offen offset:{G*2048+jh*256} nt')
            if i % 4 == 3 and i < 127: a('s_add_u32 s28, s28, 0x4000')
        else:
            a(f'buffer_load_dwordx4 v[{r}:{r+3}], v2, s[12:15], s29 offen offset:{G*2048+jh*256} nt')
            if i % 4 == 3 and i < 255: a('s_add_u32 s29, s29, 0x4000')
        st['issued'] += 1
        if i == TRIG:
            a('s_cmp_lg_u32 s3, 0\ns_cbranch_scc1 L_notrig')
            ldsflag(F_TRIG)
            a('L_notrig:')
    def ensure(i):
        if st['done'] < i: vwait(st['issued'] - 1 - i)
    for i in range(min(D, R)): issue()
    a(f'''s_add_u32 s12, s36, s7
          s_addc_u32 s13, s37, 0
          s_mov_b32 s14, 0x80000
          s_mov_b32 s15, 0x20000
          s_lshl_b32 s29, s3, 12
          v_and_b32 v2, 15, v0
          v_lshlrev_b32 v2, 4, v2
          v_lshl_add_u32 v2, v5, 9, v2
          s_lshl_b32 s7, s3, 10
          s_add_u32 s7, s7, {L_SC}
          v_and_b32 v3, 1, v5
          v_mul_u32_u24 v3, {HS}, v3
          v_lshl_add_u32 v3, v6, 4, v3
          v_lshrrev_b32 v4, 5, v0
          v_lshl_add_u32 v3, v4, 2, v3
          v_add_u32 v3, s7, v3
          v_bfe_u32 v4, v0, 3, 1
          v_mul_u32_u24 v4, {HS}, v4
          v_lshl_add_u32 v4, v5, 4, v4
          v_add_u32 v4, s7, v4
          v_bfe_u32 v12, v0, 2, 1
          v_lshlrev_b32 v12, 9, v12
          v_lshl_add_u32 v12, v5, 6, v12
          v_and_b32 v13, 3, v0
          v_lshl_add_u32 v12, v13, 4, v12''')
    srd(16, 58, W_END)
    masks()
    while st['issued'] < R: issue()
    stamp(1)
    ldswait(F_Q, 1, 5, extra=f'ds_read_b128 v[28:31], v12 offset:{L_Q}\nds_read_b128 v[32:35], v12 offset:{L_Q+256}')
    stamp(2)
    a('v_bfe_u32 v5, v0, 3, 1\nv_cmp_eq_u32 vcc, 0, v5')
    for k in range(8): a(f'v_cndmask_b32 v{20+k}, 0, v{28+k}, vcc')
    a('v_cmp_eq_u32 vcc, 1, v5')
    for k in range(8): a(f'v_cndmask_b32 v{28+k}, 0, v{28+k}, vcc')
    pend = []
    def post_group(gm):
        d = 12 + 4 * (gm & 1)
        return [f'v_mov_b32_dpp v5, v{d} quad_perm:[0,0,0,0] {DPPF}',
                f'v_add_f32_dpp v5, v{d+1}, v5 quad_perm:[1,1,1,1] {DPPF}',
                f'v_add_f32_dpp v5, v{d+2}, v5 quad_perm:[2,2,2,2] {DPPF}',
                f'v_add_f32_dpp v5, v{d+3}, v5 quad_perm:[3,3,3,3] {DPPF}',
                f'ds_write_b32 v3, v5 offset:{(gm>>1)*64+(gm&1)*8}']
    def consumeK(i):
        ensure(i)
        gm, q = i >> 2, i & 3
        d = 12 + 4 * (gm & 1); r = slot(i); qa = 20 + 4 * q
        c = '0' if q == 0 else f'v[{d}:{d+3}]'
        a(f'v_mfma_f32_16x16x32_bf16 v[{d}:{d+3}], v[{qa}:{qa+3}], v[{r}:{r+3}], {c}')
        if q == 2 and gm > 0:
            for x in post_group(gm - 1): a(x)
        if i == 127:
            for x in post_group(31): a(x)
            ldsflag(F_SCNT, add=True)
    def consumeV(i):
        ensure(i)
        ii = i - 128; tau, half = ii >> 1, ii & 1
        ab = 20 + 4 * (tau & 1); r = slot(i); acc = 12 + 4 * half
        if half == 0:
            pb = 28 + 4 * ((tau >> 2) & 1)
            if tau & 3 == 0:
                a('s_waitcnt lgkmcnt(0)')
                if tau + 4 < 64:
                    pn = 28 + 4 * (((tau >> 2) + 1) & 1)
                    a(f'ds_read_b128 v[{pn}:{pn+3}], v4 offset:{((tau>>2)+1)*64}')
            abuild(ab, pb + (tau & 3))
        c = '0' if tau == 0 else f'v[{acc}:{acc+3}]'
        a(f'v_mfma_f32_16x16x32_bf16 v[{acc}:{acc+3}], v[{ab}:{ab+3}], v[{r}:{r+3}], {c}')
    def run(consume, c0, c1, dd):
        c = c0
        while c < c1:
            lag = st['issued'] - c
            if lag > dd or st['issued'] >= 256:
                n = min(CATCH, c1 - c, max(1, lag - dd)) if st['issued'] < 256 else c1 - c
                for _ in range(n): consume(c); c += 1
            if st['issued'] < 256 and st['issued'] - c < R: issue()
    run(consumeK, 0, 128, D)
    stamp(3)
    while st['issued'] < 128 + R: issue()
    stamp(4)
    ldswait(F_P, 1, 5, extra='ds_read_b128 v[28:31], v4')
    stamp(5)
    def runV():
        c = 128
        while c < 256:
            lag = st['issued'] - c
            if st['issued'] >= 256 - UNTH and st['issued'] < 256 and lag < R:
                issue(); continue
            if lag > DV or st['issued'] >= 256:
                n = min(CATCH, 256 - c, max(1, lag - DV)) if st['issued'] < 256 else 256 - c
                for _ in range(n): consumeV(c); c += 1
            if st['issued'] < 256 and st['issued'] - c < R: issue()
            if c == 200 and not st.get('pre'):
                st['pre'] = True
                a(f'''s_lshl_b32 s7, s3, 11
                      s_add_u32 s7, s7, {L_RED2}
                      v_lshlrev_b32 v1, 4, v0
                      v_add_u32 v3, s7, v1
                      v_lshrrev_b32 v5, 5, v0
                      v_lshlrev_b32 v5, 10, v5
                      v_and_b32 v6, 15, v0
                      v_lshl_add_u32 v5, v6, 5, v5
                      v_bfe_u32 v6, v0, 4, 1
                      v_lshl_add_u32 v0, v6, 4, v5
                      s_lshl_b32 s28, s6, 11
                      s_add_u32 s28, s28, {W_PART}''')
    runV()
    assert st['pre']
    stamp(6)
    a(f'''v_mov_b32 v6, 1
          ds_write_b128 v3, v[12:15]
          ds_write_b128 v3, v[16:19] offset:1024
          s_mov_b64 exec, 1
          ds_add_rtn_u32 v5, v7, v6 offset:{F_OCNT}
          s_mov_b64 exec, -1''')
    for w in range(4):
        for h in range(2):
            r = 40 + 8 * w + 4 * h
            a(f'ds_read_b128 v[{r}:{r+3}], v1 offset:{L_RED2 + w*2048 + h*1024}')
    a('''s_waitcnt lgkmcnt(0)
         v_readfirstlane_b32 s7, v5
         s_cmp_lg_u32 s7, 3
         s_cbranch_scc1 L_stream_end''')
    for h in range(2):
        b = 40 + 4 * h
        for k in (0, 2):
            a(f'v_pk_add_f32 v[{b+k}:{b+k+1}], v[{b+k}:{b+k+1}], v[{b+8+k}:{b+8+k+1}]')
            a(f'v_pk_add_f32 v[{b+16+k}:{b+16+k+1}], v[{b+16+k}:{b+16+k+1}], v[{b+24+k}:{b+24+k+1}]')
        for k in (0, 2):
            a(f'v_pk_add_f32 v[{b+k}:{b+k+1}], v[{b+k}:{b+k+1}], v[{b+16+k}:{b+16+k+1}]')
        a(f'buffer_store_dwordx4 v[{b}:{b+3}], v0, s[16:19], s28 offen offset:{h*512} sc1')
    stamp(7)
    a('L_stream_end:')
    finish()

    a('.p2align 6\nL_helper:')
    a('s_load_dword s31, s[58:59], 0')
    srd(16, 58, W_END)
    a(f'''s_sub_u32 s60, s3, 4
          s_mul_i32 s64, s60, 112
          v_lshrrev_b32 v1, 3, v0
          v_and_b32 v2, 7, v0
          v_mul_u32_u24 v13, 14, v1
          v_add_u32 v13, s64, v13
          v_lshl_add_u32 v12, v2, 1, v13
          v_cmp_eq_u32 vcc, 7, v2
          v_lshlrev_b32 v14, 1, v12
          v_lshlrev_b32 v15, 2, v12
          v_mov_b32 v3, {BIG}
          v_cndmask_b32 v14, v14, v3, vcc
          v_cndmask_b32 v15, v15, v3, vcc
          s_lshr_b32 s7, s2, 3
          s_lshl_b32 s7, s7, 2
          s_and_b32 s62, s2, 3
          s_add_u32 s62, s62, s7
          s_bitcmp1_b32 s2, 2
          s_cselect_b32 s62, 127, s62
          s_cmp_ge_u32 s62, 106
          s_cbranch_scc1 L_noP
          s_cmp_lt_u32 s62, 14
          s_cbranch_scc1 L_P1
          s_cmp_lt_u32 s62, 78
          s_cbranch_scc1 L_P2
          s_sub_u32 s62, s62, 64''')
    def wtile(base, srdn, stride, n, voff, sreg):
        for m in range(n):
            a(f'buffer_load_dwordx4 v[{base+4*m}:{base+4*m+3}], v{voff}, s[{srdn}:{srdn+3}], s{sreg} offen {wpol}')
            if m < n - 1: a(f's_add_u32 s{sreg}, s{sreg}, {stride}')
    def common_addrs():
        a(f'''s_lshl_b32 s7, s60, 9
              s_add_u32 s7, s7, {L_BC}
              v_lshl_add_u32 v16, v0, 3, s7
              v_lshl_add_u32 v17, v1, 6, s7
              s_lshl_b32 s7, s60, 10
              s_add_u32 s7, s7, {L_RED}
              v_lshl_add_u32 v18, v0, 4, s7
              v_bfe_u32 v5, v0, 2, 3
              v_bfe_u32 v6, v0, 1, 1
              v_lshl_add_u32 v5, v6, 4, v5
              v_and_b32 v6, 1, v0
              v_lshlrev_b32 v6, 3, v6
              v_lshl_add_u32 v19, v5, 4, v6
              v_lshlrev_b32 v4, 3, v0
              v_cmp_lt_u32 vcc, 31, v0
              v_cndmask_b32 v4, v4, v3, vcc''')
        masks()
    def mktag():
        a('s_waitcnt lgkmcnt(0)\ns_mul_i32 s31, s31, 1664525\ns_add_u32 s31, s31, 1013904223')
    a('L_P1:')
    srd(8, 52, 448 * 5376)
    srd(12, 50, 896)
    a('''buffer_load_dword v52, v14, s[12:15], 0 offen
         v_mul_u32_u24 v5, 5376, v13
         v_lshl_add_u32 v5, v2, 4, v5
         s_lshl_b32 s28, s62, 7''')
    wtile(64, 8, 5376, 14, 5, 28)
    a(f's_lshl_b32 s63, s62, 8\ns_add_u32 s63, s63, {W_MOD}')
    common_addrs()
    mktag()
    a('s_waitcnt vmcnt(14)')
    unpack(54, 55, 52)
    for r in (54, 55): a(f'v_mul_f32 v{r+2}, {NLOG2E}, v{r}')
    for r in (54, 55): a(f'v_exp_f32 v{r+2}, v{r+2}')
    for r in (54, 55): a(f'v_add_f32 v{r+2}, 1.0, v{r+2}')
    for r in (54, 55): a(f'v_rcp_f32 v{r+2}, v{r+2}')
    for r in (54, 55): a(f'v_mul_f32 v{r}, v{r}, v{r+2}')
    a('s_branch L_Pgemv')

    a('L_P2:\ns_sub_u32 s62, s62, 14')
    srd(8, 38, 448 * 8192)
    srd(12, 32, 896)
    a('''v_lshlrev_b32 v5, 4, v0
         buffer_load_dwordx4 v[20:23], v5, s[12:15], 0 offen
         buffer_load_dword v52, v14, s[12:15], 0 offen
         v_lshlrev_b32 v5, 13, v13
         v_lshl_add_u32 v5, v2, 4, v5
         s_lshl_b32 s28, s62, 7''')
    wtile(64, 8, 8192, 14, 5, 28)
    a(f's_lshl_b32 s63, s62, 8\ns_add_u32 s63, s63, {W_Q}')
    common_addrs()
    mktag()
    a('s_waitcnt vmcnt(14)')
    for k in range(4): unpack(24 + 2 * k, 25 + 2 * k, 20 + k)
    a('v_add_f32 v32, v24, v25')
    for k in range(2, 8): a(f'v_add_f32 v32, v32, v{24+k}')
    allred('v_add_f32', [32], [33], 64)
    a(f'v_mul_f32 v32, {INV448}, v32')
    for k in range(8): a(f'v_sub_f32 v{24+k}, v{24+k}, v32')
    a('v_mul_f32 v34, v24, v24')
    for k in range(1, 8): a(f'v_fmac_f32 v34, v{24+k}, v{24+k}')
    a('v_cmp_gt_u32 vcc, 56, v0\nv_cndmask_b32 v34, 0, v34, vcc')
    allred('v_add_f32', [34], [33], 64)
    a(f'v_mul_f32 v34, {INV448}, v34')
    def ln_tail(mu, var, t, x0, x1):
        rnd2(mu, var, t)
        a(f'v_add_f32 v{var}, {EPS}, v{var}')
        a(f'v_sub_f32 v{x0}, v{x0}, v{mu}\nv_sub_f32 v{x1}, v{x1}, v{mu}')
        rnd1(var)
        a(f'v_sqrt_f32 v{var}, v{var}')
        rnd2(x0, x1, t)
        rnd1(var)
        a(f'v_rcp_f32 v{var}, v{var}')
        a(f'v_mul_f32 v{x0}, v{x0}, v{var}\nv_mul_f32 v{x1}, v{x1}, v{var}')
        rnd2(x0, x1, t)
    unpack(54, 55, 52)
    ln_tail(32, 34, 33, 54, 55)
    a(f's_mov_b32 s28, {W_MOD}\nv_cmp_ne_u32 s[70:71], 7, v2')
    L = poll_begin()
    a('''buffer_load_dwordx2 v[56:57], v15, s[16:19], s28 offen sc1
         buffer_load_dwordx2 v[58:59], v15, s[16:19], s28 offen offset:1792 sc1
         s_waitcnt vmcnt(0)
         v_cmp_ne_u32 vcc, s31, v57
         v_cmp_ne_u32 s[72:73], s31, v59
         s_or_b64 vcc, vcc, s[72:73]
         s_and_b64 vcc, vcc, s[70:71]''')
    poll_end(L, sleep=0, mask=False)
    stamp(2)
    unpack(60, 61, 58)
    a('v_add_f32 v60, 1.0, v60\nv_add_f32 v61, 1.0, v61')
    rnd2(60, 61, 33)
    a('v_mul_f32 v54, v54, v60\nv_mul_f32 v55, v55, v61')
    rnd2(54, 55, 33)
    unpack(60, 61, 56)
    a('v_add_f32 v54, v54, v60\nv_add_f32 v55, v55, v61')

    a('L_Pgemv:')
    def bcast14(x0, x1):
        a(f'''v_cvt_pk_bf16_f32 v{x0}, v{x0}, v{x0}
              v_cvt_pk_bf16_f32 v{x1}, v{x1}, v{x1}
              ds_write_b64 v16, v[{x0}:{x1}]''')
        for k in range(4): a(f'ds_read_b128 v[{20+4*k}:{23+4*k}], v17 offset:{16*k}')
    bcast14(54, 55)
    a('s_waitcnt lgkmcnt(0)')
    for m in range(14):
        ab = 36 + 4 * (m & 1)
        abuild(ab, 20 + m)
        a(f's_waitcnt vmcnt({13-m})')
        c = '0' if m == 0 else 'v[44:47]'
        a(f'v_mfma_f32_16x16x32_bf16 v[44:47], v[{ab}:{ab+3}], v[{64+4*m}:{67+4*m}], {c}')
    def red8(cnt, skip):
        a(f'''v_mov_b32 v6, 1
              ds_write_b128 v18, v[44:47]
              s_mov_b64 exec, 1
              ds_add_rtn_u32 v5, v7, v6 offset:{cnt}
              s_mov_b64 exec, -1''')
        for w in range(4):
            for x in range(2):
                r = 20 + 4 * w + 2 * x
                a(f'ds_read_b64 v[{r}:{r+1}], v19 offset:{L_RED + w*1024 + x*640}')
        a(f'''s_waitcnt lgkmcnt(0)
              v_readfirstlane_b32 s7, v5
              s_cmp_lg_u32 s7, 3
              s_cbranch_scc1 {skip}''')
        for stp in (2, 4, 8):
            for r in range(20, 36, 2 * stp):
                a(f'v_pk_add_f32 v[{r}:{r+1}], v[{r}:{r+1}], v[{r+stp}:{r+stp+1}]')
    red8(F_PCNT, 'L_Pdone')
    a('''v_cvt_pk_bf16_f32 v20, v20, v21
         v_mov_b32 v21, s31
         buffer_store_dwordx2 v[20:21], v4, s[16:19], s63 offen sc1''')
    stamp(3)
    a('s_branch L_Pdone')

    a('L_noP:')
    if codepf:
        a(f'''s_cmp_lt_u32 s2, 216
              s_cbranch_scc1 L_nopf
              s_getpc_b64 s[64:65]
              L_pc:
              s_sub_u32 s64, s64, L_pc-{NAME}_kernel
              s_subb_u32 s65, s65, 0
              s_mul_i32 s7, s60, CODE_Q
              v_lshl_add_u32 v5, v0, 4, s7
              .rept CODE_Q/1024
              global_load_dwordx4 v[20:23], v5, s[64:65]
              v_add_u32 v5, 0x400, v5
              .endr
              L_nopf:''')
    common_addrs()
    mktag()
    a('L_Pdone:')
    a('''s_mov_b32 s61, 1
         s_cmp_lt_u32 s5, 14
         s_cbranch_scc1 L_roled
         s_sub_u32 s62, s5, 14
         s_lshl_b32 s62, s62, 3
         s_add_u32 s62, s62, s4
         s_cmp_lt_u32 s62, 28
         s_cselect_b32 s61, 2, 0
         L_roled:
         s_cmp_lg_u32 s60, 0
         s_cbranch_scc1 L_tail''')
    a(f'''s_lshl_b32 s28, s4, 11
          s_add_u32 s28, s28, {W_Q}
          v_lshlrev_b32 v5, 4, v0
          v_lshlrev_b32 v6, 3, v0
          v_mov_b32 v40, -1
          v_mov_b32 v41, -1
          v_mov_b32 v42, -1
          v_mov_b32 v43, -1
          s_lshl_b32 s29, s6, 11
          s_add_u32 s29, s29, {W_PART}
          buffer_store_dwordx4 v[40:43], v5, s[16:19], s29 offen sc1
          buffer_store_dwordx4 v[40:43], v5, s[16:19], s29 offen offset:1024 sc1
          s_cmp_lg_u32 s61, 1
          s_cbranch_scc1 L_rs1
          s_and_b32 s7, s5, 1
          s_lshl_b32 s29, s4, 1
          s_add_u32 s29, s29, s7
          s_mul_i32 s29, s29, 1792
          s_lshr_b32 s7, s5, 1
          s_lshl_b32 s7, s7, 8
          s_add_u32 s29, s29, s7
          s_add_u32 s29, s29, {W_Y}
          buffer_store_dwordx2 v[40:41], v4, s[16:19], s29 offen sc1
          L_rs1:
          s_cmp_lg_u32 s61, 2
          s_cbranch_scc1 L_rs2
          s_mul_i32 s29, s62, 3584
          s_add_u32 s29, s29, {W_Z}
          buffer_store_dwordx4 v[40:43], v5, s[16:19], s29 offen sc1
          buffer_store_dwordx4 v[40:43], v5, s[16:19], s29 offen offset:1024 sc1
          buffer_store_dwordx4 v[40:43], v5, s[16:19], s29 offen offset:2048 sc1
          buffer_store_dwordx2 v[40:41], v6, s[16:19], s29 offen offset:3072 sc1
          L_rs2:''')
    a('''s_lshl_b32 s7, s6, 19
         s_add_u32 s12, s36, s7
         s_addc_u32 s13, s37, 0
         s_mov_b32 s14, 0x80000
         s_mov_b32 s15, 0x20000
         buffer_load_dword v44, v7, s[12:15], 0 offen nt''')
    L = poll_begin()
    a('''buffer_load_dwordx4 v[20:23], v5, s[16:19], s28 offen sc1
         buffer_load_dwordx4 v[24:27], v5, s[16:19], s28 offen offset:1024 sc1
         s_waitcnt vmcnt(0)
         v_cmp_ne_u32 vcc, s31, v21
         v_cmp_ne_u32 s[72:73], s31, v23
         s_or_b64 vcc, vcc, s[72:73]
         v_cmp_ne_u32 s[72:73], s31, v25
         s_or_b64 vcc, vcc, s[72:73]
         v_cmp_ne_u32 s[72:73], s31, v27
         s_or_b64 vcc, vcc, s[72:73]''')
    poll_end(L, sleep=2, mask=False)
    a(f'''v_add_u32 v6, {L_Q}, v6
          ds_write2_b32 v6, v20, v22 offset0:0 offset1:1
          ds_write2_b32 v6, v24, v26 offset0:128 offset1:129''')
    ldsflag(F_Q)
    stamp(4)
    a(f'''v_lshrrev_b32 v5, 5, v0
          v_mul_u32_u24 v5, {HS}, v5
          v_and_b32 v6, 31, v0
          v_lshlrev_b32 v61, 4, v6
          v_add_u32 v60, v5, v61
          v_mov_b32 v62, {CEXP}
          s_lshl_b32 s28, s6, 4
          s_add_u32 s28, s28, {W_STATS}
          s_lshl_b32 s29, s4, 9
          s_add_u32 s29, s29, {W_STATS}''')
    ldswait(F_SCNT, 4, 5, sleep=4)
    stamp(5)
    for n in range(8): a(f'ds_read_b128 v[{64+4*n}:{67+4*n}], v60 offset:{L_SC + 512*n}')
    for n in range(8):
        a(f's_waitcnt lgkmcnt({7-n})')
        rnd2(64 + 4 * n, 65 + 4 * n, 5)
        rnd2(66 + 4 * n, 67 + 4 * n, 6)
    a('v_max_f32 v20, v64, v65')
    for k in range(66, 96, 2): a(f'v_max3_f32 v20, v20, v{k}, v{k+1}')
    allred('v_max_f32', [20], [21], 32)
    for k in range(64, 96): a(f'v_sub_f32 v{k}, v{k}, v20')
    for k in range(64, 96): a(f'v_mul_f32 v{k}, v62, v{k}')
    for k in range(64, 96): a(f'v_exp_f32 v{k}, v{k}')
    a('v_add_f32 v22, v64, v65\nv_add_f32 v23, v66, v67')
    for k in range(68, 96, 2): a(f'v_add_f32 v22, v22, v{k}\nv_add_f32 v23, v23, v{k+1}')
    a('v_add_f32 v22, v22, v23')
    allred('v_add_f32', [22], [21], 32)
    a('''v_readlane_b32 s64, v20, 0
         v_readlane_b32 s65, v20, 32
         v_readlane_b32 s66, v22, 32
         s_pack_hh_b32_b16 s64, s64, s65
         v_mov_b32 v24, s64
         v_mov_b32 v25, v22
         v_mov_b32 v26, s66
         v_mov_b32 v27, s31
         s_mov_b64 exec, 1
         buffer_store_dwordx4 v[24:27], v7, s[16:19], s28 offen sc1
         s_mov_b64 exec, -1''')
    stamp(6)
    L = poll_begin()
    a('''buffer_load_dwordx4 v[28:31], v61, s[16:19], s29 offen sc1
         s_waitcnt vmcnt(0)
         v_cmp_ne_u32 vcc, s31, v31''')
    poll_end(L, sleep=2, mask=False)
    stamp(7)
    unpack(32, 33, 28)
    a('''v_cmp_lt_u32 vcc, 31, v0
         v_cndmask_b32 v32, v32, v33, vcc
         v_cndmask_b32 v29, v29, v30, vcc
         v_mov_b32 v34, v32''')
    allred('v_max_f32', [34], [21], 32)
    a('''v_sub_f32 v32, v32, v34
         v_sub_f32 v20, v20, v34
         v_mul_f32 v32, v62, v32
         v_mul_f32 v20, v62, v20
         v_exp_f32 v32, v32
         v_exp_f32 v20, v20
         v_mul_f32 v29, v29, v32''')
    allred('v_add_f32', [29], [21], 32)
    a('v_rcp_f32 v29, v29\nv_mul_f32 v20, v20, v29')
    for n in range(8):
        for k in range(64 + 4 * n, 68 + 4 * n): a(f'v_mul_f32 v{k}, v20, v{k}')
        for k in range(64 + 4 * n, 68 + 4 * n): a(f'v_cvt_pk_bf16_f32 v{k}, v{k}, v{k}')
        a(f'ds_write_b128 v60, v[{64+4*n}:{67+4*n}] offset:{L_SC + 512*n}')
    ldsflag(F_P)
    stamp(8)

    a('''L_tail:
         s_cmp_eq_u32 s61, 0
         s_cbranch_scc1 L_helper_end
         s_cmp_eq_u32 s61, 2
         s_cbranch_scc1 L_T2''')
    srd(8, 40, 4096 * 896)
    a(f'''s_and_b32 s64, s5, 1
          s_lshr_b32 s65, s5, 1
          s_lshl_b32 s66, s4, 1
          s_add_u32 s66, s66, s64
          s_lshl_b32 s7, s66, 8
          s_lshl_b32 s67, s60, 6
          s_add_u32 s7, s7, s67
          s_mul_i32 s28, s7, 896
          s_lshl_b32 s7, s65, 7
          s_add_u32 s28, s28, s7
          s_add_u32 s29, s28, {32*896}
          v_mul_u32_u24 v12, 3584, v1
          v_lshl_add_u32 v12, v2, 4, v12
          s_mul_i32 s63, s66, 1792
          s_lshl_b32 s7, s65, 8
          s_add_u32 s63, s63, s7
          s_add_u32 s63, s63, {W_Y}
          s_lshl_b32 s72, s4, 16
          s_lshl_b32 s7, s64, 10
          s_add_u32 s72, s72, s7
          s_lshl_b32 s7, s60, 8
          s_add_u32 s72, s72, s7
          s_add_u32 s72, s72, {W_PART}
          s_add_u32 s73, s72, 0x4000
          s_add_u32 s74, s72, 0x8000
          s_add_u32 s75, s72, 0xc000
          v_lshlrev_b32 v13, 11, v2
          v_lshl_add_u32 v13, v1, 4, v13''')
    ldswait(F_TRIG, 1, 5, sleep=4)
    stamp(9)
    for u in range(2):
        for m in range(4):
            r = 64 + 16 * u + 4 * m
            a(f'buffer_load_dwordx4 v[{r}:{r+3}], v12, s[8:11], s{28+u} offen offset:{896*m} {wpol}')
    L = poll_begin()
    for u in range(2):
        for n in range(4):
            r = 96 + 16 * u + 4 * n
            a(f'buffer_load_dwordx4 v[{r}:{r+3}], v13, s[16:19], s{72+n} offen offset:{128*u} sc1')
    a('s_waitcnt vmcnt(0)\ns_mov_b64 exec, -1')
    for u in range(2):
        b = 96 + 16 * u; o = 20 + 4 * u; t = 28 + 4 * u
        for k in (0, 2):
            a(f'v_pk_add_f32 v[{o+k}:{o+k+1}], v[{b+k}:{b+k+1}], v[{b+4+k}:{b+4+k+1}]')
            a(f'v_pk_add_f32 v[{t+k}:{t+k+1}], v[{b+8+k}:{b+8+k+1}], v[{b+12+k}:{b+12+k+1}]')
    for k in range(0, 8, 2):
        a(f'v_pk_add_f32 v[{20+k}:{21+k}], v[{20+k}:{21+k}], v[{28+k}:{29+k}]')
    a('''v_pk_add_f32 v[28:29], v[20:21], v[22:23]
         v_pk_add_f32 v[30:31], v[24:25], v[26:27]
         v_pk_add_f32 v[28:29], v[28:29], v[30:31]
         v_cmp_u_f32 vcc, v28, v29''')
    poll_end(L)
    stamp(10)
    allred('v_add_f32', list(range(20, 28)), [], 8)
    for k in range(20, 28): a(f'v_cvt_pk_bf16_f32 v{k}, v{k}, v{k}')
    for m in range(8):
        ab = 36 + 4 * (m & 1)
        abuild(ab, 20 + m)
        c = '0' if m == 0 else 'v[44:47]'
        a(f'v_mfma_f32_16x16x32_bf16 v[44:47], v[{ab}:{ab+3}], v[{64+4*m}:{67+4*m}], {c}')
    red8(F_TCNT, 'L_helper_end')
    a('buffer_store_dwordx2 v[20:21], v4, s[16:19], s63 offen sc1')
    stamp(11)
    a('L_helper_end:')
    finish()

    a('.p2align 6\nL_T2:')
    ldswait(F_P, 1, 5, sleep=8)
    a(f's_mov_b32 s28, {W_STATS}\nv_lshlrev_b32 v5, 4, v0')
    L = poll_begin()
    for n in range(4): a(f'buffer_load_dword v{20+n}, v5, s[16:19], s28 offen offset:{1024*n+12} sc1')
    a('s_waitcnt vmcnt(0)\nv_cmp_ne_u32 vcc, s31, v20')
    for n in range(1, 4): a(f'v_cmp_ne_u32 s[72:73], s31, v{20+n}\ns_or_b64 vcc, vcc, s[72:73]')
    poll_end(L, sleep=8, mask=False)
    srd(12, 32, 896)
    a(f'''buffer_load_dword v52, v14, s[12:15], 0 offen
          s_mov_b32 s28, {W_MOD + 4*896}
          s_lshl_b32 s7, s62, 4
          v_and_b32 v61, 3, v0
          v_lshlrev_b32 v61, 2, v61
          v_lshrrev_b32 v5, 4, v0
          v_add3_u32 v61, v61, v5, s7
          v_lshrrev_b32 v62, 1, v61
          v_lshlrev_b32 v62, 3, v62
          s_mov_b32 s29, {W_MOD + 4*2240}
          v_cmp_ne_u32 s[70:71], 7, v2''')
    L = poll_begin()
    a('''buffer_load_dwordx2 v[20:21], v15, s[16:19], s28 offen sc1
         buffer_load_dwordx2 v[22:23], v15, s[16:19], s28 offen offset:1792 sc1
         buffer_load_dwordx2 v[24:25], v15, s[16:19], s28 offen offset:3584 sc1
         buffer_load_dwordx2 v[26:27], v62, s[16:19], s29 offen sc1
         s_waitcnt vmcnt(0)
         v_cmp_ne_u32 vcc, s31, v21
         v_cmp_ne_u32 s[72:73], s31, v23
         s_or_b64 vcc, vcc, s[72:73]
         v_cmp_ne_u32 s[72:73], s31, v25
         s_or_b64 vcc, vcc, s[72:73]
         s_and_b64 vcc, vcc, s[70:71]
         v_cmp_ne_u32 s[72:73], s31, v27
         s_or_b64 vcc, vcc, s[72:73]''')
    poll_end(L, sleep=8, mask=False)
    a('v_mov_b32 v28, v52')
    unpack(52, 53, 28)
    unpack(54, 55, 20)
    unpack(58, 59, 22)
    unpack(56, 57, 24)
    a('v_add_f32 v56, 1.0, v56\nv_add_f32 v57, 1.0, v57')
    rnd2(56, 57, 28)
    unpack(60, 28, 26)
    a(f'''v_and_b32 v5, 1, v61
          v_cmp_eq_u32 vcc, 1, v5
          v_cndmask_b32 v60, v60, v28, vcc
          v_lshlrev_b32 v240, 2, v12
          v_add_u32 v240, {L_X1}, v240
          v_mov_b32 v5, {L_X1 + 1792}
          v_cndmask_b32 v240, v5, v240, s[70:71]
          v_lshlrev_b32 v241, 2, v61
          v_lshlrev_b32 v242, 1, v61
          v_bfe_u32 v5, v0, 2, 2
          v_cmp_ne_u32 vcc, 0, v5
          v_cndmask_b32 v242, v242, v3, vcc
          s_lshl_b32 s7, s60, 3
          s_add_u32 s7, s7, {L_ST2}
          v_mov_b32 v243, s7
          s_lshl_b32 s7, s60, 11
          s_add_u32 s7, s7, {L_RED}
          v_lshl_add_u32 v244, v0, 4, s7
          v_bfe_u32 v5, v0, 2, 1
          v_lshl_add_u32 v5, v5, 4, v1
          v_and_b32 v6, 3, v0
          v_lshlrev_b32 v6, 2, v6
          v_lshl_add_u32 v245, v5, 4, v6
          v_add_u32 v245, {L_RED}, v245
          v_add_u32 v246, 640, v245
          v_lshrrev_b32 v5, 5, v0
          v_bfe_u32 v6, v0, 3, 1
          v_cmp_ne_u32 vcc, v5, v6
          v_mul_u32_u24 v247, 1792, v5
          v_lshl_add_u32 v247, v2, 5, v247
          v_bfe_u32 v6, v0, 4, 1
          v_lshl_add_u32 v247, v6, 4, v247
          v_cndmask_b32 v247, v247, v3, vcc
          s_mul_i32 s63, s62, 3584
          s_lshl_b32 s7, s60, 9
          s_add_u32 s63, s63, s7
          s_add_u32 s63, s63, {W_Z}
          v_mov_b32 v248, v247
          v_lshrrev_b32 v5, 2, v0
          v_mul_u32_u24 v249, 1792, v5
          v_and_b32 v6, 3, v0
          v_lshl_add_u32 v249, v6, 4, v249
          v_mul_u32_u24 v250, 3584, v13
          v_lshl_add_u32 v250, v2, 4, v250
          v_mul_u32_u24 v251, 7168, v1
          v_lshl_add_u32 v251, v2, 4, v251
          v_add_u32 v252, 128, v251
          s_cmp_lg_u32 s60, 3
          s_cbranch_scc1 L_T2a
          v_mov_b32 v248, v3
          v_mov_b32 v252, v3
          L_T2a:''')
    srd(8, 44, 448 * 3584)
    srd(12, 46, 448 * 3584)
    srd(20, 48, 1792 * 896)
    srd(24, 54, 896)
    for n in range(8): a(f's_mov_b32 s{72+n}, {W_Y + 3584*n}')
    a(f'''s_lshl_b32 s28, s62, 7
          s_mul_i32 s29, s62, {64*896}
          s_lshl_b32 s7, s60, 8
          s_add_u32 s29, s29, s7
          s_lshl_b32 s64, s62, 6
          s_add_u32 s64, s64, {W_Z}
          s_add_u32 s65, s64, {16*1792}
          s_add_u32 s66, s64, {32*1792}
          s_add_u32 s67, s64, {48*1792}''')
    ldswait(F_TRIG, 1, 5, sleep=4)
    stamp(9)
    for m in range(14):
        a(f'buffer_load_dwordx4 v[{64+4*m}:{67+4*m}], v250, s[8:11], s28 offen {wpol}')
        a(f'buffer_load_dwordx4 v[{120+4*m}:{123+4*m}], v250, s[12:15], s28 offen {wpol}')
        if m < 13: a('s_add_u32 s28, s28, 3584')
    for m in range(8):
        a(f'buffer_load_dwordx4 v[{176+8*m}:{179+8*m}], v251, s[20:23], s29 offen {wpol}')
        a(f'buffer_load_dwordx4 v[{180+8*m}:{183+8*m}], v252, s[20:23], s29 offen {wpol}')
        if m < 7: a('s_add_u32 s29, s29, 896')
    a('s_waitcnt vmcnt(0)')
    stamp(10)
    L = poll_begin()
    for n in range(16):
        a(f'buffer_load_dwordx2 v[{20+2*n}:{21+2*n}], v15, s[16:19], s{72+(n>>1)} offen offset:{1792*(n&1)} sc1')
    a('s_waitcnt vmcnt(0)')
    for stp in (2, 4, 8, 16):
        for r in range(20, 52, 2 * stp):
            a(f'v_pk_add_f32 v[{r}:{r+1}], v[{r}:{r+1}], v[{r+stp}:{r+stp+1}]')
    a('v_cmp_u_f32 vcc, v20, v21')
    poll_end(L, mask=False)
    stamp(11)
    rnd2(20, 21, 22)
    a('v_mul_f32 v20, v54, v20\nv_mul_f32 v21, v55, v21')
    rnd2(20, 21, 22)
    a('v_add_f32 v52, v52, v20\nv_add_f32 v53, v53, v21')
    rnd2(52, 53, 22)
    a('''v_add_f32 v24, v52, v53
         v_mul_f32 v25, v52, v52
         v_fmac_f32 v25, v53, v53
         ds_write_b64 v240, v[52:53]''')
    allred('v_add_f32', [24, 25], [26, 27], 64)
    a(f'''s_mov_b64 exec, 1
          ds_write_b64 v243, v[24:25]
          s_mov_b64 exec, -1
          s_waitcnt lgkmcnt(0)
          s_barrier
          ds_read_b128 v[24:27], v7 offset:{L_ST2}
          ds_read_b128 v[28:31], v7 offset:{L_ST2+16}
          ds_read_b32 v63, v241 offset:{L_X1}
          s_waitcnt lgkmcnt(1)
          v_pk_add_f32 v[24:25], v[24:25], v[26:27]
          v_pk_add_f32 v[28:29], v[28:29], v[30:31]
          v_pk_add_f32 v[24:25], v[24:25], v[28:29]
          v_mul_f32 v24, {INV448}, v24
          v_mul_f32 v25, {INV448}, v25
          v_fma_f32 v25, -v24, v24, v25
          v_max_f32 v25, 0, v25''')
    ln_tail(24, 25, 22, 52, 53)
    a('v_mul_f32 v52, v52, v56\nv_mul_f32 v53, v53, v57')
    rnd2(52, 53, 22)
    a('v_add_f32 v52, v52, v58\nv_add_f32 v53, v53, v59')
    bcast14(52, 53)
    for m in range(14):
        if m % 4 == 0: a(f's_waitcnt lgkmcnt({3 - m//4})')
        ab = 36 + 4 * (m & 1)
        abuild(ab, 20 + m)
        for k, (acc, wb) in enumerate(((44, 64), (48, 120))):
            c = '0' if m == 0 else f'v[{acc}:{acc+3}]'
            a(f'v_mfma_f32_16x16x32_bf16 v[{acc}:{acc+3}], v[{ab}:{ab+3}], v[{wb+4*m}:{wb+4*m+3}], {c}')
    a('''ds_write_b128 v244, v[44:47]
         ds_write_b128 v244, v[48:51] offset:1024
         s_waitcnt lgkmcnt(0)
         s_barrier''')
    for w in range(4):
        for x in range(2):
            r = 20 + 4 * w + 2 * x
            a(f'ds_read2st64_b32 v[{r}:{r+1}], v{245+x} offset0:{8*w} offset1:{8*w+4}')
    a('s_waitcnt lgkmcnt(0)')
    for stp in (2, 4, 8):
        for r in range(20, 36, 2 * stp):
            a(f'v_pk_add_f32 v[{r}:{r+1}], v[{r}:{r+1}], v[{r+stp}:{r+stp+1}]')
    rnd2(20, 21, 22)
    a(f'''v_mul_f32 v22, {NLOG2E}, v20
          v_exp_f32 v22, v22
          v_add_f32 v22, 1.0, v22
          v_rcp_f32 v22, v22
          v_mul_f32 v20, v20, v22''')
    rnd1(20)
    a('v_mul_f32 v20, v20, v21\nv_cvt_pk_bf16_f32 v20, v20, v20')
    for m in range(8): a(f'ds_swizzle_b32 v{24+m}, v20 offset:swizzle(BROADCAST,8,{m})')
    for m in range(8):
        a(f's_waitcnt lgkmcnt({7-m})')
        ab = 36 + 4 * (m & 1)
        abuild(ab, 24 + m)
        for k, acc in enumerate((44, 48)):
            c = '0' if m == 0 else f'v[{acc}:{acc+3}]'
            wb = 176 + 8 * m + 4 * k
            a(f'v_mfma_f32_16x16x32_bf16 v[{acc}:{acc+3}], v[{ab}:{ab+3}], v[{wb}:{wb+3}], {c}')
    a('''buffer_store_dwordx4 v[44:47], v247, s[16:19], s63 offen sc1
         buffer_store_dwordx4 v[48:51], v248, s[16:19], s63 offen offset:256 sc1''')
    stamp(12)
    a('s_cmp_lg_u32 s60, 3\ns_cbranch_scc1 L_T2_end')
    L = poll_begin()
    for n in range(4): a(f'buffer_load_dwordx4 v[{64+4*n}:{67+4*n}], v249, s[16:19], s{64+n} offen sc1')
    a('s_waitcnt vmcnt(0)\ns_mov_b64 exec, -1')
    for k in (0, 2):
        a(f'v_pk_add_f32 v[{20+k}:{21+k}], v[{64+k}:{65+k}], v[{68+k}:{69+k}]')
        a(f'v_pk_add_f32 v[{24+k}:{25+k}], v[{72+k}:{73+k}], v[{76+k}:{77+k}]')
    a('''v_pk_add_f32 v[20:21], v[20:21], v[24:25]
         v_pk_add_f32 v[22:23], v[22:23], v[26:27]
         v_pk_add_f32 v[24:25], v[20:21], v[22:23]
         v_cmp_u_f32 vcc, v24, v25''')
    poll_end(L)
    stamp(13)
    a(f'''v_permlane32_swap_b32 v20, v22
          v_permlane32_swap_b32 v21, v23
          v_add_f32 v20, v20, v22
          v_add_f32 v21, v21, v23
          v_permlane16_swap_b32 v20, v21
          v_add_f32 v20, v20, v21
          v_add_f32_dpp v20, v20, v20 row_ror:4 {DPPF}
          v_add_f32_dpp v20, v20, v20 row_ror:8 {DPPF}''')
    rnd1(20)
    a('v_mul_f32 v20, v60, v20')
    rnd1(20)
    a('''v_add_f32 v20, v63, v20
         v_cvt_pk_bf16_f32 v20, v20, v20
         buffer_store_short v20, v242, s[24:27], 0 offen
         s_cmp_lg_u32 s62, 0
         s_cbranch_scc1 L_T2_end
         v_mov_b32 v21, s31
         s_mov_b64 exec, 1
         buffer_store_dword v21, v7, s[16:19], 0 offen sc1''')
    a('L_T2_end:')
    stamp(14)
    finish()
    if prof:
        a('L_prof_end:\ns_mov_b64 exec, -1\ns_getreg_b32 s95, hwreg(HW_REG_XCC_ID)')
        if cal:
            X, wg, wv, k = cal
            a(f's_cmp_lg_u32 s2, {wg}\ns_cbranch_scc1 L_exit\ns_cmp_lg_u32 s3, {wv}\ns_cbranch_scc1 L_exit')
            a(f's_add_u32 s7, s{80+k}, {X*100}')
            a('L_cal:\ns_memrealtime s[96:97]\ns_waitcnt lgkmcnt(0)\ns_sub_u32 s96, s96, s7\ns_cmp_lt_i32 s96, 0\ns_cbranch_scc1 L_cal\ns_branch L_exit')
        for k in range(16): a(f'v_writelane_b32 v1, s{80+k}, {k}')
        a(f'''s_lshl_b32 s7, s2, 3
              s_add_u32 s7, s7, s3
              s_lshl_b32 s7, s7, 6
              s_add_u32 s7, s7, {W_PROF}
              v_mbcnt_lo_u32_b32 v2, -1, 0
              v_lshlrev_b32 v2, 2, v2
              s_mov_b32 s18, 0x400000
              s_mov_b64 exec, 0xffff
              buffer_store_dword v1, v2, s[16:19], s7 offen''')
    a('L_exit:\ns_endpgm\nL_code_end:')
    body = a.text()
    head = open('cdna_kernels/' + NAME + '.s.ref').read().split('; Override launch')[0]
    head += f'; @launch grid=(256,1,1) block=(512,1,1) lds={LDS_BYTES}\n'
    nbytes_est = sum(8 for l in body.split('\n') if l and not l.endswith(':'))
    return head, body

def assemble_text(head, body, code_q):
    return head + f'''.amdgcn_target "amdgcn-amd-amdhsa--gfx950"
.text
.set CODE_Q, {code_q}
.globl {NAME}_kernel
.p2align 8
.type {NAME}_kernel,@function
''' + body + f'''.fill 1024, 4, 0xbf810000
.section .rodata,"a"
.p2align 6
.amdhsa_kernel {NAME}_kernel
  .amdhsa_next_free_vgpr 256
  .amdhsa_next_free_sgpr 102
  .amdhsa_accum_offset 256
  .amdhsa_group_segment_fixed_size 0
  .amdhsa_kernarg_size 112
  .amdhsa_user_sgpr_count 2
  .amdhsa_user_sgpr_kernarg_segment_ptr 1
  .amdhsa_system_sgpr_workgroup_id_x 1
.end_amdhsa_kernel
'''

def code_size(text):
    import subprocess, re, tempfile, os
    d = tempfile.mkdtemp()
    open(d + '/k.s', 'w').write(text)
    r = subprocess.run(['clang', '-x', 'assembler', '-target', 'amdgcn-amd-amdhsa', '-mcpu=gfx950', '-c', d + '/k.s', '-o', d + '/k.o'], capture_output=True, text=True)
    if r.returncode: print(r.stderr[:3000]); raise SystemExit(1)
    o = subprocess.run(['llvm-objdump', '-t', d + '/k.o'], capture_output=True, text=True).stdout
    return int(re.search(r'([0-9a-f]+) .* L_code_end', o).group(1), 16)

def full(**kw):
    head, body = gen(**kw)
    sz = code_size(assemble_text(head, body, 4096))
    q = -(-(sz + 128) // 4096) * 1024
    return assemble_text(head, body, q)

if __name__ == '__main__':
    kw = eval('dict(' + (sys.argv[2] if len(sys.argv) > 2 else '') + ')')
    t = full(**kw)
    open(sys.argv[1], 'w').write(t)
    print('code bytes', code_size(t), 'lines', t.count('\n'))
```

```python
import re

TRANS = ('v_exp_f32', 'v_log_f32', 'v_rcp_f32', 'v_rsq_f32', 'v_sqrt_f32', 'v_sin_f32', 'v_cos_f32')
DPP_RE = re.compile(r'quad_perm|row_shl|row_shr|row_ror|row_mirror|row_half_mirror|row_bcast|row_newbcast|wave_')

def regs_of(tok):
    tok = tok.strip()
    if tok.startswith('-'): tok = tok[1:]
    m = re.fullmatch(r'abs\((.*)\)', tok)
    if m: tok = m.group(1)
    m = re.fullmatch(r'\|(.*)\|', tok)
    if m: tok = m.group(1)
    m = re.fullmatch(r'([vsa])(\d+)', tok)
    if m: return {(m.group(1), int(m.group(2)))}
    m = re.fullmatch(r'([vsa])\[(\d+):(\d+)\]', tok)
    if m: return {(m.group(1), i) for i in range(int(m.group(2)), int(m.group(3)) + 1)}
    if tok in ('vcc', 'vcc_lo', 'vcc_hi'): return {('s', 'vcc')}
    if tok in ('exec', 'exec_lo', 'exec_hi'): return {('s', 'exec')}
    if tok == 'm0': return {('s', 'm0')}
    return set()

def split_ops(s):
    out = []; depth = 0; cur = ''
    for ch in s:
        if ch in '[(': depth += 1
        if ch in '])': depth -= 1
        if ch == ',' and depth == 0: out.append(cur); cur = ''
        else: cur += ch
    if cur.strip(): out.append(cur)
    return [o.strip() for o in out]

class Ins:
    def __init__(self, text):
        self.text = text
        t = text.split(';')[0].strip()
        self.label = None; self.mn = None
        self.w = set(); self.r = set(); self.cls = None; self.srcC = set(); self.srcAB = set()
        self.ws = 1; self.target = None; self.dpp = False; self.wide_data = set()
        if not t or t.startswith('.'):
            self.cls = 'dir'; self.ws = 0; return
        if t.endswith(':'):
            self.label = t[:-1]; self.cls = 'label'; self.ws = 0; return
        p = t.split(None, 1)
        mn = self.mn = p[0]; rest = p[1] if len(p) > 1 else ''
        ops = split_ops(rest)
        if ops:
            last = ops[-1].split()
            ops[-1] = last[0] if last else ''
        R = [regs_of(o) for o in ops]
        U = lambda xs: set().union(*xs) if xs else set()
        if mn == 's_nop':
            self.cls = 'salu'; self.ws = int(ops[0], 0) + 1
        elif mn.startswith('s_cbranch') or mn == 's_branch':
            self.cls = 'branch'; self.target = ops[0]
        elif mn.startswith('s_'):
            self.cls = 'salu'
            if mn.startswith(('s_cmp', 's_bitcmp', 's_waitcnt', 's_barrier', 's_sleep', 's_setprio', 's_endpgm')):
                self.r = U(R)
            else:
                self.w = R[0] if R else set(); self.r = U(R[1:])
                if 'saveexec' in mn: self.w = self.w | {('s', 'exec')}
        elif mn.startswith('v_smfmac'):
            self.cls = 'mfma'; self.w = R[0]; self.srcAB = R[1] | R[2] | R[3]; self.srcC = R[0]; self.r = self.srcAB | self.srcC
            self.passes = 4
        elif mn.startswith('v_mfma'):
            self.cls = 'mfma'; self.w = R[0]; self.srcAB = R[1] | R[2]; self.srcC = R[3]; self.r = self.srcAB | self.srcC
            self.passes = 4 if '16x16x32' in mn else 8
        elif mn.startswith('v_'):
            self.cls = 'valu'; self.dpp = bool(DPP_RE.search(rest))
            if mn.startswith('v_permlane'):
                self.w = R[0] | R[1]; self.r = R[0] | R[1]
            elif mn.startswith(('v_add_co', 'v_sub_co', 'v_addc_co', 'v_subb_co')):
                self.w = R[0] | R[1]; self.r = U(R[2:])
            else:
                self.w = R[0]; self.r = U(R[1:])
                if mn.startswith(('v_fmac', 'v_writelane')) or self.dpp: self.r = self.r | R[0]
        elif mn.startswith(('buffer_', 'global_')):
            self.cls = 'vmem'
            if mn.startswith(('buffer_wbl2', 'buffer_inv')):
                pass
            elif '_load' in mn and re.search(r'\blds\b', rest):
                self.r = U(R)
            elif '_load' in mn:
                self.w = R[0]; self.r = U(R[1:])
            elif 'atomic' in mn:
                self.r = U(R); self.w = R[0] if ' sc0' in rest else set()
            else:
                self.r = U(R)
                d = R[0] if mn.startswith('buffer_') else R[1]
                if len(d) >= 3: self.wide_data = d
        elif mn.startswith('ds_'):
            self.cls = 'ds'
            if mn.startswith(('ds_read', 'ds_swizzle', 'ds_bpermute', 'ds_permute')) or '_rtn' in mn:
                self.w = R[0]; self.r = U(R[1:])
            else:
                self.r = U(R)
        else:
            raise ValueError('unknown instr ' + text)

def vec(s): return {x for x in s if x[0] in 'va'}
def sca(s): return {x for x in s if x[0] == 's'}

def need(p, c):
    n = 0
    if p.cls == 'valu':
        pv = vec(p.w); ps = sca(p.w)
        if c.cls == 'mfma' and pv & c.r: n = max(n, 2)
        if c.cls == 'valu':
            if c.dpp and pv & c.r: n = max(n, 2)
            if c.mn.startswith('v_permlane') and pv & c.r: n = max(n, 2)
            if c.mn.startswith(('v_readlane', 'v_readfirstlane')) and pv & c.r: n = max(n, 1)
            if p.mn.startswith(TRANS) and pv & c.r: n = max(n, 1)
            if ps & c.r:
                n = max(n, 4 if c.mn.startswith(('v_readlane', 'v_writelane')) else 2)
        if c.cls == 'vmem' and ps & c.r: n = max(n, 5)
    if p.cls == 'mfma':
        full = {4: 8, 8: 12}[p.passes]
        if c.cls == 'valu' and p.w & (c.r | c.w): n = max(n, full)
        if c.cls in ('vmem', 'ds') and p.w & (c.r | c.w): n = max(n, full)
        if c.cls == 'mfma':
            if p.w & c.srcAB: n = max(n, full)
            if p.w & c.srcC and p.w != c.srcC: n = max(n, full - 2)
            if p.w & c.w and not (p.w == c.srcC): n = max(n, full)
        if c.cls == 'valu' and p.srcC & c.w: n = max(n, {4: 3, 8: 7}[p.passes])
    if p.cls == 'vmem' and p.wide_data:
        if c.cls in ('valu', 'mfma') and p.wide_data & c.w: n = max(n, 2)
        if c.cls in ('vmem', 'ds') and p.wide_data & c.w: n = max(n, 1)
    if p.cls == 'salu' and ('s', 'm0') in p.w and c.cls in ('vmem', 'ds'): n = max(n, 1)
    return n

MAXD = 12
def fix_hazards(lines):
    ins = [Ins(l) for l in lines]
    changed = True; rounds = 0
    while changed:
        changed = False; rounds += 1
        assert rounds < 50
        labels = {x.label: i for i, x in enumerate(ins) if x.label}
        preds = {}
        for i, x in enumerate(ins):
            if x.cls == 'branch' and x.target in labels: preds.setdefault(labels[x.target], []).append(i)
        out = [];
        add = {}
        for i, c in enumerate(ins):
            if c.cls in ('dir', 'label', 'salu', 'branch'): continue
            worst = 0
            stack = [(i - 1, 0)]; seen = set()
            while stack:
                j, d = stack.pop()
                while j >= 0 and d < MAXD:
                    if (j, d) in seen: break
                    seen.add((j, d))
                    p = ins[j]
                    if p.cls == 'label':
                        for b in preds.get(j, []): stack.append((b, d))
                        k = j - 1
                        while k >= 0 and ins[k].cls in ('dir',): k -= 1
                        if k >= 0 and ins[k].mn in ('s_branch', 's_endpgm'): break
                        j -= 1; continue
                    if p.cls == 'dir': j -= 1; continue
                    worst = max(worst, need(p, c) - d)
                    d += p.ws; j -= 1
            if worst > 0: add[i] = worst
        if add:
            new = []; lastins = -100
            for i, x in enumerate(ins):
                if i in add and i - lastins > MAXD:
                    new.append(Ins(f's_nop {add[i]-1}')); lastins = i; changed = True
                new.append(x)
            ins = new
            rounds = 0 if changed else rounds
    return [x.text for x in ins]

class Asm:
    def __init__(self): self.L = []; self.n = 0
    def __call__(self, s):
        for l in s.split('\n'):
            l = l.strip()
            if l: self.L.append(l)
    def uniq(self, p):
        self.n += 1; return f'{p}_{self.n}'
    def text(self): return '\n'.join(fix_hazards(self.L)) + '\n'
```

```python
import sys
from collections import deque
sys.path.insert(0, 'work')
from asmlib import Asm

NAME = 'adaLN_cond__gqa_block_cached__swiglu_ffn__decode'
W_EPOCH = 0
W_MOD = 0x1000
W_Q = 0x4000
W_ID = 0x8000
W_STATS = 0x10000
W_CNT = 0x18000
W_PART = 0x20000
PS = 2176
W_O = 0xa8000
W_Y = 0xaa000
W_Z = 0xb2000
W_END = W_Z + 28 * 28 * 128
W_PROF = 0x200000
F_Q, F_SCNT, F_P, F_PROG, F_PCNT, F_OCNT, F_TCNT, F_LAST, F_PAIR, F_CK, F_CTL = 0, 4, 8, 12, 16, 20, 24, 28, 32, 64, 128
L_Q = 0x100
L_BC = 0x800
L_RED = 0x1000
L_SC = 0x3000
HS = 4096 + 64
L_X1 = 0x5100
L_ST2 = 0x5900
L_GB = 0x5a00
L_RED2 = 0x6000
L_EXT = 0x7000
BIG = 0x40000000
NLOG2E = 0xbfb8aa3b
CEXP = 0x3db8aa3b
INV448 = 0x3b124925
EPS = 0x3727c5ac
SPIN = 0x40000
DPPF = 'row_mask:0xf bank_mask:0xf'

def gen(D=5, R=54, E=28, CATCH=4, gmap='xcd', prof=False, cal=None, UNTH=0, wpol='nt', codepf=True,
        QSL=4, SSL=8, MSL=2, QTRIG=40, LASTI=255, TRIGC=200, CK=(), KG=(), CLEN=24, CDLY=8, KW=3, CNTRIG=2, K3=5, T2BIAS=0, R0=28, T1D=1, T2D=2, T2D4=3, NLATE=16, T1LATE=False, T1W=4, RW=4, SH=32, CSL=2, X='', P1D=5, P2D=3, P3D=2,
        B0=48, BP1=0, BP2=0, BP3=0, BT2=0, force_slow=False, T1SL=0, T2SL=0):
    a = Asm()
    if cal: prof = True
    LDS_BYTES = L_EXT + 4 * E * 1024
    BMAX = B0 + max(BP1, BP2, BP3)
    def stamp(k):
        if prof: a(f's_memrealtime s[96:97]\ns_waitcnt lgkmcnt(0)\nv_writelane_b32 v255, s96, {k}')
    def cstamp(k):
        if prof: a(f's_memtime s[96:97]\ns_waitcnt lgkmcnt(0)\nv_writelane_b32 v255, s96, {k}')
    def finish(): a('s_branch L_prof_end' if prof else 's_endpgm')
    def srd(d, lo, size):
        a(f's_mov_b32 s{d}, s{lo}\ns_mov_b32 s{d+1}, s{lo+1}\ns_mov_b32 s{d+2}, {size}\ns_mov_b32 s{d+3}, 0x20000')
    def masks():
        a('''v_and_b32 v6, 1, v0
             v_lshlrev_b32 v6, 4, v6
             v_mov_b32 v5, 0xffff
             v_lshlrev_b32 v5, v6, v5
             v_bfe_u32 v6, v0, 1, 2''')
        for j in range(4):
            a(f'v_cmp_eq_u32 vcc, {j}, v6\nv_cndmask_b32 v{8+j}, 0, v5, vcc')
    def abuild(dst, src):
        for j in range(4): a(f'v_and_b32 v{dst+j}, v{src}, v{8+j}')
    def mfma(acc, A, B, first):
        c = '0' if first else f'v[{acc}:{acc+3}]'
        a(f'v_mfma_f32_16x16x32_bf16 v[{acc}:{acc+3}], v[{A}:{A+3}], v[{B}:{B+3}], {c}')
    def pkadd(d, x, y): a(f'v_pk_add_f32 v[{d}:{d+1}], v[{x}:{x+1}], v[{y}:{y+1}]')
    def ldswait(flag, val, tmp, extra='', sleep=1):
        L = a.uniq('L_w'); Ld = L + '_d'
        a(f's_mov_b32 s30, {SPIN}\n{L}:\nds_read_b32 v{tmp}, v7 offset:{flag}')
        a(extra)
        a(f'''s_waitcnt lgkmcnt(0)
              v_readfirstlane_b32 s7, v{tmp}
              s_cmp_ge_u32 s7, {val}
              s_cbranch_scc1 {Ld}
              s_sleep {sleep}
              s_sub_u32 s30, s30, 1
              s_cmp_lg_u32 s30, 0
              s_cbranch_scc1 {L}
              {Ld}:''')
    def ldsflag(flag, op='ds_write_b32', val='1'):
        a(f'v_mov_b32 v6, {val}\ns_mov_b64 exec, 1\n{op} v7, v6 offset:{flag}\ns_mov_b64 exec, -1')
    def allred(op, regs, tmps, width):
        steps = ['quad_perm:[1,0,3,2]', 'quad_perm:[2,3,0,1]', 'row_half_mirror', 'row_mirror']
        n = {8: 3, 16: 4, 32: 4, 64: 4}[width]
        for st_ in steps[:n]:
            for r in regs: a(f'{op}_dpp v{r}, v{r}, v{r} {st_} {DPPF}')
        for wd, ins in ((32, 'v_permlane16_swap_b32'), (64, 'v_permlane32_swap_b32')):
            if width >= wd:
                for r, t in zip(regs, tmps): a(f'v_mov_b32 v{t}, v{r}')
                for r, t in zip(regs, tmps): a(f'{ins} v{r}, v{t}')
                for r, t in zip(regs, tmps): a(f'{op} v{r}, v{r}, v{t}')
    def rnd2(x, y, t):
        a(f'v_cvt_pk_bf16_f32 v{t}, v{x}, v{y}\nv_lshlrev_b32 v{x}, 16, v{t}\nv_and_b32 v{y}, 0xffff0000, v{t}')
    def rnd1(x):
        a(f'v_cvt_pk_bf16_f32 v{x}, v{x}, v{x}\nv_lshlrev_b32 v{x}, 16, v{x}')
    def unpack(x, y, src):
        a(f'v_lshlrev_b32 v{x}, 16, v{src}\nv_and_b32 v{y}, 0xffff0000, v{src}')
    def poll_begin():
        L = a.uniq('L_p')
        a(f's_mov_b32 s30, {SPIN}\n{L}:')
        return L
    def poll_end(L, sleep=0, mask=True):
        Ld = L + '_d'
        a(f's_cbranch_vccz {Ld}')
        if sleep: a(f's_sleep {sleep}')
        if mask: a('s_mov_b64 exec, vcc')
        a(f's_sub_u32 s30, s30, 1\ns_cmp_lg_u32 s30, 0\ns_cbranch_scc1 {L}')
        if mask: a('s_mov_b64 exec, -1')
        a(f'{Ld}:')
    def tagchk(regs, first=True):
        for k, r in enumerate(regs):
            if k == 0 and first: a(f'v_cmp_ne_u32 vcc, s31, v{r}')
            else: a(f'v_cmp_ne_u32 s[100:101], s31, v{r}\ns_or_b64 vcc, vcc, s[100:101]')
    def store2(flagreg, lines):
        L = a.uniq('L_s')
        a(f's_cmp_eq_u32 s{flagreg}, 2\ns_cbranch_scc0 {L}_slow')
        for l in lines: a(l)
        a(f's_branch {L}_done\n{L}_slow:')
        for l in lines: a(l + ' sc1')
        a(f'{L}_done:')
    def trole():
        L = a.uniq('L_r')
        a(f'''s_mov_b32 s61, 1
              s_cmp_lt_u32 s5, 14
              s_cbranch_scc1 {L}
              s_sub_u32 s62, s5, 14
              s_lshl_b32 s62, s62, 3
              s_add_u32 s62, s62, s4
              s_cmp_lt_u32 s62, 28
              s_cselect_b32 s61, 2, 0
              s_cmp_ge_u32 s5, 24
              s_cselect_b32 s61, 3, s61
              {L}:''')

    a(f'{NAME}_kernel:')
    a('''s_load_dwordx16 s[32:47], s[0:1], 0
         s_load_dwordx8 s[48:55], s[0:1], 64
         s_load_dwordx4 s[56:59], s[0:1], 96
         s_cmp_ge_u32 s2, 256
         s_cbranch_scc1 L_exit
         v_lshrrev_b32 v1, 6, v0
         v_and_b32 v0, 63, v0
         v_readfirstlane_b32 s3, v1
         v_mov_b32 v7, 0
         v_lshlrev_b32 v2, 2, v0
         ds_write_b32 v2, v7''')
    if gmap == 'xcd': a('s_and_b32 s4, s2, 7\ns_lshr_b32 s5, s2, 3')
    else: a('s_lshr_b32 s4, s2, 5\ns_and_b32 s5, s2, 31')
    a('''s_lshl_b32 s6, s4, 5
         s_add_u32 s6, s6, s5
         s_lshl_b32 s7, s6, 19
         v_lshrrev_b32 v5, 4, v0
         v_bfe_u32 v6, v0, 2, 2
         v_and_b32 v1, 3, v0
         v_lshlrev_b32 v1, 4, v1
         v_lshl_add_u32 v1, v5, 6, v1
         v_lshl_add_u32 v1, v6, 9, v1
         s_lshl_b32 s28, s3, 12
         s_mov_b32 s10, 0x80000
         s_mov_b32 s11, 0x20000''')
    if prof: a('v_mov_b32 v255, 0\ns_memrealtime s[96:97]')
    a('''s_waitcnt lgkmcnt(0)
         s_add_u32 s8, s34, s7
         s_addc_u32 s9, s35, 0
         s_barrier''')
    if prof: a('v_writelane_b32 v255, s96, 0')
    a('s_cmp_ge_u32 s3, 4\ns_cbranch_scc1 L_helper')

    RB = 36
    st = dict(issued=0, done=-1, lds=0)
    free = deque(RB + 4 * k for k in range(R))
    loc = {}; rdseq = {}
    progs = sorted(set([QTRIG, TRIGC]))
    assert min(LASTI, TRIGC) >= 128 + R
    C0 = (CK[0] + CDLY) if CK else 1000
    def depth(i): return D + 1 if (B0 <= i < BMAX or i >= C0) else D
    def vwait(n):
        a(f's_waitcnt vmcnt({n})'); st['done'] = max(st['done'], st['issued'] - 1 - n)
    def inlds(i): return R <= i < R + E
    def can_issue(): return st['issued'] < 256 and (inlds(st['issued']) or len(free) > 0)
    def issue():
        i = st['issued']; d = depth(i)
        if i >= d and i < 256 - UNTH:
            if inlds(i): a(f's_add_u32 m0, s63, {(i-R)*1024 - (((i>>1)&1)*2048 + (i&1)*256) + 4096}')
            if d > D:
                L = a.uniq('L_b')
                a(f's_cmpk_gt_u32 s61, {i}\ns_cbranch_scc1 {L}')
                if i >= C0: a(f's_cmpk_le_u32 s60, {i}\ns_cbranch_scc1 {L}_n\ns_waitcnt vmcnt({D-2})\n{L}_n:')
                a(f's_waitcnt vmcnt({D-1})\n{L}:')
            if st['done'] < i - d: vwait(d - 1)
        if i == D: stamp(8)
        if i < 128:
            off = ((i >> 1) & 1) * 2048 + (i & 1) * 256
            if inlds(i):
                a(f'buffer_load_dwordx4 v1, s[8:11], s28 offen offset:{off} nt lds')
            else:
                r = loc[i] = free.popleft()
                a(f'buffer_load_dwordx4 v[{r}:{r+3}], v1, s[8:11], s28 offen offset:{off} nt')
            if i % 4 == 3 and i < 127: a('s_add_u32 s28, s28, 0x4000')
        else:
            r = loc[i] = free.popleft()
            a(f'buffer_load_dwordx4 v[{r}:{r+3}], v2, s[12:15], s29 offen offset:{(i&1)*2048} nt')
            if i % 4 == 1: a('s_add_u32 s29, s29, 0x1000')
            if i % 4 == 3 and i < 255: a('s_add_u32 s29, s29, 0x3000')
        st['issued'] += 1
        if i in progs:
            ldsflag(F_PROG, 'ds_max_u32', i); st['lds'] += 1
        if i == LASTI: ldsflag(F_LAST, 'ds_add_u32')
        for n, c in enumerate(CK):
            for role, pos in ((0, c), (1, c + T2BIAS)) if T2BIAS else ((None, c),):
                if i not in (pos, pos + CDLY - 2, pos + CDLY - 1): continue
                L = a.uniq('L_c')
                if role is not None: a(f's_cmp_lg_u32 s64, {role}\ns_cbranch_scc1 {L}')
                if i == pos:
                    a(f'v_mov_b32 v6, 1\ns_mov_b64 exec, 1\nds_add_rtn_u32 v253, v7, v6 offset:{F_CK+4*n}\ns_mov_b64 exec, -1')
                elif i == pos + CDLY - 2:
                    a(f'ds_read_b32 v254, v7 offset:{F_CTL+4*n}')
                else:
                    a(f'''s_waitcnt lgkmcnt(0)
                          v_readfirstlane_b32 s7, v253
                          v_readfirstlane_b32 s65, v254
                          s_mul_i32 s7, s7, {KW}
                          s_sub_u32 s7, s7, {(3*KW)//2}
                          s_add_u32 s7, s7, s65
                          s_add_u32 s61, s7, {i+1}
                          s_sub_u32 s60, {i+1}, s7''')
                a(f'{L}:')
    def ensure(i):
        if st['done'] < i: vwait(st['issued'] - 1 - i)
    for i in range(D): issue()
    a(f'''s_add_u32 s12, s36, s7
          s_addc_u32 s13, s37, 0
          s_mov_b32 s14, 0x80000
          s_mov_b32 s15, 0x20000
          s_and_b32 s24, s3, 1
          s_lshr_b32 s25, s3, 1
          s_lshl_b32 s29, s25, 13
          s_lshl_b32 s7, s24, 8
          s_add_u32 s29, s29, s7
          v_and_b32 v2, 15, v0
          v_lshlrev_b32 v2, 4, v2
          v_lshl_add_u32 v2, v5, 9, v2
          s_lshl_b32 s7, s25, 11
          s_add_u32 s7, s7, {L_SC}
          v_bfe_u32 v4, v0, 3, 1
          v_mul_u32_u24 v4, {HS}, v4
          v_lshl_add_u32 v4, v5, 4, v4
          v_add_u32 v4, s7, v4
          s_lshl_b32 s26, s24, 3
          s_add_u32 s7, s7, s26
          v_and_b32 v3, 1, v5
          v_mul_u32_u24 v3, {HS}, v3
          v_lshl_add_u32 v3, v6, 4, v3
          v_lshrrev_b32 v12, 5, v0
          v_lshl_add_u32 v3, v12, 2, v3
          v_add_u32 v3, s7, v3
          v_bfe_u32 v12, v0, 2, 1
          v_lshlrev_b32 v12, 9, v12
          v_lshl_add_u32 v12, v5, 6, v12
          v_and_b32 v13, 3, v0
          v_lshl_add_u32 v12, v13, 4, v12
          s_mul_i32 s63, s3, {E*1024}
          s_add_u32 s63, s63, {L_EXT}
          v_lshl_add_u32 v252, v0, 4, s63
          s_sub_u32 s63, s63, 4096''')
    srd(16, 58, W_END)
    masks()
    trole()
    a(f'''s_cmp_eq_u32 s61, 2
          s_cselect_b32 s64, 1, 0
          s_mov_b32 s69, s62
          s_mov_b32 s60, 0
          s_cmp_ge_u32 s2, {256-106}
          s_cselect_b32 s7, {BP3}, 0
          s_cmp_ge_u32 s2, {256-78}
          s_cselect_b32 s7, {BP2}, s7
          s_cmp_ge_u32 s2, {256-14}
          s_cselect_b32 s7, {BP1}, s7
          s_add_u32 s61, s7, {B0}''')
    while st['issued'] < R + E: issue()
    stamp(1)
    ldswait(F_Q, 1, 5, extra=f'ds_read_b128 v[28:31], v12 offset:{L_Q}\nds_read_b128 v[32:35], v12 offset:{L_Q+256}')
    stamp(2)
    a('v_bfe_u32 v5, v0, 3, 1\nv_cmp_eq_u32 vcc, 0, v5')
    for k in range(8): a(f'v_cndmask_b32 v{20+k}, 0, v{28+k}, vcc')
    a('v_cmp_eq_u32 vcc, 1, v5')
    for k in range(8): a(f'v_cndmask_b32 v{28+k}, 0, v{28+k}, vcc')
    def post_group(gm):
        d = 12 + 4 * (gm & 1)
        a(f'''v_mov_b32_dpp v5, v{d} quad_perm:[0,0,0,0] {DPPF}
              v_add_f32_dpp v5, v{d+1}, v5 quad_perm:[1,1,1,1] {DPPF}
              v_add_f32_dpp v5, v{d+2}, v5 quad_perm:[2,2,2,2] {DPPF}
              v_add_f32_dpp v5, v{d+3}, v5 quad_perm:[3,3,3,3] {DPPF}
              ds_write_b32 v3, v5 offset:{gm*64}''')
        st['lds'] += 1
    def consumeK(i):
        k = i + 4
        if inlds(k):
            ensure(k)
            r = loc[k] = free.popleft()
            a(f'ds_read_b128 v[{r}:{r+3}], v252 offset:{(k-R)*1024}')
            rdseq[k] = st['lds']; st['lds'] += 1
        if inlds(i): a(f's_waitcnt lgkmcnt({min(15, st["lds"] - rdseq[i] - 1)})')
        else: ensure(i)
        gm, q = i >> 2, i & 3
        mfma(12 + 4 * (gm & 1), 20 + 4 * q, loc[i], q == 0)
        free.append(loc[i])
        if q == 2 and gm > 0: post_group(gm - 1)
        if i == 127:
            post_group(31)
            ldsflag(F_SCNT, 'ds_add_u32')
    def consumeV(i):
        t = i - 128
        ab = 20 + 4 * (t & 1); pb = 28 + 4 * ((t >> 2) & 1)
        if t & 3 == 0:
            a('s_waitcnt lgkmcnt(0)')
            if t + 4 < 128:
                pn = 28 + 4 * (((t >> 2) + 1) & 1)
                a(f'ds_read_b128 v[{pn}:{pn+3}], v4 offset:{((t>>2)+1)*64}')
        abuild(ab, pb + (t & 3))
        ensure(i)
        mfma(12, ab, loc[i], t == 0)
        free.append(loc[i])
        if i == 200:
            a(f'''s_lshl_b32 s7, s3, 10
                  s_add_u32 s7, s7, {L_RED2}
                  v_lshl_add_u32 v3, v0, 4, s7
                  v_xor_b32 v1, 0x800, v3
                  s_lshl_b32 s7, s24, 2
                  v_mov_b32 v16, s7
                  v_mov_b32 v17, 1
                  v_lshrrev_b32 v5, 5, v0
                  v_bfe_u32 v6, v0, 1, 3
                  v_lshl_add_u32 v5, v5, 4, v6
                  v_mul_u32_u24 v5, {PS}, v5
                  v_and_b32 v6, 1, v0
                  v_lshl_add_u32 v5, v6, 5, v5
                  v_bfe_u32 v6, v0, 4, 1
                  v_lshl_add_u32 v18, v6, 4, v5
                  s_lshl_b32 s28, s4, 2
                  s_add_u32 s28, s28, s24
                  s_mul_i32 s28, s28, {8*PS}
                  s_lshl_b32 s7, s5, 6
                  s_add_u32 s28, s28, s7
                  s_add_u32 s28, s28, {W_PART}''')
    def run(consume, c0, c1):
        c = c0
        while c < c1:
            n_is = st['issued']; lag = n_is - c
            if n_is >= 256 - UNTH and can_issue():
                issue(); continue
            dd = depth(n_is)
            if lag > dd or n_is >= 256:
                n = min(CATCH, c1 - c, max(1, lag - dd)) if n_is < 256 else c1 - c
                for _ in range(n): consume(c); c += 1
            if can_issue(): issue()
    run(consumeK, 0, 128)
    stamp(3)
    while can_issue(): issue()
    assert st['issued'] == 128 + R
    stamp(4)
    ldswait(F_P, 1, 5, extra='ds_read_b128 v[28:31], v4')
    a('s_mov_b32 s62, s7')
    stamp(5)
    run(consumeV, 128, 256)
    stamp(6)
    a(f'''ds_write_b128 v3, v[12:15]
          s_mov_b64 exec, 1
          ds_add_rtn_u32 v5, v16, v17 offset:{F_PAIR}
          s_mov_b64 exec, -1
          ds_read_b128 v[40:43], v1
          s_mov_b64 exec, 1
          ds_add_u32 v7, v17 offset:{F_OCNT}
          s_mov_b64 exec, -1
          s_waitcnt lgkmcnt(1)
          v_readfirstlane_b32 s7, v5''')
    pkadd(12, 12, 40); pkadd(14, 14, 42)
    a('s_cmp_lg_u32 s7, 1\ns_cbranch_scc1 L_stream_end')
    store2(62, ['buffer_store_dwordx4 v[12:15], v18, s[16:19], s28 offen'])
    stamp(7)
    a('L_stream_end:')
    a('s_cmp_eq_u32 s3, 0\ns_cselect_b32 s7, s64, 0\ns_cmp_eq_u32 s7, 1\ns_cbranch_scc1 L_T3')
    finish()

    a('.p2align 6\nL_helper:')
    stamp(1)
    srd(16, 58, W_END)
    a(f'''s_sub_u32 s60, s3, 4
          s_mul_i32 s7, s60, 112
          v_lshrrev_b32 v1, 3, v0
          v_and_b32 v2, 7, v0
          v_mul_u32_u24 v13, 14, v1
          v_add_u32 v13, s7, v13
          v_lshl_add_u32 v12, v2, 1, v13
          v_cmp_eq_u32 vcc, 7, v2
          v_lshlrev_b32 v14, 1, v12
          v_lshlrev_b32 v15, 2, v12
          v_mov_b32 v3, {BIG}
          v_cndmask_b32 v14, v14, v3, vcc
          v_cndmask_b32 v15, v15, v3, vcc
          s_sub_u32 s62, 255, s2
          s_cmp_ge_u32 s62, 106
          s_cbranch_scc1 L_noP
          s_cmp_ge_u32 s62, 78
          s_cbranch_scc1 L_P3
          s_cmp_ge_u32 s62, 14
          s_cbranch_scc1 L_P2''')
    def wtile(base, srdn, stride, n, voff, sreg, dep, m0, m1):
        for m in range(m0, m1):
            if m >= dep: a(f's_waitcnt vmcnt({dep-1})')
            a(f'buffer_load_dwordx4 v[{base+4*m}:{base+4*m+3}], v{voff}, s[{srdn}:{srdn+3}], s{sreg} offen {wpol}')
            if m < n - 1: a(f's_add_u32 s{sreg}, s{sreg}, {stride}')
    def common_addrs():
        a(f'''s_load_dword s31, s[58:59], 0
              s_lshl_b32 s7, s60, 9
              s_add_u32 s7, s7, {L_BC}
              v_lshl_add_u32 v16, v0, 3, s7
              v_lshl_add_u32 v17, v1, 6, s7
              s_lshl_b32 s7, s60, 10
              s_add_u32 s7, s7, {L_RED}
              v_lshl_add_u32 v18, v0, 4, s7
              v_bfe_u32 v5, v0, 2, 3
              v_bfe_u32 v6, v0, 1, 1
              v_lshl_add_u32 v5, v6, 4, v5
              v_and_b32 v6, 1, v0
              v_lshlrev_b32 v6, 3, v6
              v_lshl_add_u32 v19, v5, 4, v6
              v_lshlrev_b32 v4, 3, v0
              v_cmp_lt_u32 vcc, 31, v0
              v_cndmask_b32 v4, v4, v3, vcc''')
        masks()
    def mktag():
        a('s_waitcnt lgkmcnt(0)\ns_mul_i32 s31, s31, 1664525\ns_add_u32 s31, s31, 1013904223')
    def p1body(dep, crit):
        if crit:
            a(f'''v_lshrrev_b32 v5, 4, v0
                  v_mul_u32_u24 v5, 1792, v5
                  v_and_b32 v6, 15, v0
                  v_lshl_add_u32 v5, v6, 4, v5
                  v_lshrrev_b32 v6, 1, v0
                  v_lshlrev_b32 v6, 8, v6
                  v_and_b32 v40, 1, v0
                  v_lshl_add_u32 v6, v40, 4, v6
                  s_mul_i32 s28, s60, {4*1792}
                  s_lshl_b32 s7, s62, 8
                  s_add_u32 s28, s28, s7
                  s_add_u32 s28, s28, {W_Y}
                  s_lshl_b32 s29, s60, 13
                  s_add_u32 s29, s29, {W_CNT}
                  s_cmp_ge_u32 s62, 8
                  s_cbranch_scc1 L_noclr
                  s_cmp_lt_u32 s62, 7
                  s_cselect_b32 s28, s28, s29
                  s_cselect_b32 s7, -1, 0
                  s_cselect_b64 vcc, -1, 0
                  v_mov_b32 v40, s7
                  v_mov_b32 v41, s7
                  v_mov_b32 v42, s7
                  v_mov_b32 v43, s7
                  v_cndmask_b32 v5, v6, v5, vcc
                  buffer_store_dwordx4 v[40:43], v5, s[16:19], s28 offen sc1
                  L_noclr:''')
        srd(8, 52, 0 if 'w' in X else 448 * 5376)
        srd(12, 50, 896)
        a('''buffer_load_dword v52, v14, s[12:15], 0 offen nt
             v_mul_u32_u24 v53, 5376, v13
             v_lshl_add_u32 v53, v2, 4, v53
             s_lshl_b32 s28, s62, 7''')
        wtile(64, 8, 5376, 14, 53, 28, dep, 0, dep)
        a(f's_lshl_b32 s63, s62, 8\ns_add_u32 s63, s63, {W_MOD}')
        common_addrs()
        a(f's_waitcnt vmcnt({dep})')
        unpack(54, 55, 52)
        for r in (54, 55): a(f'v_mul_f32 v{r+2}, {NLOG2E}, v{r}')
        for r in (54, 55): a(f'v_exp_f32 v{r+2}, v{r+2}')
        for r in (54, 55): a(f'v_add_f32 v{r+2}, 1.0, v{r+2}')
        for r in (54, 55): a(f'v_rcp_f32 v{r+2}, v{r+2}')
        for r in (54, 55): a(f'v_mul_f32 v{r}, v{r}, v{r+2}')
        wtile(64, 8, 5376, 14, 53, 28, dep, dep, 14)
        mktag()
        stamp(12)
        a('s_branch L_Pgemv')
    p1body(P1D, True)
    a('L_P3:\ns_sub_u32 s62, s62, 64')
    p1body(P3D, False)

    a('L_P2:\ns_sub_u32 s62, s62, 14')
    if gmap == 'xcd':
        a('s_lshr_b32 s62, s62, 3\ns_add_u32 s7, s4, 4\ns_and_b32 s7, s7, 7\ns_lshl_b32 s7, s7, 3\ns_add_u32 s62, s62, s7')
    srd(8, 38, 0 if 'w' in X else 448 * 8192)
    srd(12, 32, 896)
    a('''v_lshlrev_b32 v5, 4, v0
         buffer_load_dwordx4 v[20:23], v5, s[12:15], 0 offen nt
         buffer_load_dword v52, v14, s[12:15], 0 offen nt
         v_lshlrev_b32 v53, 13, v13
         v_lshl_add_u32 v53, v2, 4, v53
         s_lshl_b32 s28, s62, 7''')
    wtile(64, 8, 8192, 14, 53, 28, P2D, 0, P2D)
    a(f's_lshl_b32 s63, s62, 8\ns_add_u32 s63, s63, {W_Q}')
    common_addrs()
    wtile(64, 8, 8192, 14, 53, 28, P2D, P2D, min(14, 2 * P2D))
    if P2D == 14: a('s_waitcnt vmcnt(14)')
    for k in range(4): unpack(24 + 2 * k, 25 + 2 * k, 20 + k)
    a('v_add_f32 v32, v24, v25')
    for k in range(2, 8): a(f'v_add_f32 v32, v32, v{24+k}')
    allred('v_add_f32', [32], [33], 64)
    a(f'v_mul_f32 v32, {INV448}, v32')
    for k in range(8): a(f'v_sub_f32 v{24+k}, v{24+k}, v32')
    a('v_mul_f32 v34, v24, v24')
    for k in range(1, 8): a(f'v_fmac_f32 v34, v{24+k}, v{24+k}')
    a('v_cmp_gt_u32 vcc, 56, v0\nv_cndmask_b32 v34, 0, v34, vcc')
    allred('v_add_f32', [34], [33], 64)
    a(f'v_mul_f32 v34, {INV448}, v34')
    def ln_tail(mu, var, t, x0, x1):
        rnd2(mu, var, t)
        a(f'v_add_f32 v{var}, {EPS}, v{var}')
        a(f'v_sub_f32 v{x0}, v{x0}, v{mu}\nv_sub_f32 v{x1}, v{x1}, v{mu}')
        rnd1(var)
        a(f'v_sqrt_f32 v{var}, v{var}')
        rnd2(x0, x1, t)
        rnd1(var)
        a(f'v_rcp_f32 v{var}, v{var}')
        a(f'v_mul_f32 v{x0}, v{x0}, v{var}\nv_mul_f32 v{x1}, v{x1}, v{var}')
        rnd2(x0, x1, t)
    unpack(54, 55, 52)
    ln_tail(32, 34, 33, 54, 55)
    wtile(64, 8, 8192, 14, 53, 28, P2D, min(14, 2 * P2D), 14)
    mktag()
    stamp(12)
    a(f's_mov_b32 s28, {W_MOD}\nv_cmp_ne_u32 s[98:99], 7, v2')
    L = poll_begin()
    a('''buffer_load_dwordx2 v[56:57], v15, s[16:19], s28 offen sc1
         buffer_load_dwordx2 v[58:59], v15, s[16:19], s28 offen offset:1792 sc1
         s_waitcnt vmcnt(0)''')
    tagchk([57, 59]); a('s_and_b64 vcc, vcc, s[98:99]')
    poll_end(L, sleep=MSL, mask=False)
    stamp(2)
    unpack(60, 61, 58)
    a('v_add_f32 v60, 1.0, v60\nv_add_f32 v61, 1.0, v61')
    rnd2(60, 61, 33)
    a('v_mul_f32 v54, v54, v60\nv_mul_f32 v55, v55, v61')
    rnd2(54, 55, 33)
    unpack(60, 61, 56)
    a('v_add_f32 v54, v54, v60\nv_add_f32 v55, v55, v61')

    a('L_Pgemv:')
    def bcast14(x0, x1):
        a(f'''v_cvt_pk_bf16_f32 v{x0}, v{x0}, v{x0}
              v_cvt_pk_bf16_f32 v{x1}, v{x1}, v{x1}
              ds_write_b64 v16, v[{x0}:{x1}]''')
        for k in range(4): a(f'ds_read_b128 v[{20+4*k}:{23+4*k}], v17 offset:{16*k}')
    bcast14(54, 55)
    a('s_waitcnt lgkmcnt(0)')
    stamp(13)
    for m in range(14):
        ab = 36 + 4 * (m & 1)
        abuild(ab, 20 + m)
        a(f's_waitcnt vmcnt({13-m})')
        mfma(44, ab, 64 + 4 * m, m == 0)
    def red8(cnt, skip):
        a(f'''v_mov_b32 v6, 1
              ds_write_b128 v18, v[44:47]
              s_mov_b64 exec, 1
              ds_add_rtn_u32 v5, v7, v6 offset:{cnt}
              s_mov_b64 exec, -1''')
        for w in range(4):
            for x in range(2):
                r = 20 + 4 * w + 2 * x
                a(f'ds_read_b64 v[{r}:{r+1}], v19 offset:{L_RED + w*1024 + x*640}')
        a(f'''s_waitcnt lgkmcnt(0)
              v_readfirstlane_b32 s7, v5''')
        for stp in (2, 4, 8):
            for r in range(20, 36, 2 * stp): pkadd(r, r, r + stp)
        a(f's_cmp_lg_u32 s7, 3\ns_cbranch_scc1 {skip}')
    stamp(14)
    red8(F_PCNT, 'L_Pdone')
    a('''v_cvt_pk_bf16_f32 v20, v20, v21
         v_mov_b32 v21, s31
         buffer_store_dwordx2 v[20:21], v4, s[16:19], s63 offen sc1''')
    stamp(3)
    a('s_branch L_Pdone')

    a('L_noP:')
    if codepf:
        a(f'''s_cmp_ge_u32 s2, 16
              s_cbranch_scc1 L_nopf
              s_getpc_b64 s[42:43]
              L_pc:
              s_sub_u32 s42, s42, L_pc-{NAME}_kernel
              s_subb_u32 s43, s43, 0
              s_mul_i32 s7, s60, CODE_Q
              v_lshl_add_u32 v5, v0, 4, s7
              .rept CODE_Q/1024
              global_load_dwordx4 v[20:23], v5, s[42:43]
              v_add_u32 v5, 0x400, v5
              .endr
              L_nopf:''')
    common_addrs()
    mktag()
    a('L_Pdone:')
    trole()
    a('s_cmp_lg_u32 s60, 0\ns_cbranch_scc1 L_early')
    a(f'''v_lshlrev_b32 v48, 4, v0
          v_mov_b32 v40, -1
          v_mov_b32 v41, -1
          v_mov_b32 v42, -1
          v_mov_b32 v43, -1
          s_cmp_lg_u32 s61, {7 if 'z' in X else 2}
          s_cbranch_scc1 L_rs2
          s_mul_i32 s29, s62, 3584
          s_add_u32 s29, s29, {W_Z}
          v_lshlrev_b32 v5, 3, v0
          buffer_store_dwordx4 v[40:43], v48, s[16:19], s29 offen sc1
          buffer_store_dwordx4 v[40:43], v48, s[16:19], s29 offen offset:1024 sc1
          buffer_store_dwordx4 v[40:43], v48, s[16:19], s29 offen offset:2048 sc1
          buffer_store_dwordx2 v[40:41], v5, s[16:19], s29 offen offset:3072 sc1''')
    a(f'''L_rs2:
          s_getreg_b32 s24, hwreg(HW_REG_XCC_ID, 0, 4)
          s_lshl_b32 s29, s6, 7
          s_add_u32 s29, s29, {W_ID}
          v_mov_b32 v44, s24
          v_mov_b32 v45, s31
          s_mov_b64 exec, 1
          buffer_store_dwordx2 v[44:45], v7, s[16:19], s29 offen sc1
          s_mov_b64 exec, -1
          s_lshl_b32 s28, s4, 11
          s_add_u32 s28, s28, {W_Q}''')
    ldswait(F_PROG, QTRIG, 5, sleep=4)
    L = poll_begin()
    a('''buffer_load_dwordx4 v[20:23], v48, s[16:19], s28 offen sc1
         buffer_load_dwordx4 v[24:27], v48, s[16:19], s28 offen offset:1024 sc1
         s_waitcnt vmcnt(0)
         s_mov_b64 exec, -1''')
    tagchk([21, 23, 25, 27])
    poll_end(L, sleep=QSL)
    a(f'''v_lshlrev_b32 v6, 3, v0
          v_add_u32 v6, {L_Q}, v6
          ds_write2_b32 v6, v20, v22 offset0:0 offset1:1
          ds_write2_b32 v6, v24, v26 offset0:128 offset1:129''')
    ldsflag(F_Q)
    stamp(4)
    a(f'''v_and_b32 v6, 31, v0
          v_lshlrev_b32 v61, 7, v6
          s_lshl_b32 s29, s4, 12
          s_add_u32 s29, s29, {W_ID}''')
    L = poll_begin()
    a('''buffer_load_dwordx2 v[20:21], v61, s[16:19], s29 offen sc1
         s_waitcnt vmcnt(0)
         s_mov_b64 exec, -1''')
    tagchk([21])
    poll_end(L, sleep=16)
    a(f'''v_cmp_ne_u32 vcc, s24, v20
          s_cmp_eq_u64 vcc, 0
          s_cselect_b32 s25, {1 if force_slow else 2}, 1''')
    a('L_early:')
    def t1loads(dep):
        n = 0
        for t in range(4):
            for hf in range(2):
                r = 64 + 8 * t + 4 * hf
                if n >= dep: a(f's_waitcnt vmcnt({dep-1})')
                n += 1
                a(f'buffer_load_dwordx4 v[{r}:{r+3}], v250, s[8:11], s{66+2*hf+(t>>1)} offen offset:{1792*(t&1)} {wpol}')
    tl2 = []
    for base, sr, so in ((64, 8, 66), (120, 12, 68)):
        for t in range(7):
            for hf in range(2):
                r = base + 8 * t + 4 * hf
                tl2.append((f'buffer_load_dwordx4 v[{r}:{r+3}], v250, s[{sr}:{sr+3}], s{so+hf} offen {wpol}', f's_add_u32 s{so+hf}, s{so+hf}, 7168'))
    for t in range(4):
        for k in range(2):
            for hf in range(2):
                r = 176 + 16 * t + 8 * k + 4 * hf
                tl2.append((f'buffer_load_dwordx4 v[{r}:{r+3}], v{251+k}, s[20:23], s{70+hf} offen {wpol}', f's_add_u32 s{70+hf}, s{70+hf}, 1792' if k == 1 else ''))
    a('''v_lshrrev_b32 v5, 5, v0
         v_bfe_u32 v6, v0, 3, 1
         v_lshl_add_u32 v253, v5, 1, v6
         v_bfe_u32 v254, v0, 4, 1''')
    a('s_cmp_lg_u32 s61, 1\ns_cbranch_scc1 L_early2')
    srd(8, 40, 4096 * 896)
    a(f'''s_and_b32 s64, s5, 1
          s_lshl_b32 s66, s4, 1
          s_add_u32 s66, s66, s64
          s_lshl_b32 s66, s66, 8
          s_lshl_b32 s7, s60, 6
          s_add_u32 s66, s66, s7
          s_mul_i32 s66, s66, 896
          s_lshr_b32 s7, s5, 1
          s_lshl_b32 s7, s7, 7
          s_add_u32 s66, s66, s7
          s_add_u32 s67, s66, {4*896}
          s_add_u32 s68, s66, {32*896}
          s_add_u32 s69, s66, {36*896}
          v_lshl_add_u32 v250, v253, 3, v254
          v_mul_u32_u24 v250, 896, v250
          v_lshl_add_u32 v250, v2, 4, v250''')
    if not T1LATE: t1loads(T1D)
    a('L_early2:\ns_cmp_lg_u32 s61, 2\ns_cbranch_scc1 L_early3')
    srd(8, 44, 448 * 3584)
    srd(12, 46, 448 * 3584)
    srd(20, 48, 1792 * 896)
    a(f'''v_mad_u32_u24 v250, v253, 14, v254
          v_mul_u32_u24 v250, 3584, v250
          v_lshl_add_u32 v250, v2, 4, v250
          v_lshl_add_u32 v251, v253, 3, v254
          v_mul_u32_u24 v251, 896, v251
          v_lshl_add_u32 v251, v2, 4, v251
          v_add_u32 v252, 128, v251
          s_cmp_lg_u32 s60, 3
          s_cbranch_scc1 L_T2b
          v_mov_b32 v252, v3
          L_T2b:
          s_mul_i32 s66, s60, {112*3584}
          s_lshl_b32 s7, s62, 7
          s_add_u32 s66, s66, s7
          s_add_u32 s67, s66, {56*3584}
          s_mov_b32 s68, s66
          s_mov_b32 s69, s67
          s_mul_i32 s70, s62, {64*896}
          s_lshl_b32 s7, s60, 8
          s_add_u32 s70, s70, s7
          s_add_u32 s71, s70, {32*896}
          s_cmp_eq_u32 s60, 0
          s_cselect_b64 vcc, -1, 0''')
    for n, (ld, nx) in enumerate(tl2[:44 - NLATE]):
        if n >= T2D and T2D4 > T2D:
            L = a.uniq('L_e')
            a(f's_cbranch_vccnz {L}\ns_waitcnt vmcnt({T2D-1})\n{L}:')
        if n >= T2D4: a(f's_waitcnt vmcnt({T2D4-1})')
        a(ld); a(nx)
    a('L_early3:')
    stamp(12)
    if CK:
        a('s_cmp_lg_u32 s60, 1\ns_cbranch_scc1 L_noctl')
        for n, (c, kg) in enumerate(zip(CK, KG)):
            a(f'''s_and_b32 s26, s2, 7
                  s_mul_i32 s26, s26, {(5, 9, 3, 13, 7, 11, 15, 1)[n]}
                  s_lshr_b32 s29, s2, 3
                  s_add_u32 s29, s29, s26
                  s_and_b32 s29, s29, 31
                  s_lshl_b32 s29, s29, 10
                  s_add_u32 s29, s29, {W_CNT + (n&3)*256 + 4*n}
                  s_mov_b32 s94, 1''')
            ldswait(F_CK + 4 * n, CNTRIG, 5, sleep=CSL)
            a(f'''s_atomic_add s94, s[58:59], s29 glc
                  s_waitcnt lgkmcnt(0)
                  s_lshl_b32 s7, s94, 3
                  s_sub_u32 s7, s7, {R0}
                  s_mul_i32 s7, s7, {kg}
                  s_ashr_i32 s7, s7, 4
                  s_min_i32 s7, s7, {CLEN}
                  s_max_i32 s7, s7, {-CLEN}''')
            ldsflag(F_CTL + 4 * n, val='s7')
        a('L_noctl:')
    a('s_cmp_lg_u32 s60, 0\ns_cbranch_scc1 L_tail')
    a(f'''v_lshrrev_b32 v5, 5, v0
          v_mul_u32_u24 v5, {HS}, v5
          v_and_b32 v6, 31, v0
          v_lshl_add_u32 v60, v6, 4, v5
          v_mov_b32 v62, {CEXP}
          v_lshlrev_b32 v61, 7, v6
          v_lshlrev_b32 v63, 4, v0
          s_lshl_b32 s28, s6, 7
          s_add_u32 s28, s28, {W_STATS}
          s_lshl_b32 s29, s4, 12
          s_add_u32 s29, s29, {W_STATS}''')
    a(f'''s_mul_i32 s26, s6, {PS}
          s_add_u32 s26, s26, {W_PART}
          s_lshl_b32 s27, s6, 5
          s_add_u32 s27, s27, {W_O}
          v_cmp_gt_u32 vcc, 2, v0
          v_cndmask_b32 v247, v3, v63, vcc
          v_mov_b32 v56, -1
          v_mov_b32 v57, -1
          v_mov_b32 v58, -1
          v_mov_b32 v59, -1''')
    ldswait(F_SCNT, 4, 5, sleep=4)
    stamp(5)
    store2(25, ['buffer_store_dwordx4 v[56:59], v63, s[16:19], s26 offen',
                'buffer_store_dwordx4 v[56:59], v63, s[16:19], s26 offen offset:1024',
                'buffer_store_dwordx4 v[56:59], v247, s[16:19], s27 offen'])
    for n in range(8): a(f'ds_read_b128 v[{20+4*n}:{23+4*n}], v60 offset:{L_SC + 512*n}')
    for n in range(8):
        a(f's_waitcnt lgkmcnt({7-n})')
        rnd2(20 + 4 * n, 21 + 4 * n, 5)
        rnd2(22 + 4 * n, 23 + 4 * n, 6)
    a('v_max_f32 v52, v20, v21')
    for k in range(22, 52, 2): a(f'v_max3_f32 v52, v52, v{k}, v{k+1}')
    allred('v_max_f32', [52], [53], 32)
    for k in range(20, 52): a(f'v_sub_f32 v{k}, v{k}, v52')
    for k in range(20, 52): a(f'v_mul_f32 v{k}, v62, v{k}')
    for k in range(20, 52): a(f'v_exp_f32 v{k}, v{k}')
    a('v_add_f32 v54, v20, v21\nv_add_f32 v55, v22, v23')
    for k in range(24, 52, 2): a(f'v_add_f32 v54, v54, v{k}\nv_add_f32 v55, v55, v{k+1}')
    a('v_add_f32 v54, v54, v55')
    allred('v_add_f32', [54], [53], 32)
    a('''v_readlane_b32 s90, v52, 0
         v_readlane_b32 s91, v52, 32
         v_readlane_b32 s92, v54, 32
         s_pack_hh_b32_b16 s90, s90, s91
         v_mov_b32 v56, s90
         v_mov_b32 v57, v54
         v_mov_b32 v58, s92
         v_mov_b32 v59, s31
         s_waitcnt vmcnt(0)
         s_mov_b64 exec, 0xff''')
    store2(25, ['buffer_store_dwordx4 v[56:59], v63, s[16:19], s28 offen'])
    a('s_mov_b64 exec, -1')
    stamp(6)
    L = poll_begin()
    a('''buffer_load_dwordx4 v[240:243], v61, s[16:19], s29 offen sc1
         s_waitcnt vmcnt(0)
         s_mov_b64 exec, -1''')
    tagchk([243])
    poll_end(L, sleep=SSL)
    stamp(7)
    unpack(244, 245, 240)
    a('''v_cmp_lt_u32 vcc, 31, v0
         v_cndmask_b32 v244, v244, v245, vcc
         v_cndmask_b32 v241, v241, v242, vcc
         v_mov_b32 v246, v244''')
    allred('v_max_f32', [246], [53], 32)
    a('''v_sub_f32 v244, v244, v246
         v_sub_f32 v52, v52, v246
         v_mul_f32 v244, v62, v244
         v_mul_f32 v52, v62, v52
         v_exp_f32 v244, v244
         v_exp_f32 v52, v52
         v_mul_f32 v241, v241, v244''')
    allred('v_add_f32', [241], [53], 32)
    a('v_rcp_f32 v241, v241\nv_mul_f32 v52, v52, v241')
    for n in range(8):
        for k in range(20 + 4 * n, 24 + 4 * n): a(f'v_mul_f32 v{k}, v52, v{k}')
        for k in range(20 + 4 * n, 24 + 4 * n): a(f'v_cvt_pk_bf16_f32 v{k}, v{k}, v{k}')
        a(f'ds_write_b128 v60, v[{20+4*n}:{23+4*n}] offset:{L_SC + 512*n}')
    ldsflag(F_P, val='s25')
    stamp(8)

    def smf(acc, A, B): a(f'v_smfmac_f32_16x16x64_bf16 v[{acc}:{acc+3}], v[{A}:{A+3}], v[{B}:{B+7}], v19')
    def sbuild(dst, p0, p1):
        a(f'v_and_b32 v{dst}, v{p0}, v8\nv_and_b32 v{dst+1}, v{p1}, v9\nv_and_b32 v{dst+2}, v{p0}, v10\nv_and_b32 v{dst+3}, v{p1}, v11')
    def pkop(op, d, x, y, mod=''): a(f'v_pk_{op}_f32 v[{d}:{d+1}], v[{x}:{x+1}], v[{y}:{y+1}] {mod}')
    def spin_back(L, sleep=0):
        if sleep: a(f's_sleep {sleep}')
        a(f's_sub_u32 s30, s30, 1\ns_cmp_lg_u32 s30, 0\ns_cbranch_scc1 {L}')
    a(f'''L_tail:
          s_cmp_eq_u32 s61, 0
          s_cbranch_scc1 L_helper_end
          v_cmp_gt_u32 vcc, 4, v2
          v_mov_b32 v5, 0xffff
          v_cndmask_b32 v8, 0, v5, vcc
          v_xor_b32 v9, v5, v8
          v_lshlrev_b32 v10, 16, v8
          v_lshlrev_b32 v11, 16, v9
          v_and_b32 v6, 3, v0
          v_mul_u32_u24 v19, 0x5555, v6
          v_bfe_u32 v5, v0, 2, 1
          v_lshl_add_u32 v5, v5, 4, v1
          v_lshlrev_b32 v6, 2, v6
          v_lshl_add_u32 v245, v5, 4, v6
          v_add_u32 v245, {L_RED}, v245
          v_add_u32 v246, 640, v245
          s_cmp_eq_u32 s61, 2
          s_cbranch_scc1 L_T2''')
    a('s_cmp_eq_u32 s61, 3\ns_cbranch_scc1 L_R')
    a(f'''s_lshl_b32 s63, s4, 1
          s_add_u32 s63, s63, s64
          s_lshl_b32 s72, s63, 9
          s_mul_i32 s63, s63, 1792
          s_lshr_b32 s7, s5, 1
          s_lshl_b32 s7, s7, 8
          s_add_u32 s63, s63, s7
          s_add_u32 s63, s63, {W_Y}
          s_lshl_b32 s7, s60, 7
          s_add_u32 s72, s72, s7
          s_add_u32 s72, s72, {W_O}
          v_lshlrev_b32 v13, 4, v1
          v_lshlrev_b32 v4, 2, v0
          v_mov_b32 v16, 1''')
    for k in range(44, 48): a(f'v_mov_b32 v{k}, 0')
    ldswait(F_LAST, 4, 5, sleep=2)
    stamp(9)
    if T1LATE: t1loads(8)
    if T1W: ldswait(F_OCNT, T1W, 5, sleep=1)
    stamp(13)
    ldo = 'buffer_load_dwordx4 v[20:23], v13, s[16:19], s72 offen sc1'
    a(ldo + '\ns_nop 15\n' + ldo + '\ns_nop 15')
    L = poll_begin()
    a(f'''{ldo}
          s_waitcnt vmcnt(2)
          v_max3_u32 v24, v20, v21, v22
          v_max_u32 v24, v24, v23
          v_cmp_eq_u32 vcc, -1, v24''')
    poll_end(L, mask=False)
    stamp(10)
    if prof: a(f's_sub_u32 s7, {SPIN+1}, s30\nv_writelane_b32 v255, s7, 14')
    sbuild(36, 20, 20)
    sbuild(40, 21, 21); smf(44, 36, 64)
    sbuild(32, 22, 22); smf(44, 40, 72)
    sbuild(36, 23, 23); smf(44, 32, 80)
    smf(44, 36, 88)
    a(f'''ds_write_b128 v18, v[44:47]
          s_mov_b64 exec, 1
          ds_add_rtn_u32 v5, v7, v16 offset:{F_TCNT}
          s_mov_b64 exec, -1''')
    for x in range(2):
        for w in range(2): a(f'ds_read2st64_b32 v[{24+4*x+2*w}:{25+4*x+2*w}], v{245+x} offset0:{8*w} offset1:{8*w+4}')
    a('s_waitcnt lgkmcnt(0)\nv_readfirstlane_b32 s7, v5')
    pkadd(24, 24, 26); pkadd(28, 28, 30); pkadd(24, 24, 28)
    a('''s_cmp_lg_u32 s7, 3
         v_add_f32 v24, v24, v25
         s_cbranch_scc1 L_helper_end
         buffer_store_dword v24, v4, s[16:19], s63 offen sc1''')
    stamp(11)
    a('L_helper_end:')
    finish()

    a(f'''.p2align 6
          L_R:
          s_sub_u32 s7, s5, 24
          s_lshl_b32 s7, s7, 2
          s_add_u32 s7, s7, s60
          s_lshl_b32 s72, s4, 5
          s_add_u32 s7, s7, s72
          s_mul_i32 s72, s7, {PS}
          s_add_u32 s72, s72, {W_PART}
          s_lshl_b32 s63, s7, 5
          s_add_u32 s63, s63, {W_O}
          v_lshlrev_b32 v13, 4, v0
          v_and_b32 v4, 3, v0
          v_lshlrev_b32 v4, 3, v4
          v_lshrrev_b32 v5, 5, v0
          v_lshl_add_u32 v4, v5, 2, v4
          v_bfe_u32 v5, v0, 2, 3
          v_cmp_ne_u32 vcc, 0, v5
          v_cndmask_b32 v4, v4, v3, vcc''')
    ldswait(F_LAST, 4, 5, sleep=2)
    ldswait(F_P, 1, 5, sleep=1)
    a('s_mov_b32 s25, s7')
    stamp(9)
    if RW: ldswait(F_OCNT, RW, 5, sleep=1)
    stamp(13)
    ldr = 'buffer_load_dwordx4 v[20:23], v13, s[16:19], s72 offen sc1\nbuffer_load_dwordx4 v[24:27], v13, s[16:19], s72 offen offset:1024 sc1'
    a(ldr + '\ns_nop 15\ns_nop 15')
    L = poll_begin()
    a(ldr + '\ns_waitcnt vmcnt(2)')
    pkadd(28, 20, 24); pkadd(30, 22, 26)
    a('v_permlane32_swap_b32 v28, v30\nv_permlane32_swap_b32 v29, v31')
    pkadd(28, 28, 30)
    a('v_cmp_u_f32 vcc, v28, v29')
    poll_end(L, mask=False)
    stamp(10)
    if prof: a(f's_sub_u32 s7, {SPIN+1}, s30\nv_writelane_b32 v255, s7, 14')
    a(f'''v_add_f32_dpp v28, v28, v28 row_ror:4 {DPPF}
          v_add_f32_dpp v29, v29, v29 row_ror:4 {DPPF}
          v_add_f32_dpp v30, v28, v28 row_ror:8 {DPPF}
          v_add_f32_dpp v31, v29, v29 row_ror:8 {DPPF}
          v_add_f32_dpp v28, v28, v28 row_ror:8 {DPPF}
          v_add_f32_dpp v29, v29, v29 row_ror:8 {DPPF}
          v_permlane16_swap_b32 v28, v30
          v_permlane16_swap_b32 v29, v31''')
    pkadd(28, 28, 30)
    a('v_cvt_pk_bf16_f32 v28, v28, v29')
    store2(25, ['buffer_store_dword v28, v4, s[16:19], s63 offen'])
    stamp(11)
    finish()

    a('.p2align 6\nL_T2:')
    srd(24, 32, 896)
    a(f'''v_lshrrev_b32 v5, 5, v0
          v_and_b32 v6, 31, v0
          v_cmp_gt_u32 s[98:99], 28, v6
          s_mul_i32 s7, s60, 112
          v_lshl_add_u32 v12, v6, 2, s7
          v_mul_u32_u24 v13, 1792, v5
          v_lshl_add_u32 v13, v12, 2, v13
          v_cndmask_b32 v13, v3, v13, s[98:99]
          v_lshl_add_u32 v12, v5, 1, v12
          v_lshlrev_b32 v14, 1, v12
          v_lshlrev_b32 v15, 2, v12
          v_add_u32 v240, {L_X1}, v15
          v_cndmask_b32 v14, v3, v14, s[98:99]
          v_cndmask_b32 v15, v3, v15, s[98:99]
          v_mov_b32 v16, {L_X1 + 1792}
          v_cndmask_b32 v240, v16, v240, s[98:99]
          v_lshl_add_u32 v16, v6, 1, v5
          v_mul_u32_u24 v17, 37, v16
          v_lshrrev_b32 v17, 8, v17
          v_add_u32 v16, v16, v17
          s_lshl_b32 s7, s60, 9
          s_add_u32 s7, s7, {L_BC}
          v_lshl_add_u32 v16, v16, 2, s7
          v_lshl_add_u32 v17, v1, 5, s7
          s_mov_b32 s28, {W_MOD + 4*896}
          s_lshl_b32 s7, s62, 4
          v_and_b32 v61, 3, v0
          v_lshlrev_b32 v61, 2, v61
          v_lshrrev_b32 v5, 4, v0
          v_add3_u32 v61, v61, v5, s7
          v_lshrrev_b32 v62, 1, v61
          v_lshlrev_b32 v62, 3, v62
          s_mov_b32 s29, {W_MOD + 4*2240}''')
    ldswait(F_PROG, TRIGC, 5, sleep=8)
    a('buffer_load_dword v52, v14, s[24:27], 0 offen nt')
    L = poll_begin()
    a('''buffer_load_dwordx2 v[20:21], v15, s[16:19], s28 offen sc1
         buffer_load_dwordx2 v[22:23], v15, s[16:19], s28 offen offset:1792 sc1
         buffer_load_dwordx2 v[24:25], v15, s[16:19], s28 offen offset:3584 sc1
         buffer_load_dwordx2 v[26:27], v62, s[16:19], s29 offen sc1
         s_waitcnt vmcnt(0)''')
    tagchk([21, 23, 25]); a('s_and_b64 vcc, vcc, s[98:99]'); tagchk([27], first=False)
    poll_end(L, sleep=8, mask=False)
    a('v_mov_b32 v28, v52')
    unpack(52, 53, 28)
    unpack(54, 55, 20)
    unpack(58, 59, 22)
    unpack(56, 57, 24)
    a('v_add_f32 v56, 1.0, v56\nv_add_f32 v57, 1.0, v57')
    rnd2(56, 57, 28)
    a('v_and_b32 v28, 0xffff0000, v26\nv_lshlrev_b32 v26, 16, v26')
    a(f'''v_and_b32 v5, 1, v61
          v_cmp_eq_u32 vcc, 1, v5
          v_cndmask_b32 v26, v26, v28, vcc
          v_lshlrev_b32 v5, 3, v0
          ds_write_b64 v5, v[26:27] offset:{L_GB}
          s_lshl_b32 s7, s60, 3
          s_add_u32 s7, s7, {L_ST2}
          v_bfe_u32 v6, v0, 4, 1
          v_lshl_add_u32 v243, v6, 2, s7
          s_lshl_b32 s7, s60, 11
          s_add_u32 s7, s7, {L_RED}
          v_lshl_add_u32 v244, v0, 4, s7
          v_lshrrev_b32 v5, 5, v0
          v_bfe_u32 v6, v0, 3, 1
          v_cmp_ne_u32 vcc, v5, v6
          v_lshrrev_b32 v247, 1, v2
          v_mul_u32_u24 v247, 3584, v247
          v_lshl_add_u32 v247, v5, 6, v247
          v_and_b32 v6, 1, v0
          v_lshl_add_u32 v247, v6, 5, v247
          v_bfe_u32 v6, v0, 4, 1
          v_lshl_add_u32 v247, v6, 4, v247
          v_cndmask_b32 v247, v247, v3, vcc
          s_mul_i32 s63, s60, {8*3584}
          s_lshl_b32 s7, s62, 7
          s_add_u32 s63, s63, s7
          s_add_u32 s63, s63, {W_Z}
          s_add_u32 s65, s63, {4*3584}
          v_mov_b32 v248, {INV448}
          v_mov_b32 v249, {INV448}''')
    for n in range(8): a(f's_mov_b32 s{72+n}, {W_Y + 3584*n}\ns_mov_b64 s[{80+2*n}:{81+2*n}], -1')
    ldswait(F_LAST, 4, 5, sleep=1)
    stamp(9)
    cstamp(6)
    for ld, nx in tl2[44 - NLATE:]:
        a(ld); a(nx)
    if prof: a('s_waitcnt vmcnt(0)')
    stamp(10)
    ldswait(F_OCNT, 4, 5, sleep=1)
    stamp(2)
    L = poll_begin()
    for n in range(8):
        a(f's_cmp_eq_u64 s[{80+2*n}:{81+2*n}], 0\ns_cbranch_scc1 {L}_s{n}')
        a(f'buffer_load_dwordx4 v[{20+4*n}:{23+4*n}], v13, s[16:19], s{72+n} offen sc1\n{L}_s{n}:')
    a('s_waitcnt vmcnt(0)')
    for n in range(1, 8):
        for k in (0, 2): pkadd(60 + k, 20 + k if n == 1 else 60 + k, 20 + 4 * n + k)
    a('v_permlane32_swap_b32 v60, v62\nv_permlane32_swap_b32 v61, v63')
    pkadd(60, 60, 62)
    a(f'v_cmp_u_f32 vcc, v60, v61\ns_cbranch_vccz {L}_d')
    for n in range(8): a(f'v_cmp_eq_u32 s[{80+2*n}:{81+2*n}], -1, v{20+4*n}')
    a(f's_and_b32 s7, s30, 15\ns_cbranch_scc1 {L}_k')
    for n in range(8): a(f's_mov_b32 s{80+2*n}, 1')
    a(f'{L}_k:')
    spin_back(L, T2SL)
    a(f'{L}_d:')
    stamp(11)
    cstamp(4)
    if prof: a(f's_sub_u32 s7, {SPIN+1}, s30\nv_writelane_b32 v255, s7, 3')
    rnd2(60, 61, 22)
    pkop('mul', 60, 54, 60)
    rnd2(60, 61, 22)
    pkadd(52, 52, 60)
    rnd2(52, 53, 22)
    a(f'''v_mul_f32 v25, v52, v52
          v_add_f32 v24, v52, v53
          v_fmac_f32 v25, v53, v53
          ds_write_b64 v240, v[52:53]
          v_mov_b32 v44, 0
          v_permlane16_swap_b32 v24, v25
          v_add_f32 v24, v24, v25
          v_mov_b32 v45, 0
          v_mov_b32 v46, 0
          v_add_f32_dpp v24, v24, v24 quad_perm:[1,0,3,2] {DPPF}
          v_mov_b32 v47, 0
          v_mov_b32 v48, 0
          v_add_f32_dpp v24, v24, v24 quad_perm:[2,3,0,1] {DPPF}
          v_mov_b32 v49, 0
          v_mov_b32 v50, 0
          v_add_f32_dpp v24, v24, v24 row_half_mirror {DPPF}
          v_mov_b32 v51, 0
          s_nop 0
          v_add_f32_dpp v25, v24, v24 row_mirror {DPPF}
          v_add_f32_dpp v24, v24, v24 row_mirror {DPPF}
          v_permlane32_swap_b32 v24, v25
          v_add_f32 v24, v24, v25
          s_mov_b64 exec, 0x10001
          ds_write_b32 v243, v24
          s_mov_b64 exec, -1
          s_waitcnt lgkmcnt(0)
          s_barrier''')
    cstamp(7)
    a(f'''ds_read_b128 v[24:27], v7 offset:{L_ST2}
          ds_read_b128 v[28:31], v7 offset:{L_ST2+16}
          s_waitcnt lgkmcnt(1)''')
    pkadd(24, 24, 26); a('s_waitcnt lgkmcnt(0)'); pkadd(28, 28, 30); pkadd(24, 24, 28)
    pkop('mul', 24, 24, 248)
    a(f'''v_fma_f32 v25, -v24, v24, v25
          v_max_f32 v25, 0, v25
          v_cvt_pk_bf16_f32 v22, v24, v25
          v_and_b32 v26, 0xffff0000, v22
          v_add_f32 v26, {EPS}, v26
          v_cvt_pk_bf16_f32 v26, v26, v26
          v_lshlrev_b32 v26, 16, v26
          v_sqrt_f32 v26, v26
          v_lshlrev_b32 v24, 16, v22
          v_cvt_pk_bf16_f32 v26, v26, v26
          v_lshlrev_b32 v26, 16, v26
          v_rcp_f32 v26, v26''')
    pkop('add', 52, 52, 24, 'op_sel_hi:[1,0] neg_lo:[0,1] neg_hi:[0,1]')
    rnd2(52, 53, 22)
    pkop('mul', 52, 52, 26, 'op_sel_hi:[1,0]')
    rnd2(52, 53, 22)
    pkop('mul', 52, 52, 56)
    rnd2(52, 53, 22)
    pkadd(52, 52, 58)
    a('''v_cvt_pk_bf16_f32 v52, v52, v53
         ds_write_b32 v16, v52
         ds_read_b128 v[20:23], v17
         ds_read_b128 v[24:27], v17 offset:16''')
    for k in range(56, 64): a(f'v_mov_b32 v{k}, 0')
    def smf_pairs(n, P, acc0, acc1, B0_, B1_, bstep, waits):
        def half(t, h):
            if t >= n: return
            if h == 0 and t in waits: a(f's_waitcnt lgkmcnt({waits[t]})')
            ab = 36 + 4 * (t & 1) + 2 * h
            a(f'v_and_b32 v{ab}, v{P+t}, v{8+2*h}\nv_and_b32 v{ab+1}, v{P+t}, v{9+2*h}')
        half(0, 0); half(0, 1); half(1, 0)
        for t in range(n):
            ab = 36 + 4 * (t & 1)
            smf(acc0, ab, B0_ + bstep * t)
            half(t + 1, 1)
            smf(acc1, ab, B1_ + bstep * t)
            half(t + 2, 0)
    smf_pairs(7, 20, 44, 48, 64, 120, 8, {0: 1, 4: 0})
    a('''ds_write_b128 v244, v[44:47]
         ds_write_b128 v244, v[48:51] offset:1024
         s_waitcnt lgkmcnt(0)
         s_barrier''')
    cstamp(8)
    for w in range(4):
        for x in range(2):
            r = 20 + 4 * w + 2 * x
            a(f'ds_read2st64_b32 v[{r}:{r+1}], v{245+x} offset0:{8*w} offset1:{8*w+4}')
    for n in range(1, 8):
        a(f's_waitcnt lgkmcnt({7-n})'); pkadd(20, 20, 20 + 2 * n)
    a(f'''v_cvt_pk_bf16_f32 v21, v20, v21
          v_lshlrev_b32 v20, 16, v21
          v_mul_f32 v22, {NLOG2E}, v20
          v_exp_f32 v22, v22
          v_and_b32 v21, 0xffff0000, v21
          v_add_f32 v22, 1.0, v22
          v_rcp_f32 v22, v22
          v_mul_f32 v20, v20, v22''')
    rnd1(20)
    a(f'''v_mul_f32 v20, v20, v21
          v_mov_b32_dpp v21, v20 quad_perm:[1,1,3,3] {DPPF}
          v_cvt_pk_bf16_f32 v20, v20, v21''')
    for t in range(4): a(f'ds_swizzle_b32 v{24+t}, v20 offset:swizzle(BROADCAST,8,{2*t})')
    smf_pairs(4, 24, 56, 60, 176, 184, 16, {0: 3, 1: 2, 2: 1, 3: 0})
    a('''buffer_store_dwordx4 v[56:59], v247, s[16:19], s63 offen sc1
         buffer_store_dwordx4 v[60:63], v247, s[16:19], s65 offen sc1''')
    stamp(12)
    cstamp(5)
    finish()

    a('.p2align 6\nL_T3:')
    srd(24, 54, 896)
    a(f'''s_mov_b64 exec, -1
          v_mov_b32 v3, {BIG}
          s_lshl_b32 s7, s69, 4
          v_and_b32 v5, 3, v0
          v_lshlrev_b32 v5, 2, v5
          v_lshrrev_b32 v6, 4, v0
          v_add3_u32 v5, v5, v6, s7
          v_lshlrev_b32 v8, 2, v5
          v_lshlrev_b32 v9, 1, v5
          v_bfe_u32 v5, v0, 2, 2
          v_cmp_ne_u32 vcc, 0, v5
          v_cndmask_b32 v9, v9, v3, vcc
          v_lshlrev_b32 v10, 4, v0
          v_cmp_lt_u32 vcc, 31, v0
          v_cndmask_b32 v11, v10, v3, vcc
          v_lshlrev_b32 v5, 3, v0
          s_mul_i32 s28, s69, 3584
          s_add_u32 s28, s28, {W_Z}''')
    for k in range(64, 80): a(f'v_mov_b32 v{k}, -1')
    a(f'''s_barrier
          ds_read_b32 v30, v8 offset:{L_X1}
          ds_read_b64 v[28:29], v5 offset:{L_GB}
          s_waitcnt vmcnt(0) lgkmcnt(0)
          s_barrier''')
    L = poll_begin()
    for n in range(4): a(f'buffer_load_dwordx4 v[{64+4*n}:{67+4*n}], v{10 if n < 3 else 11}, s[16:19], s28 offen offset:{1024*n} sc1')
    a(f's_waitcnt vmcnt({4*(K3-1)})')
    for n in range(1, 4):
        for k in (0, 2): pkadd(20 + k, 64 + k if n == 1 else 20 + k, 64 + 4 * n + k)
    a('v_permlane32_swap_b32 v20, v22\nv_permlane32_swap_b32 v21, v23')
    pkadd(20, 20, 22)
    a('v_cmp_u_f32 vcc, v20, v21')
    poll_end(L, mask=False)
    stamp(13)
    a(f'''v_permlane16_swap_b32 v20, v21
          v_add_f32 v20, v20, v21
          v_add_f32_dpp v20, v20, v20 row_ror:4 {DPPF}
          v_add_f32_dpp v20, v20, v20 row_ror:8 {DPPF}''')
    rnd1(20)
    a('v_mul_f32 v20, v28, v20')
    rnd1(20)
    a('''v_add_f32 v20, v30, v20
         v_cvt_pk_bf16_f32 v20, v20, v20
         buffer_store_short v20, v9, s[24:27], 0 offen
         s_cmp_lg_u32 s69, 0
         s_cbranch_scc1 L_T3_end
         s_mov_b64 exec, 1
         buffer_store_dword v29, v7, s[16:19], 0 offen sc1''')
    a('L_T3_end:')
    stamp(14)
    finish()
    if prof:
        a('L_prof_end:\ns_mov_b64 exec, -1\ns_getreg_b32 s95, hwreg(HW_REG_XCC_ID)\nv_writelane_b32 v255, s95, 15')
        if cal:
            X, wg, wv, k = cal
            a(f's_cmp_lg_u32 s2, {wg}\ns_cbranch_scc1 L_exit\ns_cmp_lg_u32 s3, {wv}\ns_cbranch_scc1 L_exit')
            a(f'v_readlane_b32 s7, v255, {k}\ns_add_u32 s7, s7, {X*100}')
            a('L_cal:\ns_memrealtime s[96:97]\ns_waitcnt lgkmcnt(0)\ns_sub_u32 s96, s96, s7\ns_cmp_lt_i32 s96, 0\ns_cbranch_scc1 L_cal\ns_branch L_exit')
        a(f'''s_lshl_b32 s7, s2, 3
              s_add_u32 s7, s7, s3
              s_lshl_b32 s7, s7, 6
              s_add_u32 s7, s7, {W_PROF}
              v_mbcnt_lo_u32_b32 v2, -1, 0
              v_lshlrev_b32 v2, 2, v2
              s_mov_b32 s18, 0x400000
              s_mov_b64 exec, 0xffff
              buffer_store_dword v255, v2, s[16:19], s7 offen''')
    a('L_exit:\ns_endpgm\nL_code_end:')
    body = a.text()
    head = open('cdna_kernels/' + NAME + '.s.ref').read().split('; Override launch')[0]
    head += f'; @launch grid=(256,1,1) block=(512,1,1) lds={LDS_BYTES}\n'
    return head, body

def assemble_text(head, body, code_q):
    return head + f'''.amdgcn_target "amdgcn-amd-amdhsa--gfx950"
.text
.set CODE_Q, {code_q}
.globl {NAME}_kernel
.p2align 8
.type {NAME}_kernel,@function
''' + body + f'''.fill 1024, 4, 0xbf810000
.section .rodata,"a"
.p2align 6
.amdhsa_kernel {NAME}_kernel
  .amdhsa_next_free_vgpr 256
  .amdhsa_next_free_sgpr 102
  .amdhsa_accum_offset 256
  .amdhsa_group_segment_fixed_size 0
  .amdhsa_kernarg_size 112
  .amdhsa_user_sgpr_count 2
  .amdhsa_user_sgpr_kernarg_segment_ptr 1
  .amdhsa_system_sgpr_workgroup_id_x 1
.end_amdhsa_kernel
'''

def code_size(text):
    import subprocess, re, tempfile
    d = tempfile.mkdtemp()
    open(d + '/k.s', 'w').write(text)
    r = subprocess.run(['clang', '-x', 'assembler', '-target', 'amdgcn-amd-amdhsa', '-mcpu=gfx950', '-c', d + '/k.s', '-o', d + '/k.o'], capture_output=True, text=True)
    if r.returncode: print(r.stderr[:3000]); raise SystemExit(1)
    o = subprocess.run(['llvm-objdump', '-t', d + '/k.o'], capture_output=True, text=True).stdout
    return int(re.search(r'([0-9a-f]+) .* L_code_end', o).group(1), 16)

def full(**kw):
    head, body = gen(**kw)
    sz = code_size(assemble_text(head, body, 4096))
    q = -(-(sz + 128) // 4096) * 1024
    return assemble_text(head, body, q)

if __name__ == '__main__':
    kw = eval('dict(' + (sys.argv[2] if len(sys.argv) > 2 else '') + ')')
    t = full(**kw)
    open(sys.argv[1], 'w').write(t)
    print('code bytes', code_size(t), 'lines', t.count('\n'))
```

```python
import sys
from collections import deque
sys.path.insert(0, 'work')
from asmlib import Asm

NAME = 'adaLN_cond__gqa_block_cached__swiglu_ffn__decode'
W_EPOCH = 0
W_MOD = 0x1000
W_Q = 0x4000
W_ID = 0x8000
W_RS = 0x8400
W_HM = 0x8800
W_STATS = 0x10000
W_CNT = 0x18000
W_PART = 0x20000
PS = 2176
W_O = 0xa8000
W_H = 0xe8000
W_Y = 0xaa000
W_Z = 0xb2000
W_END = W_H + 112 * 64
W_PROF = 0x200000
F_Q, F_SCNT, F_P, F_PROG, F_PCNT, F_OCNT, F_TCNT, F_LAST, F_PAIR, F_M, F_RS, F_CK, F_CTL = 0, 4, 8, 12, 16, 20, 24, 28, 32, 40, 44, 64, 128
L_Q = 0x100
L_BC = 0x800
L_RED = 0x1000
L_SC = 0x3000
HS = 4096 + 64
L_X1 = 0x5100
L_ST2 = 0x5900
L_GB = 0x5a00
L_RED2 = 0x6000
L_EXT = 0x7000
BIG = 0x40000000
NLOG2E = 0xbfb8aa3b
CEXP = 0x3db8aa3b
INV448 = 0x3b124925
EPS = 0x3727c5ac
SPIN = 0x40000
DPPF = 'row_mask:0xf bank_mask:0xf'

def gen(D=5, R=54, E=28, CATCH=4, gmap='xcd', prof=False, cal=None, UNTH=0, wpol='nt', codepf=True,
        QSL=4, SSL=8, MSL=2, QTRIG=40, LASTI=255, TRIGC=200, CK=(), KG=(), CLEN=24, CDLY=8, KW=3, RP='sc1', PP='sc1', GP='sc1', TAB=None, BALL=0, EARLYBAR=True, TRIGR=214, TRIGS=232, HSL=4, HSRC='o', CROT=True, T1SPLIT=8, T1EARLY=0, FASTENTRY=True, SETUPAT=24, ZTAG=False, BIGB=0, PRET=None, PRE0=None, PREB=None, ZMODE='ack', HLIM=8, CNTRIG=2, K3=5, T2BIAS=0, R0=28, T1D=1, T2D=2, T2D4=3, NLATE=16, T1LATE=False, T1W=4, RW=4, SH=32, CSL=2, X='', P1D=5, P2D=3, P3D=2,
        B0=48, BP1=0, BP2=0, BP3=0, BT2=0, force_slow=False, T1SL=0, T2SL=0):
    a = Asm()
    if cal: prof = True
    LDS_BYTES = L_EXT + 4 * E * 1024
    ZS = 7168 if ZTAG else 3584
    W_ZEND = W_Z + 28 * ZS
    if ZTAG: K3 = 1
    BMAX = B0 + max(BP1, BP2, BP3, BALL)
    def stamp(k):
        if prof: a(f's_memrealtime s[96:97]\ns_waitcnt lgkmcnt(0)\nv_writelane_b32 v255, s96, {k}')
    def cstamp(k):
        if prof: a(f's_memtime s[96:97]\ns_waitcnt lgkmcnt(0)\nv_writelane_b32 v255, s96, {k}')
    def finish(): a('s_branch L_prof_end' if prof else 's_endpgm')
    def srd(d, lo, size):
        a(f's_mov_b32 s{d}, s{lo}\ns_mov_b32 s{d+1}, s{lo+1}\ns_mov_b32 s{d+2}, {size}\ns_mov_b32 s{d+3}, 0x20000')
    def masks():
        a('''v_and_b32 v6, 1, v0
             v_lshlrev_b32 v6, 4, v6
             v_mov_b32 v5, 0xffff
             v_lshlrev_b32 v5, v6, v5
             v_bfe_u32 v6, v0, 1, 2''')
        for j in range(4):
            a(f'v_cmp_eq_u32 vcc, {j}, v6\nv_cndmask_b32 v{8+j}, 0, v5, vcc')
    def abuild(dst, src):
        for j in range(4): a(f'v_and_b32 v{dst+j}, v{src}, v{8+j}')
    def mfma(acc, A, B, first):
        c = '0' if first else f'v[{acc}:{acc+3}]'
        a(f'v_mfma_f32_16x16x32_bf16 v[{acc}:{acc+3}], v[{A}:{A+3}], v[{B}:{B+3}], {c}')
    def pkadd(d, x, y): a(f'v_pk_add_f32 v[{d}:{d+1}], v[{x}:{x+1}], v[{y}:{y+1}]')
    def ldswait(flag, val, tmp, extra='', sleep=1):
        L = a.uniq('L_w'); Ld = L + '_d'
        a(f's_mov_b32 s30, {SPIN}\n{L}:\nds_read_b32 v{tmp}, v7 offset:{flag}')
        a(extra)
        a(f'''s_waitcnt lgkmcnt(0)
              v_readfirstlane_b32 s7, v{tmp}
              s_cmp_ge_u32 s7, {val}
              s_cbranch_scc1 {Ld}
              s_sleep {sleep}
              s_sub_u32 s30, s30, 1
              s_cmp_lg_u32 s30, 0
              s_cbranch_scc1 {L}
              {Ld}:''')
    def ldsflag(flag, op='ds_write_b32', val='1'):
        a(f'v_mov_b32 v6, {val}\ns_mov_b64 exec, 1\n{op} v7, v6 offset:{flag}\ns_mov_b64 exec, -1')
    def allred(op, regs, tmps, width):
        steps = ['quad_perm:[1,0,3,2]', 'quad_perm:[2,3,0,1]', 'row_half_mirror', 'row_mirror']
        n = {8: 3, 16: 4, 32: 4, 64: 4}[width]
        for st_ in steps[:n]:
            for r in regs: a(f'{op}_dpp v{r}, v{r}, v{r} {st_} {DPPF}')
        for wd, ins in ((32, 'v_permlane16_swap_b32'), (64, 'v_permlane32_swap_b32')):
            if width >= wd:
                for r, t in zip(regs, tmps): a(f'v_mov_b32 v{t}, v{r}')
                for r, t in zip(regs, tmps): a(f'{ins} v{r}, v{t}')
                for r, t in zip(regs, tmps): a(f'{op} v{r}, v{r}, v{t}')
    def rnd2(x, y, t):
        a(f'v_cvt_pk_bf16_f32 v{t}, v{x}, v{y}\nv_lshlrev_b32 v{x}, 16, v{t}\nv_and_b32 v{y}, 0xffff0000, v{t}')
    def rnd1(x):
        a(f'v_cvt_pk_bf16_f32 v{x}, v{x}, v{x}\nv_lshlrev_b32 v{x}, 16, v{x}')
    def unpack(x, y, src):
        a(f'v_lshlrev_b32 v{x}, 16, v{src}\nv_and_b32 v{y}, 0xffff0000, v{src}')
    def poll_begin():
        L = a.uniq('L_p')
        a(f's_mov_b32 s30, {SPIN}\n{L}:')
        return L
    def poll_end(L, sleep=0, mask=True):
        Ld = L + '_d'
        a(f's_cbranch_vccz {Ld}')
        if sleep: a(f's_sleep {sleep}')
        if mask: a('s_mov_b64 exec, vcc')
        a(f's_sub_u32 s30, s30, 1\ns_cmp_lg_u32 s30, 0\ns_cbranch_scc1 {L}')
        if mask: a('s_mov_b64 exec, -1')
        a(f'{Ld}:')
    def tagchk(regs, first=True):
        for k, r in enumerate(regs):
            if k == 0 and first: a(f'v_cmp_ne_u32 vcc, s31, v{r}')
            else: a(f'v_cmp_ne_u32 s[100:101], s31, v{r}\ns_or_b64 vcc, vcc, s[100:101]')
    def store2(flagreg, lines):
        L = a.uniq('L_s')
        a(f's_cmp_eq_u32 s{flagreg}, 2\ns_cbranch_scc0 {L}_slow')
        for l in lines: a(l)
        a(f's_branch {L}_done\n{L}_slow:')
        for l in lines: a(l + ' sc1')
        a(f'{L}_done:')
    def trole():
        L = a.uniq('L_r')
        a(f'''s_mov_b32 s61, 1
              s_cmp_lt_u32 s5, 14
              s_cbranch_scc1 {L}
              s_sub_u32 s62, s5, 14
              s_lshl_b32 s62, s62, 3
              s_add_u32 s62, s62, s4
              s_cmp_lt_u32 s62, 28
              s_cselect_b32 s61, 2, 0
              s_cmp_ge_u32 s5, 24
              s_cselect_b32 s61, 3, s61
              s_cmp_eq_u32 s5, 18
              s_cselect_b32 s61, 4, s61
              {L}:''')

    a(f'{NAME}_kernel:')
    if FASTENTRY:
        assert gmap == 'xcd' or True
        a('''s_load_dwordx2 s[8:9], s[0:1], 8
             v_readfirstlane_b32 s3, v0
             v_and_b32 v0, 63, v0''')
        if prof: a('v_mov_b32 v255, 0\ns_memrealtime s[96:97]')
        if gmap == 'xcd': a('s_and_b32 s4, s2, 7\ns_lshr_b32 s5, s2, 3')
        else: a('s_lshr_b32 s4, s2, 5\ns_and_b32 s5, s2, 31')
        a('''v_lshrrev_b32 v5, 4, v0
             v_and_b32 v1, 3, v0
             v_lshlrev_b32 v1, 4, v1
             s_lshl_b32 s6, s4, 5
             s_add_u32 s6, s6, s5
             v_lshl_add_u32 v1, v5, 6, v1
             v_and_b32 v6, 12, v0
             s_lshl_b32 s28, s3, 6
             s_lshr_b32 s3, s3, 6
             v_lshl_add_u32 v1, v6, 7, v1
             s_lshl_b32 s7, s6, 19
             s_bfm_b32 s10, 1, 19
             s_mov_b32 s11, 0x20000
             s_cmp_ge_u32 s3, 4
             s_cbranch_scc1 L_hbar
             s_cmpk_ge_u32 s2, 256
             s_cbranch_scc1 L_exit
             s_waitcnt lgkmcnt(0)
             s_add_u32 s8, s8, s7
             s_addc_u32 s9, s9, 0''')
    else:
        a('''s_load_dwordx16 s[32:47], s[0:1], 0
         s_load_dwordx8 s[48:55], s[0:1], 64
         s_load_dwordx4 s[56:59], s[0:1], 96
         s_cmp_ge_u32 s2, 256
         s_cbranch_scc1 L_exit
         v_lshrrev_b32 v1, 6, v0
         v_and_b32 v0, 63, v0
         v_readfirstlane_b32 s3, v1
         v_mov_b32 v7, 0
         v_lshlrev_b32 v2, 2, v0
         ds_write_b32 v2, v7''')
        if gmap == 'xcd': a('s_and_b32 s4, s2, 7\ns_lshr_b32 s5, s2, 3')
        else: a('s_lshr_b32 s4, s2, 5\ns_and_b32 s5, s2, 31')
        a('''s_lshl_b32 s6, s4, 5
         s_add_u32 s6, s6, s5
         s_lshl_b32 s7, s6, 19
         v_lshrrev_b32 v5, 4, v0
         v_bfe_u32 v6, v0, 2, 2
         v_and_b32 v1, 3, v0
         v_lshlrev_b32 v1, 4, v1
         v_lshl_add_u32 v1, v5, 6, v1
         v_lshl_add_u32 v1, v6, 9, v1
         s_lshl_b32 s28, s3, 12
         s_mov_b32 s10, 0x80000
         s_mov_b32 s11, 0x20000''')
        if prof: a('v_mov_b32 v255, 0\ns_memrealtime s[96:97]')
        a('''s_waitcnt lgkmcnt(0)
         s_add_u32 s8, s34, s7
         s_addc_u32 s9, s35, 0''')
        if prof: a('v_writelane_b32 v255, s96, 0')
        if EARLYBAR: a('s_barrier\ns_cmp_ge_u32 s3, 4\ns_cbranch_scc1 L_helper')
        else: a('s_cmp_ge_u32 s3, 4\ns_cbranch_scc1 L_hbar')


    RB = 36
    st = dict(issued=0, done=-1, lds=0)
    free = deque(RB + 4 * k for k in range(R))
    loc = {}; rdseq = {}
    progs = sorted(set([QTRIG, TRIGC, TRIGR, TRIGS]))
    assert min(LASTI, TRIGC) >= 128 + R
    C0 = (CK[0] + CDLY) if CK else 1000
    def depth(i): return D + 1 if (B0 <= i < BMAX or i >= C0) else D
    def vwait(n):
        a(f's_waitcnt vmcnt({n})'); st['done'] = max(st['done'], st['issued'] - 1 - n)
    def inlds(i): return R <= i < R + E
    def can_issue(): return st['issued'] < 256 and (inlds(st['issued']) or len(free) > 0)
    def issue():
        i = st['issued']; d = depth(i)
        if i >= d and i < 256 - UNTH:
            if inlds(i): a(f's_add_u32 m0, s63, {(i-R)*1024 - (((i>>1)&1)*2048 + (i&1)*256) + 4096}')
            if d > D:
                L = a.uniq('L_b')
                a(f's_cmpk_gt_u32 s61, {i}\ns_cbranch_scc1 {L}')
                if i >= C0: a(f's_cmpk_le_u32 s60, {i}\ns_cbranch_scc1 {L}_n\ns_waitcnt vmcnt({D-2})\n{L}_n:')
                a(f's_waitcnt vmcnt({D-1})\n{L}:')
            if st['done'] < i - d: vwait(d - 1)
        if i == D: stamp(8)
        if i in (208, 232, 244): stamp({208: 9, 232: 10, 244: 11}[i])
        if i < 128:
            off = ((i >> 1) & 1) * 2048 + (i & 1) * 256
            if inlds(i):
                a(f'buffer_load_dwordx4 v1, s[8:11], s28 offen offset:{off} nt lds')
            else:
                r = loc[i] = free.popleft()
                a(f'buffer_load_dwordx4 v[{r}:{r+3}], v1, s[8:11], s28 offen offset:{off} nt')
            if i % 4 == 3 and i < 127: a('s_add_u32 s28, s28, 0x4000')
        else:
            r = loc[i] = free.popleft()
            a(f'buffer_load_dwordx4 v[{r}:{r+3}], v2, s[12:15], s29 offen offset:{(i&1)*2048} nt')
            if i % 4 == 1: a('s_add_u32 s29, s29, 0x1000')
            if i % 4 == 3 and i < 255: a('s_add_u32 s29, s29, 0x3000')
        st['issued'] += 1
        if i in progs:
            ldsflag(F_PROG, 'ds_max_u32', i); st['lds'] += 1
        if i == LASTI: ldsflag(F_LAST, 'ds_add_u32')
        for n, c in enumerate(CK):
            for role, pos in ((0, c), (1, c + T2BIAS)) if T2BIAS else ((None, c),):
                if i not in (pos, pos + CDLY - 2, pos + CDLY - 1): continue
                L = a.uniq('L_c')
                if role is not None: a(f's_cmp_lg_u32 s64, {role}\ns_cbranch_scc1 {L}')
                if i == pos:
                    a(f'v_mov_b32 v6, 1\ns_mov_b64 exec, 1\nds_add_rtn_u32 v253, v7, v6 offset:{F_CK+4*n}\ns_mov_b64 exec, -1')
                elif i == pos + CDLY - 2:
                    a(f'ds_read_b32 v254, v7 offset:{F_CTL+4*n}')
                else:
                    a(f'''s_waitcnt lgkmcnt(0)
                          v_readfirstlane_b32 s7, v253
                          v_readfirstlane_b32 s65, v254
                          s_mul_i32 s7, s7, {KW}
                          s_sub_u32 s7, s7, {(3*KW)//2}
                          s_add_u32 s7, s7, s65
                          s_add_u32 s61, s7, {i+1}
                          s_sub_u32 s60, {i+1}, s7''')
                a(f'{L}:')
    def ensure(i):
        if st['done'] < i: vwait(st['issued'] - 1 - i)
    for i in range(D): issue()
    if FASTENTRY:
        a('''L_hbar:
             s_cmpk_ge_u32 s2, 256
             s_cbranch_scc1 L_exit
             s_load_dwordx16 s[32:47], s[0:1], 0
             s_load_dwordx8 s[48:55], s[0:1], 64
             s_load_dwordx4 s[56:59], s[0:1], 96
             v_mov_b32 v7, 0
             v_lshlrev_b32 v2, 2, v0
             ds_write_b32 v2, v7
             v_lshrrev_b32 v6, 2, v6
             s_waitcnt lgkmcnt(0)''')
        if prof: a('v_writelane_b32 v255, s96, 0')
        a('s_barrier\ns_cmp_ge_u32 s3, 4\ns_cbranch_scc1 L_helper')
        while st['issued'] < SETUPAT: issue()
    elif not EARLYBAR: a('L_hbar:\ns_barrier\ns_cmp_ge_u32 s3, 4\ns_cbranch_scc1 L_helper')
    a(f'''s_add_u32 s12, s36, s7
          s_addc_u32 s13, s37, 0
          s_mov_b32 s14, 0x80000
          s_mov_b32 s15, 0x20000
          s_and_b32 s24, s3, 1
          s_lshr_b32 s25, s3, 1
          s_lshl_b32 s29, s25, 13
          s_lshl_b32 s7, s24, 8
          s_add_u32 s29, s29, s7
          v_and_b32 v2, 15, v0
          v_lshlrev_b32 v2, 4, v2
          v_lshl_add_u32 v2, v5, 9, v2
          s_lshl_b32 s7, s25, 11
          s_add_u32 s7, s7, {L_SC}
          v_bfe_u32 v4, v0, 3, 1
          v_mul_u32_u24 v4, {HS}, v4
          v_lshl_add_u32 v4, v5, 4, v4
          v_add_u32 v4, s7, v4
          s_lshl_b32 s26, s24, 3
          s_add_u32 s7, s7, s26
          v_and_b32 v3, 1, v5
          v_mul_u32_u24 v3, {HS}, v3
          v_lshl_add_u32 v3, v6, 4, v3
          v_lshrrev_b32 v12, 5, v0
          v_lshl_add_u32 v3, v12, 2, v3
          v_add_u32 v3, s7, v3
          v_bfe_u32 v12, v0, 2, 1
          v_lshlrev_b32 v12, 9, v12
          v_lshl_add_u32 v12, v5, 6, v12
          v_and_b32 v13, 3, v0
          v_lshl_add_u32 v12, v13, 4, v12
          s_mul_i32 s63, s3, {E*1024}
          s_add_u32 s63, s63, {L_EXT}
          v_lshl_add_u32 v252, v0, 4, s63
          s_sub_u32 s63, s63, 4096''')
    srd(16, 58, W_END)
    masks()
    trole()
    a(f'''s_cmp_eq_u32 s61, 2
          s_cselect_b32 s64, 1, 0
          s_mov_b32 s69, s62
          s_mov_b32 s60, 0
          s_cmp_ge_u32 s2, {256-106}
          s_cselect_b32 s7, {BP3}, {BALL}
          s_cmp_ge_u32 s2, {256-78}
          s_cselect_b32 s7, {BP2}, s7
          s_cmp_ge_u32 s2, {256-14}
          s_cselect_b32 s7, {BP1}, s7
          s_add_u32 s61, s7, {B0}''')
    while st['issued'] < R + E: issue()
    stamp(1)
    ldswait(F_Q, 0 if 's' in X else 1, 5, extra=f'ds_read_b128 v[28:31], v12 offset:{L_Q}\nds_read_b128 v[32:35], v12 offset:{L_Q+256}')
    stamp(2)
    a('v_bfe_u32 v5, v0, 3, 1\nv_cmp_eq_u32 vcc, 0, v5')
    for k in range(8): a(f'v_cndmask_b32 v{20+k}, 0, v{28+k}, vcc')
    a('v_cmp_eq_u32 vcc, 1, v5')
    for k in range(8): a(f'v_cndmask_b32 v{28+k}, 0, v{28+k}, vcc')
    def post_group(gm):
        d = 12 + 4 * (gm & 1)
        a(f'''v_mov_b32_dpp v5, v{d} quad_perm:[0,0,0,0] {DPPF}
              v_add_f32_dpp v5, v{d+1}, v5 quad_perm:[1,1,1,1] {DPPF}
              v_add_f32_dpp v5, v{d+2}, v5 quad_perm:[2,2,2,2] {DPPF}
              v_add_f32_dpp v5, v{d+3}, v5 quad_perm:[3,3,3,3] {DPPF}
              ds_write_b32 v3, v5 offset:{gm*64}''')
        st['lds'] += 1
    def consumeK(i):
        k = i + 4
        if inlds(k):
            ensure(k)
            r = loc[k] = free.popleft()
            a(f'ds_read_b128 v[{r}:{r+3}], v252 offset:{(k-R)*1024}')
            rdseq[k] = st['lds']; st['lds'] += 1
        if inlds(i): a(f's_waitcnt lgkmcnt({min(15, st["lds"] - rdseq[i] - 1)})')
        else: ensure(i)
        gm, q = i >> 2, i & 3
        mfma(12 + 4 * (gm & 1), 20 + 4 * q, loc[i], q == 0)
        free.append(loc[i])
        if q == 2 and gm > 0: post_group(gm - 1)
        if i == 127:
            post_group(31)
            ldsflag(F_SCNT, 'ds_add_u32')
    def consumeV(i):
        t = i - 128
        ab = 20 + 4 * (t & 1); pb = 28 + 4 * ((t >> 2) & 1)
        if t & 3 == 0:
            a('s_waitcnt lgkmcnt(0)')
            if t + 4 < 128:
                pn = 28 + 4 * (((t >> 2) + 1) & 1)
                a(f'ds_read_b128 v[{pn}:{pn+3}], v4 offset:{((t>>2)+1)*64}')
        abuild(ab, pb + (t & 3))
        ensure(i)
        mfma(12, ab, loc[i], t == 0)
        free.append(loc[i])
        if i == 200:
            a(f'''s_lshl_b32 s7, s3, 10
                  s_add_u32 s7, s7, {L_RED2}
                  v_lshl_add_u32 v3, v0, 4, s7
                  v_xor_b32 v1, 0x800, v3
                  s_lshl_b32 s7, s24, 2
                  v_mov_b32 v16, s7
                  v_mov_b32 v17, 1
                  v_lshrrev_b32 v5, 5, v0
                  v_bfe_u32 v6, v0, 1, 3
                  v_lshl_add_u32 v5, v5, 4, v6
                  v_mul_u32_u24 v5, {PS}, v5
                  v_and_b32 v6, 1, v0
                  v_lshl_add_u32 v5, v6, 5, v5
                  v_bfe_u32 v6, v0, 4, 1
                  v_lshl_add_u32 v18, v6, 4, v5
                  s_lshl_b32 s28, s4, 2
                  s_add_u32 s28, s28, s24
                  s_mul_i32 s28, s28, {8*PS}
                  s_lshl_b32 s7, s5, 6
                  s_add_u32 s28, s28, s7
                  s_add_u32 s28, s28, {W_PART}''')
    def run(consume, c0, c1):
        c = c0
        while c < c1:
            n_is = st['issued']; lag = n_is - c
            if n_is >= 256 - UNTH and can_issue():
                issue(); continue
            dd = depth(n_is)
            if lag > dd or n_is >= 256:
                n = min(CATCH, c1 - c, max(1, lag - dd)) if n_is < 256 else c1 - c
                for _ in range(n): consume(c); c += 1
            if can_issue(): issue()
    run(consumeK, 0, 128)
    stamp(3)
    while can_issue(): issue()
    assert st['issued'] == 128 + R
    stamp(4)
    ldswait(F_P, 0 if ('s' in X or 'M' in X) else 1, 5, extra='ds_read_b128 v[28:31], v4')
    a('s_mov_b32 s62, 2' if ('s' in X or 'M' in X) else 's_mov_b32 s62, s7')
    stamp(5)
    run(consumeV, 128, 253)
    if not ('s' in X or 'T' in X): ldswait(F_RS, 1, 5, sleep=1)
    run(consumeV, 253, 256)
    stamp(6)
    a(f'''ds_write_b128 v3, v[12:15]
          s_mov_b64 exec, 1
          ds_add_rtn_u32 v5, v16, v17 offset:{F_PAIR}
          s_mov_b64 exec, -1
          ds_read_b128 v[40:43], v1
          s_mov_b64 exec, 1
          ds_add_u32 v7, v17 offset:{F_OCNT}
          s_mov_b64 exec, -1
          s_waitcnt lgkmcnt(1)
          v_readfirstlane_b32 s7, v5''')
    pkadd(12, 12, 40); pkadd(14, 14, 42)
    a('s_cmp_lg_u32 s7, 1\ns_cbranch_scc1 L_stream_end')
    store2(62, ['buffer_store_dwordx4 v[12:15], v18, s[16:19], s28 offen'])
    stamp(7)
    a('L_stream_end:')
    if not ('s' in X or 'T' in X): a('s_cmp_eq_u32 s3, 0\ns_cselect_b32 s7, s64, 0\ns_cmp_eq_u32 s7, 1\ns_cbranch_scc1 L_T3')
    finish()

    a('.p2align 6\nL_helper:')
    stamp(1)
    srd(16, 58, W_END)
    if 's' in X: finish()
    a('s_load_dword s31, s[58:59], 0\ns_getreg_b32 s24, hwreg(HW_REG_XCC_ID, 0, 4)')
    a(f'''s_sub_u32 s60, s3, 4
          s_mul_i32 s7, s60, 112
          v_lshrrev_b32 v1, 3, v0
          v_and_b32 v2, 7, v0
          v_mul_u32_u24 v13, 14, v1
          v_add_u32 v13, s7, v13
          v_lshl_add_u32 v12, v2, 1, v13
          v_cmp_eq_u32 vcc, 7, v2
          v_lshlrev_b32 v14, 1, v12
          v_lshlrev_b32 v15, 2, v12
          v_mov_b32 v3, {BIG}
          v_cndmask_b32 v14, v14, v3, vcc
          v_cndmask_b32 v15, v15, v3, vcc
          s_sub_u32 s62, 255, s2
          s_cmp_ge_u32 s62, 106
          s_cbranch_scc1 L_noP
          s_cmp_ge_u32 s62, 78
          s_cbranch_scc1 L_P3
          s_cmp_ge_u32 s62, 14
          s_cbranch_scc1 L_P2''')
    def wtile(base, srdn, stride, n, voff, sreg, dep, m0, m1):
        for m in range(m0, m1):
            if m >= dep: a(f's_waitcnt vmcnt({dep-1})')
            a(f'buffer_load_dwordx4 v[{base+4*m}:{base+4*m+3}], v{voff}, s[{srdn}:{srdn+3}], s{sreg} offen {wpol}')
            if m < n - 1: a(f's_add_u32 s{sreg}, s{sreg}, {stride}')
    def common_addrs():
        a(f'''s_lshl_b32 s7, s60, 9
              s_add_u32 s7, s7, {L_BC}
              v_lshl_add_u32 v16, v0, 3, s7
              v_lshl_add_u32 v17, v1, 6, s7
              s_lshl_b32 s7, s60, 10
              s_add_u32 s7, s7, {L_RED}
              v_lshl_add_u32 v18, v0, 4, s7
              v_bfe_u32 v5, v0, 2, 3
              v_bfe_u32 v6, v0, 1, 1
              v_lshl_add_u32 v5, v6, 4, v5
              v_and_b32 v6, 1, v0
              v_lshlrev_b32 v6, 3, v6
              v_lshl_add_u32 v19, v5, 4, v6
              v_lshlrev_b32 v4, 3, v0
              v_cmp_lt_u32 vcc, 31, v0
              v_cndmask_b32 v4, v4, v3, vcc''')
        masks()
        L = a.uniq('L_i')
        a(f'''s_waitcnt lgkmcnt(0)
              s_mul_i32 s31, s31, 1664525
              s_add_u32 s31, s31, 1013904223
              s_xor_b32 s24, s24, s31
              v_and_b32 v63, 31, v0
              v_lshlrev_b32 v63, 2, v63
              s_lshl_b32 s27, s4, 7
              s_add_u32 s27, s27, {W_ID}
              s_cmp_lg_u32 s60, 0
              s_cbranch_scc1 {L}
              s_lshl_b32 s7, s5, 2
              v_mov_b32 v5, s7
              v_mov_b32 v6, s24
              s_mov_b64 exec, 1
              buffer_store_dword v6, v5, s[16:19], s27 offen
              s_mov_b64 exec, -1
              {L}:''')
    def mktag(): pass
    def idflag(r):
        a(f'v_cmp_ne_u32 vcc, s24, v{r}\ns_cmp_eq_u64 vcc, 0\ns_cselect_b32 s25, {1 if force_slow else 2}, 1')
    def p1body(dep, crit):
        if crit:
            a(f'''v_lshrrev_b32 v5, 4, v0
                  v_mul_u32_u24 v5, 1792, v5
                  v_and_b32 v6, 15, v0
                  v_lshl_add_u32 v5, v6, 4, v5
                  v_lshrrev_b32 v6, 1, v0
                  v_lshlrev_b32 v6, {8 if CROT else 10}, v6
                  v_cmp_lt_u32 vcc, {63 if CROT else 15}, v0
                  v_cndmask_b32 v6, v6, v3, vcc
                  v_and_b32 v40, 1, v0
                  v_lshl_add_u32 v6, v40, 4, v6
                  s_mul_i32 s28, s60, {4*1792}
                  s_lshl_b32 s7, s62, 8
                  s_add_u32 s28, s28, s7
                  s_add_u32 s28, s28, {W_Y}
                  s_lshl_b32 s29, s60, 13
                  s_add_u32 s29, s29, {W_CNT}
                  s_cmp_ge_u32 s62, {0 if 'y' in X else 8}
                  s_cbranch_scc1 L_noclr
                  s_cmp_lt_u32 s62, 7
                  s_cselect_b32 s28, s28, s29
                  s_cselect_b32 s7, -1, 0
                  s_cselect_b64 vcc, -1, 0
                  v_mov_b32 v40, s7
                  v_mov_b32 v41, s7
                  v_mov_b32 v42, s7
                  v_mov_b32 v43, s7
                  v_cndmask_b32 v5, v6, v5, vcc
                  buffer_store_dwordx4 v[40:43], v5, s[16:19], s28 offen {RP}
                  L_noclr:''')
        srd(8, 52, 0 if ('w' in X or 'm' in X) else 448 * 5376)
        srd(12, 50, 896)
        a('''buffer_load_dword v52, v14, s[12:15], 0 offen nt
             v_mul_u32_u24 v53, 5376, v13
             v_lshl_add_u32 v53, v2, 4, v53
             s_lshl_b32 s28, s62, 7''')
        wtile(64, 8, 5376, 14, 53, 28, dep, 0, dep)
        a(f's_lshl_b32 s63, s62, 8\ns_add_u32 s63, s63, {W_MOD}')
        common_addrs()
        a(f's_waitcnt vmcnt({dep})')
        unpack(54, 55, 52)
        for r in (54, 55): a(f'v_mul_f32 v{r+2}, {NLOG2E}, v{r}')
        for r in (54, 55): a(f'v_exp_f32 v{r+2}, v{r+2}')
        for r in (54, 55): a(f'v_add_f32 v{r+2}, 1.0, v{r+2}')
        for r in (54, 55): a(f'v_rcp_f32 v{r+2}, v{r+2}')
        for r in (54, 55): a(f'v_mul_f32 v{r}, v{r}, v{r+2}')
        wtile(64, 8, 5376, 14, 53, 28, dep, dep, 14)
        a('s_mov_b32 s25, 1')
        if crit: a(f'v_lshlrev_b32 v62, 6, v0\nv_cmp_gt_u32 vcc, 16, v0\nv_cndmask_b32 v62, v3, v62, vcc\ns_lshl_b32 s26, s62, 2\ns_add_u32 s26, s26, {W_HM}')
        else: a('v_mov_b32 v62, v3\ns_mov_b32 s26, 0')
        stamp(12)
        a('s_branch L_Pgemv')
    p1body(P1D, True)
    a('L_P3:\ns_sub_u32 s62, s62, 64')
    p1body(P3D, False)

    a('L_P2:\ns_sub_u32 s62, s62, 14')
    a(f's_and_b32 s26, s62, 15\ns_lshl_b32 s26, s26, 6\ns_add_u32 s26, s26, {W_HM}')
    if gmap == 'xcd':
        a('s_lshr_b32 s62, s62, 3\ns_lshl_b32 s7, s4, 3\ns_add_u32 s62, s62, s7')
    srd(8, 38, 0 if ('w' in X or 'q' in X) else 448 * 8192)
    srd(12, 32, 896)
    a('''v_lshlrev_b32 v5, 4, v0
         buffer_load_dwordx4 v[20:23], v5, s[12:15], 0 offen nt
         buffer_load_dword v52, v14, s[12:15], 0 offen nt
         v_lshlrev_b32 v53, 13, v13
         v_lshl_add_u32 v53, v2, 4, v53
         s_lshl_b32 s28, s62, 7''')
    wtile(64, 8, 8192, 14, 53, 28, P2D, 0, P2D)
    a(f's_lshl_b32 s63, s62, 8\ns_add_u32 s63, s63, {W_Q}')
    common_addrs()
    wtile(64, 8, 8192, 14, 53, 28, P2D, P2D, min(14, 2 * P2D))
    if P2D == 14: a('s_waitcnt vmcnt(14)')
    for k in range(4): unpack(24 + 2 * k, 25 + 2 * k, 20 + k)
    a('v_add_f32 v32, v24, v25')
    for k in range(2, 8): a(f'v_add_f32 v32, v32, v{24+k}')
    allred('v_add_f32', [32], [33], 64)
    a(f'v_mul_f32 v32, {INV448}, v32')
    for k in range(8): a(f'v_sub_f32 v{24+k}, v{24+k}, v32')
    a('v_mul_f32 v34, v24, v24')
    for k in range(1, 8): a(f'v_fmac_f32 v34, v{24+k}, v{24+k}')
    a('v_cmp_gt_u32 vcc, 56, v0\nv_cndmask_b32 v34, 0, v34, vcc')
    allred('v_add_f32', [34], [33], 64)
    a(f'v_mul_f32 v34, {INV448}, v34')
    def ln_tail(mu, var, t, x0, x1):
        rnd2(mu, var, t)
        a(f'v_add_f32 v{var}, {EPS}, v{var}')
        a(f'v_sub_f32 v{x0}, v{x0}, v{mu}\nv_sub_f32 v{x1}, v{x1}, v{mu}')
        rnd1(var)
        a(f'v_sqrt_f32 v{var}, v{var}')
        rnd2(x0, x1, t)
        rnd1(var)
        a(f'v_rcp_f32 v{var}, v{var}')
        a(f'v_mul_f32 v{x0}, v{x0}, v{var}\nv_mul_f32 v{x1}, v{x1}, v{var}')
        rnd2(x0, x1, t)
    unpack(54, 55, 52)
    ln_tail(32, 34, 33, 54, 55)
    wtile(64, 8, 8192, 14, 53, 28, P2D, min(14, 2 * P2D), 14)
    mktag()
    stamp(12)
    a(f's_mov_b32 s28, {W_MOD}\nv_cmp_ne_u32 s[98:99], 7, v2\nv_mov_b32 v62, v3')
    a('s_cmp_lg_u32 s60, 0\ns_cbranch_scc1 L_mw')
    L = a.uniq('L_hm')
    a(f's_mov_b32 s30, {SPIN}\n{L}:\ns_load_dwordx16 s[76:91], s[58:59], s26 glc\ns_mov_b32 s7, 0\ns_waitcnt lgkmcnt(0)')
    for r in range(14): a(f's_cmp_eq_u32 s{76+r}, s31\ns_addc_u32 s7, s7, 0')
    a(f's_cmp_ge_u32 s7, 14\ns_cbranch_scc1 {L}_d\ns_sleep {HSL}\ns_sub_u32 s30, s30, 1\ns_cmp_lg_u32 s30, 0\ns_cbranch_scc1 {L}\n{L}_d:')
    ldsflag(F_M)
    a('L_mw:')
    ldswait(F_M, 1, 5, sleep=1)
    a('buffer_load_dword v35, v63, s[16:19], s27 offen sc1')
    L = poll_begin()
    a(f'''buffer_load_dwordx2 v[56:57], v15, s[16:19], s28 offen {PP}
         buffer_load_dwordx2 v[58:59], v15, s[16:19], s28 offen offset:1792 {PP}
         s_waitcnt vmcnt(0)''')
    tagchk([57, 59]); a('s_and_b64 vcc, vcc, s[98:99]')
    poll_end(L, sleep=MSL, mask=False)
    stamp(2)
    if gmap == 'xcd': idflag(35)
    else: a('s_mov_b32 s25, 1')
    unpack(60, 61, 58)
    a('v_add_f32 v60, 1.0, v60\nv_add_f32 v61, 1.0, v61')
    rnd2(60, 61, 33)
    a('v_mul_f32 v54, v54, v60\nv_mul_f32 v55, v55, v61')
    rnd2(54, 55, 33)
    unpack(60, 61, 56)
    a('v_add_f32 v54, v54, v60\nv_add_f32 v55, v55, v61')

    a('L_Pgemv:')
    def bcast14(x0, x1):
        a(f'''v_cvt_pk_bf16_f32 v{x0}, v{x0}, v{x0}
              v_cvt_pk_bf16_f32 v{x1}, v{x1}, v{x1}
              ds_write_b64 v16, v[{x0}:{x1}]''')
        for k in range(4): a(f'ds_read_b128 v[{20+4*k}:{23+4*k}], v17 offset:{16*k}')
    bcast14(54, 55)
    a('s_waitcnt lgkmcnt(0)')
    stamp(13)
    for m in range(14):
        ab = 36 + 4 * (m & 1)
        abuild(ab, 20 + m)
        a(f's_waitcnt vmcnt({13-m})')
        mfma(44, ab, 64 + 4 * m, m == 0)
    def red8(cnt, skip):
        a(f'''v_mov_b32 v6, 1
              ds_write_b128 v18, v[44:47]
              s_mov_b64 exec, 1
              ds_add_rtn_u32 v5, v7, v6 offset:{cnt}
              s_mov_b64 exec, -1''')
        for w in range(4):
            for x in range(2):
                r = 20 + 4 * w + 2 * x
                a(f'ds_read_b64 v[{r}:{r+1}], v19 offset:{L_RED + w*1024 + x*640}')
        a(f'''s_waitcnt lgkmcnt(0)
              v_readfirstlane_b32 s7, v5''')
        for stp in (2, 4, 8):
            for r in range(20, 36, 2 * stp): pkadd(r, r, r + stp)
        a(f's_cmp_lg_u32 s7, 3\ns_cbranch_scc1 {skip}')
    stamp(14)
    red8(F_PCNT, 'L_Pdone')
    a(f'''v_cvt_pk_bf16_f32 v20, v20, v21
         v_mov_b32 v21, s31''')
    store2(25, ['buffer_store_dwordx2 v[20:21], v4, s[16:19], s63 offen'])
    a('buffer_store_dword v21, v62, s[16:19], s26 offen sc1')
    stamp(3)
    a('s_branch L_Pdone')

    a('L_noP:')
    if codepf:
        a(f'''s_cmp_ge_u32 s2, 16
              s_cbranch_scc1 L_nopf
              s_getpc_b64 s[42:43]
              L_pc:
              s_sub_u32 s42, s42, L_pc-{NAME}_kernel
              s_subb_u32 s43, s43, 0
              s_mul_i32 s7, s60, CODE_Q
              v_lshl_add_u32 v5, v0, 4, s7
              .rept CODE_Q/1024
              global_load_dwordx4 v[20:23], v5, s[42:43]
              v_add_u32 v5, 0x400, v5
              .endr
              L_nopf:''')
    common_addrs()
    mktag()
    a('L_Pdone:')
    trole()
    a('s_cmp_lg_u32 s60, 0\ns_cbranch_scc1 L_early')
    a(f'''v_lshlrev_b32 v48, 4, v0
          v_mov_b32 v40, -1
          v_mov_b32 v41, -1
          v_mov_b32 v42, -1
          v_mov_b32 v43, -1
          s_cmp_lg_u32 s61, {7 if ('z' in X or ZTAG) else 2}
          s_cbranch_scc1 L_rs2
          s_mul_i32 s29, s62, 3584
          s_add_u32 s29, s29, {W_Z}
          v_lshlrev_b32 v5, 3, v0
          buffer_store_dwordx4 v[40:43], v48, s[16:19], s29 offen {RP}
          buffer_store_dwordx4 v[40:43], v48, s[16:19], s29 offen offset:1024 {RP}
          buffer_store_dwordx4 v[40:43], v48, s[16:19], s29 offen offset:2048 {RP}
          buffer_store_dwordx2 v[40:41], v5, s[16:19], s29 offen offset:3072 {RP}''')
    a(f'''L_rs2:
          s_lshl_b32 s28, s4, 11
          s_add_u32 s28, s28, {W_Q}''')
    ldswait(F_PROG, QTRIG, 5, sleep=4)
    L = poll_begin()
    a(f'''buffer_load_dwordx4 v[20:23], v48, s[16:19], s28 offen {PP}
         buffer_load_dwordx4 v[24:27], v48, s[16:19], s28 offen offset:1024 {PP}
         s_waitcnt vmcnt(0)
         s_mov_b64 exec, -1''')
    tagchk([21, 23, 25, 27])
    poll_end(L, sleep=QSL)
    a(f'''v_lshlrev_b32 v6, 3, v0
          v_add_u32 v6, {L_Q}, v6
          ds_write2_b32 v6, v20, v22 offset0:0 offset1:1
          ds_write2_b32 v6, v24, v26 offset0:128 offset1:129''')
    ldsflag(F_Q)
    stamp(4)
    a('buffer_load_dword v20, v63, s[16:19], s27 offen sc1\ns_waitcnt vmcnt(0)')
    idflag(20)
    a('L_early:')
    def t1loads(dep, n0=0, n1=8):
        n = 0
        for t in range(4):
            for hf in range(2):
                r = 64 + 8 * t + 4 * hf
                n += 1
                if not n0 <= n - 1 < n1: continue
                if n - 1 >= dep: a(f's_waitcnt vmcnt({dep-1})')
                a(f'buffer_load_dwordx4 v[{r}:{r+3}], v250, s[8:11], s{66+2*hf+(t>>1)} offen offset:{1792*(t&1)} {wpol}')
    tl2 = []
    for base, sr, so in ((64, 8, 66), (120, 12, 68)):
        for t in range(7):
            for hf in range(2):
                r = base + 8 * t + 4 * hf
                tl2.append((f'buffer_load_dwordx4 v[{r}:{r+3}], v250, s[{sr}:{sr+3}], s{so+hf} offen {wpol}', f's_add_u32 s{so+hf}, s{so+hf}, 7168'))
    for t in range(4):
        for k in range(2):
            for hf in range(2):
                r = 176 + 16 * t + 8 * k + 4 * hf
                tl2.append((f'buffer_load_dwordx4 v[{r}:{r+3}], v{251+k}, s[20:23], s{70+hf} offen {wpol}', f's_add_u32 s{70+hf}, s{70+hf}, 1792' if k == 1 else ''))
    a('''v_lshrrev_b32 v5, 5, v0
         v_bfe_u32 v6, v0, 3, 1
         v_lshl_add_u32 v253, v5, 1, v6
         v_bfe_u32 v254, v0, 4, 1
         v_mov_b32 v250, v3
         v_mov_b32 v251, v3
         v_mov_b32 v252, v3''')
    a('s_cmp_lg_u32 s61, 1\ns_cbranch_scc1 L_early2')
    srd(8, 40, 0 if 'o' in X else 4096 * 896)
    a(f'''s_and_b32 s64, s5, 1
          s_lshl_b32 s66, s4, 1
          s_add_u32 s66, s66, s64
          s_lshl_b32 s66, s66, 8
          s_lshl_b32 s7, s60, 6
          s_add_u32 s66, s66, s7
          s_mul_i32 s66, s66, 896
          s_lshr_b32 s7, s5, 1
          s_lshl_b32 s7, s7, 7
          s_add_u32 s66, s66, s7
          s_add_u32 s67, s66, {4*896}
          s_add_u32 s68, s66, {32*896}
          s_add_u32 s69, s66, {36*896}
          v_lshl_add_u32 v250, v253, 3, v254
          v_mul_u32_u24 v250, 896, v250
          v_lshl_add_u32 v250, v2, 4, v250''')
    if not T1LATE: t1loads(T1D)
    elif T1EARLY: t1loads(T1D, 0, T1EARLY)
    a('L_early2:\ns_cmp_lg_u32 s61, 2\ns_cbranch_scc1 L_early3')
    srd(8, 44, 0 if 't' in X else 448 * 3584)
    srd(12, 46, 0 if 't' in X else 448 * 3584)
    srd(20, 48, 0 if 't' in X else 1792 * 896)
    a(f'''v_mad_u32_u24 v250, v253, 14, v254
          v_mul_u32_u24 v250, 3584, v250
          v_lshl_add_u32 v250, v2, 4, v250
          v_lshl_add_u32 v251, v253, 3, v254
          v_mul_u32_u24 v251, 896, v251
          v_lshl_add_u32 v251, v2, 4, v251
          v_add_u32 v252, 128, v251
          s_cmp_lg_u32 s60, 3
          s_cbranch_scc1 L_T2b
          v_mov_b32 v252, v3
          L_T2b:
          s_mul_i32 s66, s60, {112*3584}
          s_lshl_b32 s7, s62, 7
          s_add_u32 s66, s66, s7
          s_add_u32 s67, s66, {56*3584}
          s_mov_b32 s68, s66
          s_mov_b32 s69, s67
          s_mul_i32 s70, s62, {64*896}
          s_lshl_b32 s7, s60, 8
          s_add_u32 s70, s70, s7
          s_add_u32 s71, s70, {32*896}
          s_cmp_eq_u32 s60, 0
          s_cselect_b64 vcc, -1, 0''')
    for n, (ld, nx) in enumerate(tl2[:44 - NLATE]):
        if n >= T2D and T2D4 > T2D:
            L = a.uniq('L_e')
            a(f's_cbranch_vccnz {L}\ns_waitcnt vmcnt({T2D-1})\n{L}:')
        if n >= T2D4: a(f's_waitcnt vmcnt({T2D4-1})')
        a(ld); a(nx)
    a('L_early3:')
    stamp(12)
    if CK:
        a('s_cmp_lg_u32 s60, 1\ns_cbranch_scc1 L_noctl')
        tab = TAB or [8 * r - R0 for r in range(8)]
        tv = sum((t & 255) << (8 * r) for r, t in enumerate(tab))
        a(f's_mov_b32 s90, {tv & 0xffffffff}\ns_mov_b32 s91, {tv >> 32}')
        for n, (c, kg) in enumerate(zip(CK, KG)):
            a(f'''s_and_b32 s26, s2, 7
                  s_mul_i32 s26, s26, {(5, 9, 3, 13, 7, 11, 15, 1)[n]}
                  s_lshr_b32 s29, s2, 3
                  s_add_u32 s29, s29, s26
                  s_and_b32 s29, s29, 31
                  s_lshl_b32 s29, s29, 10
                  s_add_u32 s29, s29, {W_CNT + (n&3)*256*CROT + 4*n}
                  s_mov_b32 s94, 1''')
            ldswait(F_CK + 4 * n, CNTRIG, 5, sleep=CSL)
            a(f'''{'s_mov_b32 s94, 3' if 'a' in X else 's_atomic_add s94, s[58:59], s29 glc'}
                  s_waitcnt lgkmcnt(0)
                  s_min_u32 s7, s94, 7
                  s_lshl_b32 s7, s7, 3
                  s_lshr_b64 s[92:93], s[90:91], s7
                  s_sext_i32_i8 s7, s92
                  s_mul_i32 s7, s7, {kg}
                  s_ashr_i32 s7, s7, 4
                  s_min_i32 s7, s7, {CLEN}
                  s_max_i32 s7, s7, {-CLEN}''')
            ldsflag(F_CTL + 4 * n, val='s7')
        a('L_noctl:')
    a('s_cmp_lg_u32 s60, 0\ns_cbranch_scc1 L_tail')
    if 'M' in X: a('s_branch L_tail')
    a(f'''v_lshrrev_b32 v5, 5, v0
          v_mul_u32_u24 v5, {HS}, v5
          v_and_b32 v6, 31, v0
          v_lshl_add_u32 v60, v6, 4, v5
          v_mov_b32 v62, {CEXP}
          v_lshlrev_b32 v61, 7, v6
          v_lshlrev_b32 v247, 4, v0
          s_lshl_b32 s28, s6, 7
          s_add_u32 s28, s28, {W_STATS}
          s_lshl_b32 s29, s4, 12
          s_add_u32 s29, s29, {W_STATS}''')
    ldswait(F_SCNT, 4, 5, sleep=4)
    stamp(5)
    for n in range(8): a(f'ds_read_b128 v[{20+4*n}:{23+4*n}], v60 offset:{L_SC + 512*n}')
    for n in range(8):
        a(f's_waitcnt lgkmcnt({7-n})')
        rnd2(20 + 4 * n, 21 + 4 * n, 5)
        rnd2(22 + 4 * n, 23 + 4 * n, 6)
    a('v_max_f32 v52, v20, v21')
    for k in range(22, 52, 2): a(f'v_max3_f32 v52, v52, v{k}, v{k+1}')
    allred('v_max_f32', [52], [53], 32)
    for k in range(20, 52): a(f'v_sub_f32 v{k}, v{k}, v52')
    for k in range(20, 52): a(f'v_mul_f32 v{k}, v62, v{k}')
    for k in range(20, 52): a(f'v_exp_f32 v{k}, v{k}')
    a('v_add_f32 v54, v20, v21\nv_add_f32 v55, v22, v23')
    for k in range(24, 52, 2): a(f'v_add_f32 v54, v54, v{k}\nv_add_f32 v55, v55, v{k+1}')
    a('v_add_f32 v54, v54, v55')
    allred('v_add_f32', [54], [53], 32)
    a('''v_readlane_b32 s90, v52, 0
         v_readlane_b32 s91, v52, 32
         v_readlane_b32 s92, v54, 32
         s_pack_hh_b32_b16 s90, s90, s91
         v_mov_b32 v56, s90
         v_mov_b32 v57, v54
         v_mov_b32 v58, s92
         v_mov_b32 v59, s31
         s_waitcnt vmcnt(0)
         s_mov_b64 exec, 0xff''')
    store2(25, ['buffer_store_dwordx4 v[56:59], v247, s[16:19], s28 offen'])
    a('s_mov_b64 exec, -1')
    stamp(6)
    L = poll_begin()
    a(f'''buffer_load_dwordx4 v[240:243], v61, s[16:19], s29 offen {PP}
         s_waitcnt vmcnt(0)
         s_mov_b64 exec, -1''')
    tagchk([243])
    poll_end(L, sleep=SSL)
    stamp(7)
    unpack(244, 245, 240)
    a('''v_cmp_lt_u32 vcc, 31, v0
         v_cndmask_b32 v244, v244, v245, vcc
         v_cndmask_b32 v241, v241, v242, vcc
         v_mov_b32 v246, v244''')
    allred('v_max_f32', [246], [53], 32)
    a('''v_sub_f32 v244, v244, v246
         v_sub_f32 v52, v52, v246
         v_mul_f32 v244, v62, v244
         v_mul_f32 v52, v62, v52
         v_exp_f32 v244, v244
         v_exp_f32 v52, v52
         v_mul_f32 v241, v241, v244''')
    allred('v_add_f32', [241], [53], 32)
    a('v_rcp_f32 v241, v241\nv_mul_f32 v52, v52, v241')
    for n in range(8):
        for k in range(20 + 4 * n, 24 + 4 * n): a(f'v_mul_f32 v{k}, v52, v{k}')
        for k in range(20 + 4 * n, 24 + 4 * n): a(f'v_cvt_pk_bf16_f32 v{k}, v{k}, v{k}')
        a(f'ds_write_b128 v60, v[{20+4*n}:{23+4*n}] offset:{L_SC + 512*n}')
    ldsflag(F_P, val='s25')
    stamp(8)

    def smf(acc, A, B): a(f'v_smfmac_f32_16x16x64_bf16 v[{acc}:{acc+3}], v[{A}:{A+3}], v[{B}:{B+7}], v19')
    def sbuild(dst, p0, p1):
        a(f'v_and_b32 v{dst}, v{p0}, v8\nv_and_b32 v{dst+1}, v{p1}, v9\nv_and_b32 v{dst+2}, v{p0}, v10\nv_and_b32 v{dst+3}, v{p1}, v11')
    def pkop(op, d, x, y, mod=''): a(f'v_pk_{op}_f32 v[{d}:{d+1}], v[{x}:{x+1}], v[{y}:{y+1}] {mod}')
    def spin_back(L, sleep=0):
        if sleep: a(f's_sleep {sleep}')
        a(f's_sub_u32 s30, s30, 1\ns_cmp_lg_u32 s30, 0\ns_cbranch_scc1 {L}')
    a('L_tail:')
    if 'T' in X: finish()
    a(f'''s_cmp_lg_u32 s61, 3
          s_cbranch_scc1 L_noRclr
          s_cmp_lg_u32 s60, 2
          s_cbranch_scc1 L_noRclr
          s_sub_u32 s7, s5, 24
          s_lshl_b32 s7, s7, 2
          s_lshl_b32 s72, s4, 5
          s_add_u32 s7, s7, s72
          s_mul_i32 s72, s7, {PS}
          s_add_u32 s72, s72, {W_PART}
          s_add_u32 s73, s72, {2*PS}
          s_lshl_b32 s63, s7, 5
          s_add_u32 s63, s63, {W_O}
          s_lshl_b32 s26, s7, 2
          s_add_u32 s26, s26, {W_RS}
          v_lshlrev_b32 v13, 4, v0
          v_cmp_gt_u32 vcc, 8, v0
          v_cndmask_b32 v14, v3, v13, vcc''')
    for k in range(4): a(f'v_mov_b32 v{20+k}, -1\nv_mov_b32 v{24+k}, s31')
    ldswait(F_PROG, TRIGR, 5, sleep=4)
    ldswait(F_P, 1, 5, sleep=1)
    a('s_mov_b32 s25, s7')
    if PREB:
        for k in range(8): a(f'buffer_load_dwordx4 v[28:31], v13, s[16:19], s{72+(k>>2)} offen offset:{((k>>1)&1)*PS + (k&1)*1024} {PREB}')
        a(f'buffer_load_dwordx4 v[28:31], v14, s[16:19], s63 offen {PREB}\ns_waitcnt vmcnt(0)')
    store2(25, [f'buffer_store_dwordx4 v[20:23], v13, s[16:19], s{72+(k>>2)} offen offset:{((k>>1)&1)*PS + (k&1)*1024}' for k in range(8)]
               + ['buffer_store_dwordx4 v[20:23], v14, s[16:19], s63 offen'])
    a('s_waitcnt vmcnt(0)\ns_mov_b64 exec, 1')
    store2(25, ['buffer_store_dwordx4 v[24:27], v7, s[16:19], s26 offen'])
    a('s_mov_b64 exec, -1\nL_noRclr:')
    def rswatch():
        L0 = a.uniq('L_rw')
        a(f's_cmp_lg_u32 s60, 3\ns_cbranch_scc1 {L0}\ns_add_u32 s27, s27, {W_RS - W_ID}')
        ldswait(F_PROG, TRIGS, 5, sleep=4)
        L = poll_begin()
        a('buffer_load_dword v6, v63, s[16:19], s27 offen sc1\ns_waitcnt vmcnt(0)')
        tagchk([6])
        poll_end(L, sleep=2, mask=False)
        ldsflag(F_RS)
        a(f'{L0}:')
    a('s_cmp_eq_u32 s61, 2\ns_cbranch_scc1 L_norw')
    rswatch()
    a('L_norw:')
    a(f'''s_cmp_eq_u32 s61, 0
          s_cbranch_scc1 L_helper_end
          v_cmp_gt_u32 vcc, 4, v2
          v_mov_b32 v5, 0xffff
          v_cndmask_b32 v8, 0, v5, vcc
          v_xor_b32 v9, v5, v8
          v_lshlrev_b32 v10, 16, v8
          v_lshlrev_b32 v11, 16, v9
          v_and_b32 v6, 3, v0
          v_mul_u32_u24 v19, 0x5555, v6
          v_lshlrev_b32 v245, 2, v0
          v_lshrrev_b32 v5, 5, v0
          v_lshlrev_b32 v244, 9, v5
          v_lshl_add_u32 v244, v2, 5, v244
          v_bfe_u32 v6, v0, 4, 1
          v_lshl_add_u32 v244, v6, 4, v244
          s_lshl_b32 s7, s60, 10
          s_add_u32 s7, s7, {L_RED}
          v_add_u32 v244, s7, v244
          s_mov_b32 s50, 0x00ff00ff
          s_mov_b32 s51, 0xff00ff00
          s_cmp_eq_u32 s61, 2
          s_cbranch_scc1 L_T2''')
    a('s_cmp_eq_u32 s61, 3\ns_cbranch_scc1 L_R\ns_cmp_eq_u32 s61, 4\ns_cbranch_scc1 L_H')
    srd(8, 40, 0 if 'o' in X else 4096 * 896)
    a(f'''s_lshl_b32 s63, s4, 1
          s_add_u32 s63, s63, s64
          s_lshl_b32 s72, s63, 9
          s_mul_i32 s63, s63, 1792
          s_lshr_b32 s7, s5, 1
          s_lshl_b32 s7, s7, 8
          s_add_u32 s63, s63, s7
          s_add_u32 s63, s63, {W_Y}
          s_lshl_b32 s7, s60, 7
          s_add_u32 s72, s72, s7
          s_add_u32 s72, s72, {W_O}
          v_lshlrev_b32 v13, 4, v1
          v_lshlrev_b32 v4, 2, v0
          v_mov_b32 v16, 1''')
    for k in range(44, 48): a(f'v_mov_b32 v{k}, 0')
    ldswait(F_LAST, 4, 5, sleep=2)
    stamp(9)
    if T1LATE: t1loads(8, T1EARLY, T1SPLIT)
    ldswait(F_RS, 1, 5, sleep=1)
    if T1W: ldswait(F_OCNT, T1W, 5, sleep=1)
    if T1LATE: t1loads(8, T1SPLIT, 8)
    stamp(13)
    ldo = f'buffer_load_dwordx4 v[20:23], v13, s[16:19], s72 offen {PP}'
    a(ldo + '\ns_nop 15\n' + ldo + '\ns_nop 15')
    L = poll_begin()
    a(f'''{ldo}
          s_waitcnt vmcnt(2)
          v_max3_u32 v24, v20, v21, v22
          v_max_u32 v24, v24, v23
          v_cmp_eq_u32 vcc, -1, v24''')
    poll_end(L, mask=False)
    stamp(10)
    if prof: a(f's_sub_u32 s7, {SPIN+1}, s30\nv_writelane_b32 v255, s7, 14')
    sbuild(36, 20, 20)
    sbuild(40, 21, 21); smf(44, 36, 64)
    sbuild(32, 22, 22); smf(44, 40, 72)
    sbuild(36, 23, 23); smf(44, 32, 80)
    smf(44, 36, 88)
    a(f'''s_mov_b64 exec, s[50:51]
          ds_write_b128 v244, v[44:47]
          s_mov_b64 exec, 1
          ds_add_rtn_u32 v5, v7, v16 offset:{F_TCNT}
          s_mov_b64 exec, -1''')
    for w in range(4): a(f'ds_read2st64_b32 v[{24+2*w}:{25+2*w}], v245 offset0:{L_RED//256+4*w} offset1:{L_RED//256+4*w+2}')
    a('s_waitcnt lgkmcnt(0)\nv_readfirstlane_b32 s7, v5')
    pkadd(24, 24, 26); pkadd(28, 28, 30); pkadd(24, 24, 28)
    a('''s_cmp_lg_u32 s7, 3
         v_add_f32 v24, v24, v25
         s_cbranch_scc1 L_helper_end
         buffer_store_dword v24, v4, s[16:19], s63 offen sc1''')
    stamp(11)
    a('L_helper_end:')
    finish()

    a(f'''.p2align 6
          L_R:
          s_sub_u32 s7, s5, 24
          s_lshl_b32 s7, s7, 2
          s_add_u32 s7, s7, s60
          s_lshl_b32 s72, s4, 5
          s_add_u32 s7, s7, s72
          s_mul_i32 s72, s7, {PS}
          s_add_u32 s72, s72, {W_PART}
          s_lshl_b32 s63, s7, 5
          s_add_u32 s63, s63, {W_O}
          v_lshlrev_b32 v13, 4, v0
          v_and_b32 v4, 3, v0
          v_lshlrev_b32 v4, 3, v4
          v_lshrrev_b32 v5, 5, v0
          v_lshl_add_u32 v4, v5, 2, v4
          v_bfe_u32 v5, v0, 2, 3
          v_cmp_ne_u32 vcc, 0, v5
          v_cndmask_b32 v4, v4, v3, vcc''')
    ldr = f'buffer_load_dwordx4 v[20:23], v13, s[16:19], s72 offen {PP}\nbuffer_load_dwordx4 v[24:27], v13, s[16:19], s72 offen offset:1024 {PP}'
    ldswait(F_RS, 1, 5, sleep=4)
    if PRET: a(ldr.replace(PP, PRET))
    ldswait(F_P, 1, 5, sleep=1)
    a('s_mov_b32 s25, s7')
    ldswait(F_LAST, 4, 5, sleep=2)
    stamp(9)
    if PRE0: a(ldr.replace(PP, PRE0))
    if RW: ldswait(F_OCNT, RW, 5, sleep=1)
    stamp(13)
    a(ldr + '\ns_nop 15\ns_nop 15')
    L = poll_begin()
    a(ldr + '\ns_waitcnt vmcnt(2)')
    pkadd(28, 20, 24); pkadd(30, 22, 26)
    a('v_permlane32_swap_b32 v28, v30\nv_permlane32_swap_b32 v29, v31')
    pkadd(28, 28, 30)
    a('v_cmp_u_f32 vcc, v28, v29')
    poll_end(L, mask=False)
    stamp(10)
    if prof: a(f's_sub_u32 s7, {SPIN+1}, s30\nv_writelane_b32 v255, s7, 14')
    a(f'''v_add_f32_dpp v28, v28, v28 row_ror:4 {DPPF}
          v_add_f32_dpp v29, v29, v29 row_ror:4 {DPPF}
          v_add_f32_dpp v30, v28, v28 row_ror:8 {DPPF}
          v_add_f32_dpp v31, v29, v29 row_ror:8 {DPPF}
          v_add_f32_dpp v28, v28, v28 row_ror:8 {DPPF}
          v_add_f32_dpp v29, v29, v29 row_ror:8 {DPPF}
          v_permlane16_swap_b32 v28, v30
          v_permlane16_swap_b32 v29, v31''')
    pkadd(28, 28, 30)
    a('v_cvt_pk_bf16_f32 v28, v28, v29')
    store2(25, ['buffer_store_dword v28, v4, s[16:19], s63 offen'])
    stamp(11)
    finish()

    a(f'''.p2align 6
          L_H:
          s_cmp_lg_u32 s60, 2
          s_cbranch_scc1 L_helper_end
          s_lshl_b32 s72, s4, 10
          s_add_u32 s72, s72, {W_O}
          s_lshl_b32 s63, s4, 2
          s_add_u32 s63, s63, {W_H}
          s_add_u32 s65, s63, 4096
          v_lshlrev_b32 v13, 4, v0
          v_lshlrev_b32 v4, 6, v0
          v_mov_b32 v16, s31
          s_mul_i32 s73, s4, {32*PS}
          s_add_u32 s73, s73, {W_PART}
          v_lshrrev_b32 v5, 5, v0
          v_mul_u32_u24 v5, {8*PS}, v5
          v_lshl_add_u32 v14, v63, 4, v5''')
    ldp = 'buffer_load_dword v24, v14, s[16:19], s73 offen sc1'
    ldswait(F_RS, 1, 5, sleep=4)
    a(ldo)
    if HSRC == 'part':
        ldswait(F_LAST, 4, 5, sleep=2)
        a(ldp)
        ldswait(F_OCNT, 4, 5, sleep=1)
        a(ldp + '\ns_nop 15')
        L = poll_begin()
        a(f'{ldp}\ns_waitcnt vmcnt(1)\nv_cmp_eq_u32 vcc, -1, v24')
    else:
        ldswait(F_OCNT, 4, 5, sleep=1)
        a(ldo + '\ns_nop 15\n' + ldo + '\ns_nop 15')
        L = poll_begin()
        a(f'''{ldo}
              s_waitcnt vmcnt(2)
              v_max3_u32 v24, v20, v21, v22
              v_max_u32 v24, v24, v23
              v_cmp_eq_u32 vcc, -1, v24''')
    poll_end(L, mask=False)
    a('''buffer_store_dword v16, v4, s[16:19], s63 offen sc1
         buffer_store_dword v16, v4, s[16:19], s65 offen sc1''')
    stamp(11)
    finish()

    a('.p2align 6\nL_T2:')
    srd(8, 44, 0 if 't' in X else 448 * 3584)
    srd(12, 46, 0 if 't' in X else 448 * 3584)
    srd(20, 48, 0 if 't' in X else 1792 * 896)
    srd(24, 32, 896)
    a(f'''v_lshrrev_b32 v5, 5, v0
          v_and_b32 v6, 31, v0
          v_cmp_gt_u32 s[98:99], 28, v6
          s_mul_i32 s7, s60, 112
          v_lshl_add_u32 v12, v6, 2, s7
          v_mul_u32_u24 v13, 1792, v5
          v_lshl_add_u32 v13, v12, 2, v13
          v_cndmask_b32 v13, v3, v13, s[98:99]
          v_lshl_add_u32 v12, v5, 1, v12
          v_lshlrev_b32 v14, 1, v12
          v_lshlrev_b32 v15, 2, v12
          v_add_u32 v240, {L_X1}, v15
          v_cndmask_b32 v14, v3, v14, s[98:99]
          v_cndmask_b32 v15, v3, v15, s[98:99]
          v_mov_b32 v16, {L_X1 + 1792}
          v_cndmask_b32 v240, v16, v240, s[98:99]
          v_lshl_add_u32 v16, v6, 1, v5
          v_mul_u32_u24 v17, 37, v16
          v_lshrrev_b32 v17, 8, v17
          v_add_u32 v16, v16, v17
          s_lshl_b32 s7, s60, 9
          s_add_u32 s7, s7, {L_BC}
          v_lshl_add_u32 v16, v16, 2, s7
          v_lshl_add_u32 v17, v1, 5, s7
          s_mov_b32 s28, {W_MOD + 4*896}
          s_lshl_b32 s7, s62, 4
          v_and_b32 v61, 3, v0
          v_lshlrev_b32 v61, 2, v61
          v_lshrrev_b32 v5, 4, v0
          v_add3_u32 v61, v61, v5, s7
          v_lshrrev_b32 v62, 1, v61
          v_lshlrev_b32 v62, 3, v62
          s_mov_b32 s29, {W_MOD + 4*2240}''')
    ldswait(F_PROG, TRIGC, 5, sleep=8)
    a('buffer_load_dword v52, v14, s[24:27], 0 offen nt')
    L = poll_begin()
    a('''buffer_load_dwordx2 v[20:21], v15, s[16:19], s28 offen sc1
         buffer_load_dwordx2 v[22:23], v15, s[16:19], s28 offen offset:1792 sc1
         buffer_load_dwordx2 v[24:25], v15, s[16:19], s28 offen offset:3584 sc1
         buffer_load_dwordx2 v[26:27], v62, s[16:19], s29 offen sc1
         s_waitcnt vmcnt(0)''')
    tagchk([21, 23, 25]); a('s_and_b64 vcc, vcc, s[98:99]'); tagchk([27], first=False)
    poll_end(L, sleep=8, mask=False)
    a('v_mov_b32 v28, v52')
    unpack(52, 53, 28)
    unpack(54, 55, 20)
    unpack(58, 59, 22)
    unpack(56, 57, 24)
    a('v_add_f32 v56, 1.0, v56\nv_add_f32 v57, 1.0, v57')
    rnd2(56, 57, 28)
    a('v_and_b32 v28, 0xffff0000, v26\nv_lshlrev_b32 v26, 16, v26')
    a(f'''v_and_b32 v5, 1, v61
          v_cmp_eq_u32 vcc, 1, v5
          v_cndmask_b32 v26, v26, v28, vcc
          v_lshlrev_b32 v5, 3, v0
          ds_write_b64 v5, v[26:27] offset:{L_GB}
          s_lshl_b32 s7, s60, 3
          s_add_u32 s7, s7, {L_ST2}
          v_bfe_u32 v6, v0, 4, 1
          v_lshl_add_u32 v243, v6, 2, s7
          v_lshrrev_b32 v5, 5, v0
          v_bfe_u32 v6, v0, 3, 1
          v_cmp_ne_u32 vcc, v5, v6
          v_lshrrev_b32 v247, 1, v2
          v_mul_u32_u24 v247, {ZS}, v247
          v_lshl_add_u32 v247, v5, 6, v247
          v_and_b32 v6, 1, v0
          v_lshl_add_u32 v247, v6, 5, v247
          v_bfe_u32 v6, v0, 4, 1
          v_lshl_add_u32 v247, v6, 4, v247
          v_cndmask_b32 v247, v247, v3, vcc
          s_mul_i32 s63, s60, {8*ZS}
          s_lshl_b32 s7, s62, 7
          s_add_u32 s63, s63, s7
          s_add_u32 s63, s63, {W_Z}
          s_add_u32 s65, s63, {4*ZS}
          s_mov_b32 s18, {W_ZEND}
          s_lshl_b32 s7, s62, 2
          s_add_u32 s7, s7, s60
          s_lshl_b32 s7, s7, 6
          s_add_u32 s7, s7, {W_H}
          s_add_u32 s56, s58, s7
          s_addc_u32 s57, s59, 0
          v_mov_b32 v248, {INV448}
          v_mov_b32 v249, {INV448}''')
    for n in range(8): a(f's_mov_b32 s{72+n}, {W_Y + 3584*n}\ns_mov_b64 s[{80+2*n}:{81+2*n}], -1')
    a('s_waitcnt lgkmcnt(0)')
    for k in range(20, 52): a(f'v_mov_b32 v{k}, -1')
    a(f's_lshl_b32 s27, s4, 7\ns_add_u32 s27, s27, {W_ID}')
    rswatch()
    ldswait(F_LAST, 4, 5, sleep=1)
    stamp(9)
    cstamp(6)
    for ld, nx in tl2[44 - NLATE:]:
        a(ld); a(nx)
    if prof: a('s_waitcnt vmcnt(0)')
    stamp(10)
    ldswait(F_OCNT, 4, 5, sleep=1)
    stamp(2)
    for n in range(8): a(f's_mov_b32 s{32+n}, s31\ns_not_b32 s{40+n}, s31')
    Lh = a.uniq('L_h')
    a(f's_mov_b32 s30, {SPIN}\ns_mov_b32 s29, 8\n{Lh}:\ns_load_dwordx8 s[40:47], s[56:57], 0 glc\ns_waitcnt lgkmcnt({HLIM})')
    for n in range(8): a(f's_cmp_eq_u32 s{40+n}, s{32+n}\ns_cbranch_scc1 {Lh}_f{n}\n{Lh}_r{n}:')
    a(f's_sub_u32 s30, s30, 1\ns_cmp_lg_u32 s30, 0\ns_cbranch_scc1 {Lh}\ns_branch {Lh}_all')
    for n in range(8):
        a(f'''{Lh}_f{n}:
              buffer_load_dwordx4 v[{20+4*n}:{23+4*n}], v13, s[16:19], s{72+n} offen sc1
              s_xor_b32 s{32+n}, s{32+n}, 0x55555555
              s_sub_u32 s29, s29, 1
              s_cmp_lg_u32 s29, 0
              s_cbranch_scc1 {Lh}_r{n}
              s_mov_b32 s30, {SPIN - 1}
              s_branch {Lh}_chk''')
    a(f'{Lh}_all:')
    L = poll_begin()
    for n in range(8):
        a(f's_cmp_eq_u64 s[{80+2*n}:{81+2*n}], 0\ns_cbranch_scc1 {L}_s{n}')
        a(f'buffer_load_dwordx4 v[{20+4*n}:{23+4*n}], v13, s[16:19], s{72+n} offen sc1\n{L}_s{n}:')
    a(f'{Lh}_chk:\ns_waitcnt vmcnt(0)')
    for n in range(1, 8):
        for k in (0, 2): pkadd(60 + k, 20 + k if n == 1 else 60 + k, 20 + 4 * n + k)
    a('v_permlane32_swap_b32 v60, v62\nv_permlane32_swap_b32 v61, v63')
    pkadd(60, 60, 62)
    a(f'v_cmp_u_f32 vcc, v60, v61\ns_cbranch_vccz {L}_d')
    for n in range(8): a(f'v_cmp_eq_u32 s[{80+2*n}:{81+2*n}], -1, v{20+4*n}')
    a(f's_and_b32 s7, s30, 15\ns_cbranch_scc1 {L}_k')
    for n in range(8): a(f's_mov_b32 s{80+2*n}, 1')
    a(f'{L}_k:')
    spin_back(L, T2SL)
    a(f'{L}_d:')
    stamp(11)
    cstamp(4)
    if prof: a(f's_sub_u32 s7, {SPIN+1}, s30\nv_writelane_b32 v255, s7, 3')
    rnd2(60, 61, 22)
    pkop('mul', 60, 54, 60)
    rnd2(60, 61, 22)
    pkadd(52, 52, 60)
    rnd2(52, 53, 22)
    a(f'''v_mul_f32 v25, v52, v52
          v_add_f32 v24, v52, v53
          v_fmac_f32 v25, v53, v53
          ds_write_b64 v240, v[52:53]
          v_mov_b32 v44, 0
          v_permlane16_swap_b32 v24, v25
          v_add_f32 v24, v24, v25
          v_mov_b32 v45, 0
          v_mov_b32 v46, 0
          v_add_f32_dpp v24, v24, v24 quad_perm:[1,0,3,2] {DPPF}
          v_mov_b32 v47, 0
          v_mov_b32 v48, 0
          v_add_f32_dpp v24, v24, v24 quad_perm:[2,3,0,1] {DPPF}
          v_mov_b32 v49, 0
          v_mov_b32 v50, 0
          v_add_f32_dpp v24, v24, v24 row_half_mirror {DPPF}
          v_mov_b32 v51, 0
          s_nop 0
          v_add_f32_dpp v25, v24, v24 row_mirror {DPPF}
          v_add_f32_dpp v24, v24, v24 row_mirror {DPPF}
          v_permlane32_swap_b32 v24, v25
          v_add_f32 v24, v24, v25
          s_mov_b64 exec, 0x10001
          ds_write_b32 v243, v24
          s_mov_b64 exec, -1
          s_waitcnt lgkmcnt(0)
          s_barrier''')
    cstamp(7)
    a(f'''ds_read_b128 v[24:27], v7 offset:{L_ST2}
          ds_read_b128 v[28:31], v7 offset:{L_ST2+16}
          s_waitcnt lgkmcnt(1)''')
    pkadd(24, 24, 26); a('s_waitcnt lgkmcnt(0)'); pkadd(28, 28, 30); pkadd(24, 24, 28)
    pkop('mul', 24, 24, 248)
    a(f'''v_fma_f32 v25, -v24, v24, v25
          v_max_f32 v25, 0, v25
          v_cvt_pk_bf16_f32 v22, v24, v25
          v_and_b32 v26, 0xffff0000, v22
          v_add_f32 v26, {EPS}, v26
          v_cvt_pk_bf16_f32 v26, v26, v26
          v_lshlrev_b32 v26, 16, v26
          v_sqrt_f32 v26, v26
          v_lshlrev_b32 v24, 16, v22
          v_cvt_pk_bf16_f32 v26, v26, v26
          v_lshlrev_b32 v26, 16, v26
          v_rcp_f32 v26, v26''')
    pkop('add', 52, 52, 24, 'op_sel_hi:[1,0] neg_lo:[0,1] neg_hi:[0,1]')
    rnd2(52, 53, 22)
    pkop('mul', 52, 52, 26, 'op_sel_hi:[1,0]')
    rnd2(52, 53, 22)
    pkop('mul', 52, 52, 56)
    rnd2(52, 53, 22)
    pkadd(52, 52, 58)
    a('''v_cvt_pk_bf16_f32 v52, v52, v53
         ds_write_b32 v16, v52
         ds_read_b128 v[20:23], v17
         ds_read_b128 v[24:27], v17 offset:16''')
    for k in range(56, 64): a(f'v_mov_b32 v{k}, ' + ('s31' if ZTAG and k in (60, 61) else '0'))
    if ZTAG: a('v_mov_b32 v54, s31\nv_mov_b32 v55, s31')
    def smf_pairs(n, P, acc0, acc1, B0_, B1_, bstep, waits):
        def half(t, h):
            if t >= n: return
            if h == 0 and t in waits: a(f's_waitcnt lgkmcnt({waits[t]})')
            ab = 36 + 4 * (t & 1) + 2 * h
            a(f'v_and_b32 v{ab}, v{P+t}, v{8+2*h}\nv_and_b32 v{ab+1}, v{P+t}, v{9+2*h}')
        half(0, 0); half(0, 1); half(1, 0)
        for t in range(n):
            ab = 36 + 4 * (t & 1)
            smf(acc0, ab, B0_ + bstep * t)
            half(t + 1, 1)
            smf(acc1, ab, B1_ + bstep * t)
            half(t + 2, 0)
    smf_pairs(7, 20, 44, 48, 64, 120, 8, {0: 1, 4: 0})
    a('''s_mov_b64 exec, s[50:51]
         ds_write_b128 v244, v[44:47]
         ds_write_b128 v244, v[48:51] offset:256
         s_mov_b64 exec, -1
         s_waitcnt lgkmcnt(0)
         s_barrier''')
    cstamp(8)
    for w in range(4):
        for x in range(2):
            r = 20 + 4 * w + 2 * x
            a(f'ds_read2st64_b32 v[{r}:{r+1}], v245 offset0:{L_RED//256+4*w+2*x} offset1:{L_RED//256+4*w+2*x+1}')
    if ZTAG: a('v_mov_b32 v64, 0\nv_mov_b32 v65, 0\nv_mov_b32 v66, s31\nv_mov_b32 v67, s31')
    for n in range(1, 8):
        a(f's_waitcnt lgkmcnt({7-n})'); pkadd(20, 20, 20 + 2 * n)
    a(f'''v_cvt_pk_bf16_f32 v21, v20, v21
          v_lshlrev_b32 v20, 16, v21
          v_mul_f32 v22, {NLOG2E}, v20
          v_exp_f32 v22, v22
          v_and_b32 v21, 0xffff0000, v21
          v_add_f32 v22, 1.0, v22
          v_rcp_f32 v22, v22
          v_mul_f32 v20, v20, v22''')
    rnd1(20)
    a(f'''v_mul_f32 v20, v20, v21
          v_mov_b32_dpp v21, v20 quad_perm:[1,1,3,3] {DPPF}
          v_cvt_pk_bf16_f32 v20, v20, v21''')
    for t in range(4): a(f'ds_swizzle_b32 v{24+t}, v20 offset:swizzle(BROADCAST,8,{2*t})')
    smf_pairs(4, 24, 56, 62 if ZTAG else 60, 176, 184, 16, {0: 3, 1: 2, 2: 1, 3: 0})
    if ZTAG:
        a('''buffer_store_dwordx4 v[54:57], v247, s[16:19], s63 offen sc1
             buffer_store_dwordx4 v[58:61], v247, s[16:19], s63 offen offset:3584 sc1
             buffer_store_dwordx4 v[60:63], v247, s[16:19], s65 offen sc1
             buffer_store_dwordx4 v[64:67], v247, s[16:19], s65 offen offset:3584 sc1''')
    else:
        a('''buffer_store_dwordx4 v[56:59], v247, s[16:19], s63 offen sc1
             buffer_store_dwordx4 v[60:63], v247, s[16:19], s65 offen sc1''')
    stamp(12)
    cstamp(5)
    if ZMODE == 'ack': a('s_waitcnt vmcnt(0)\ns_barrier')
    if ZMODE == 'ack3': a('s_cmp_lg_u32 s60, 3\ns_cbranch_scc1 L_zb\ns_waitcnt vmcnt(0)\nL_zb:\ns_barrier')
    if ZMODE == 'now': a('s_barrier')
    finish()

    a('.p2align 6\nL_T3:')
    srd(24, 54, 896)
    a(f'''s_mov_b64 exec, -1
          v_mov_b32 v3, {BIG}
          s_lshl_b32 s7, s69, 4
          v_and_b32 v5, 3, v0
          v_lshlrev_b32 v5, 2, v5
          v_lshrrev_b32 v6, 4, v0
          v_add3_u32 v5, v5, v6, s7
          v_lshlrev_b32 v8, 2, v5
          v_lshlrev_b32 v9, 1, v5
          v_bfe_u32 v5, v0, 2, 2
          v_cmp_ne_u32 vcc, 0, v5
          v_cndmask_b32 v9, v9, v3, vcc
          v_lshlrev_b32 v10, 4, v0
          v_cmp_lt_u32 vcc, 31, v0
          v_cndmask_b32 v11, v10, v3, vcc
          v_lshlrev_b32 v5, 3, v0
          s_mul_i32 s28, s69, {ZS}
          s_add_u32 s28, s28, {W_Z}''')
    for k in range(64, 80): a(f'v_mov_b32 v{k}, -1')
    a(f'''s_barrier
          ds_read_b32 v30, v8 offset:{L_X1}
          ds_read_b64 v[28:29], v5 offset:{L_GB}
          s_waitcnt vmcnt(0) lgkmcnt(0)''')
    if ZTAG: a('s_add_u32 s29, s28, 3584\nv_mov_b32 v77, v29\nv_mov_b32 v78, 0\nv_mov_b32 v79, 0\nv_mov_b32 v92, 0\nv_mov_b32 v93, 0\nv_mov_b32 v94, v29')
    a('s_barrier')
    if ZMODE != 'pre': a('s_barrier')
    L = poll_begin()
    if ZTAG:
        for n in (3, 0, 1, 2):
            if n == 3: a('s_mov_b32 exec_hi, 0')
            for h in range(2): a(f'buffer_load_dwordx4 v[{64+16*h+4*n}:{67+16*h+4*n}], v10, s[16:19], s{28+h} offen offset:{1024*n} sc1')
            if n == 3: a('s_mov_b64 exec, -1')
        for k, n in enumerate((3, 0, 1, 2)):
            a(f's_waitcnt vmcnt({6-2*k})')
            a(f'v_sad_u32 v24, v{65+4*n}, v29, ' + ('0' if k == 0 else 'v24') + ' clamp')
            a(f'v_sad_u32 v24, v{82+4*n}, v29, v24 clamp')
            if k >= 1:
                pkadd(20, 78 if k == 1 else 20, 66 + 4 * n); pkadd(22, 92 if k == 1 else 22, 80 + 4 * n)
        a('v_cmp_ne_u32 vcc, 0, v24\nv_permlane32_swap_b32 v20, v22\nv_permlane32_swap_b32 v21, v23')
        pkadd(20, 20, 22)
    else:
        for n in range(4): a(f'buffer_load_dwordx4 v[{64+4*n}:{67+4*n}], v{10 if n < 3 else 11}, s[16:19], s28 offen offset:{1024*n} sc1')
        a(f's_waitcnt vmcnt({4*(K3-1)})')
        for n in range(1, 4):
            for k in (0, 2): pkadd(20 + k, 64 + k if n == 1 else 20 + k, 64 + 4 * n + k)
        a('v_permlane32_swap_b32 v20, v22\nv_permlane32_swap_b32 v21, v23')
        pkadd(20, 20, 22)
        a('v_cmp_u_f32 vcc, v20, v21')
    poll_end(L, mask=False)
    stamp(13)
    a(f'''v_permlane16_swap_b32 v20, v21
          v_add_f32 v20, v20, v21
          v_add_f32_dpp v20, v20, v20 row_ror:4 {DPPF}
          v_add_f32_dpp v20, v20, v20 row_ror:8 {DPPF}''')
    rnd1(20)
    a('v_mul_f32 v20, v28, v20')
    rnd1(20)
    a('''v_add_f32 v20, v30, v20
         v_cvt_pk_bf16_f32 v20, v20, v20
         buffer_store_short v20, v9, s[24:27], 0 offen
         s_cmp_lg_u32 s69, 0
         s_cbranch_scc1 L_T3_end
         s_mov_b64 exec, 1
         buffer_store_dword v29, v7, s[16:19], 0 offen sc1''')
    a('L_T3_end:')
    stamp(14)
    finish()
    if prof:
        a('L_prof_end:\ns_mov_b64 exec, -1\ns_getreg_b32 s95, hwreg(HW_REG_XCC_ID)\nv_writelane_b32 v255, s95, 15')
        if cal:
            X, wg, wv, k = cal
            a(f's_cmp_lg_u32 s2, {wg}\ns_cbranch_scc1 L_exit\ns_cmp_lg_u32 s3, {wv}\ns_cbranch_scc1 L_exit')
            a(f'v_readlane_b32 s7, v255, {k}\ns_add_u32 s7, s7, {X*100}')
            a('L_cal:\ns_memrealtime s[96:97]\ns_waitcnt lgkmcnt(0)\ns_sub_u32 s96, s96, s7\ns_cmp_lt_i32 s96, 0\ns_cbranch_scc1 L_cal\ns_branch L_exit')
        a(f'''s_lshl_b32 s7, s2, 3
              s_add_u32 s7, s7, s3
              s_lshl_b32 s7, s7, 6
              s_add_u32 s7, s7, {W_PROF}
              v_mbcnt_lo_u32_b32 v2, -1, 0
              v_lshlrev_b32 v2, 2, v2
              s_mov_b32 s18, 0x400000
              s_mov_b64 exec, 0xffff
              buffer_store_dword v255, v2, s[16:19], s7 offen''')
    a('L_exit:\ns_endpgm\nL_code_end:')
    body = a.text()
    head = open('cdna_kernels/' + NAME + '.s.ref').read().split('; Override launch')[0]
    head += f'; @launch grid=(256,1,1) block=(512,1,1) lds={LDS_BYTES}\n'
    return head, body

def assemble_text(head, body, code_q):
    return head + f'''.amdgcn_target "amdgcn-amd-amdhsa--gfx950"
.text
.set CODE_Q, {code_q}
.globl {NAME}_kernel
.p2align 8
.type {NAME}_kernel,@function
''' + body + f'''.fill 1024, 4, 0xbf810000
.section .rodata,"a"
.p2align 6
.amdhsa_kernel {NAME}_kernel
  .amdhsa_next_free_vgpr 256
  .amdhsa_next_free_sgpr 102
  .amdhsa_accum_offset 256
  .amdhsa_group_segment_fixed_size 0
  .amdhsa_kernarg_size 112
  .amdhsa_user_sgpr_count 2
  .amdhsa_user_sgpr_kernarg_segment_ptr 1
  .amdhsa_system_sgpr_workgroup_id_x 1
.end_amdhsa_kernel
'''

def code_size(text):
    import subprocess, re, tempfile
    d = tempfile.mkdtemp()
    open(d + '/k.s', 'w').write(text)
    r = subprocess.run(['clang', '-x', 'assembler', '-target', 'amdgcn-amd-amdhsa', '-mcpu=gfx950', '-c', d + '/k.s', '-o', d + '/k.o'], capture_output=True, text=True)
    if r.returncode: print(r.stderr[:3000]); raise SystemExit(1)
    o = subprocess.run(['llvm-objdump', '-t', d + '/k.o'], capture_output=True, text=True).stdout
    return int(re.search(r'([0-9a-f]+) .* L_code_end', o).group(1), 16)

def full(**kw):
    head, body = gen(**kw)
    sz = code_size(assemble_text(head, body, 4096))
    q = -(-(sz + 128) // 4096) * 1024
    return assemble_text(head, body, q)

if __name__ == '__main__':
    kw = eval('dict(' + (sys.argv[2] if len(sys.argv) > 2 else '') + ')')
    t = full(**kw)
    open(sys.argv[1], 'w').write(t)
    print('code bytes', code_size(t), 'lines', t.count('\n'))
```

```python
import sys
from collections import deque
sys.path.insert(0, 'work')
from asmlib import Asm

NAME = 'adaLN_cond__gqa_block_cached__swiglu_ffn__decode'
W_EPOCH = 0
W_MOD = 0x1000
W_Q = 0x4000
W_ID = 0x8000
W_RS = 0x8400
W_HM = 0x8800
W_STATS = 0x10000
W_CNT = 0x18000
W_PART = 0x20000
PS = 2176
W_O = 0xa8000
W_H = 0xe8000
W_Y = 0xaa000
W_Z = 0xb2000
W_END = W_H + 112 * 64
W_PROF = 0x200000
F_Q, F_SCNT, F_P, F_PROG, F_PCNT, F_OCNT, F_TCNT, F_LAST, F_PAIR, F_M, F_RS, F_CK, F_CTL = 0, 4, 8, 12, 16, 20, 24, 28, 32, 40, 44, 64, 128
L_Q = 0x100
L_BC = 0x800
L_RED = 0x1000
L_SC = 0x3000
HS = 4096 + 64
L_X1 = 0x5100
L_ST2 = 0x5900
L_GB = 0x5a00
L_RED2 = 0x6000
L_EXT = 0x7000
BIG = 0x40000000
NLOG2E = 0xbfb8aa3b
CEXP = 0x3db8aa3b
INV448 = 0x3b124925
EPS = 0x3727c5ac
SPIN = 0x40000
DPPF = 'row_mask:0xf bank_mask:0xf'

def gen(D=5, R=54, E=28, CATCH=4, gmap='xcd', prof=False, cal=None, UNTH=0, wpol='nt', codepf=True,
        QSL=4, SSL=8, MSL=2, QTRIG=40, LASTI=255, TRIGC=200, CK=(), KG=(), CLEN=24, CDLY=8, KW=3, RP='sc1', PP='sc1', GP='sc1', TAB=None, BALL=0, EARLYBAR=True, TRIGR=214, TRIGS=232, HSL=4, HSRC='o', CROT=True, T1SPLIT=8, spol='nt', T1EARLY=0, FASTENTRY=True, SETUPAT=24, ZTAG=False, BIGB=0, PRET=None, PRE0=None, PREB=None, ZMODE='ack', HLIM=8, CNTRIG=2, K3=5, T2BIAS=0, R0=28, T1D=1, T2D=2, T2D4=3, NLATE=16, T1LATE=False, T1W=4, RW=4, SH=32, CSL=2, X='', P1D=5, P2D=3, P3D=2,
        B0=48, BP1=0, BP2=0, BP3=0, BT2=0, force_slow=False, T1SL=0, T2SL=0):
    a = Asm()
    if cal: prof = True
    LDS_BYTES = L_EXT + 4 * E * 1024
    ZS = 7168 if ZTAG else 3584
    W_ZEND = W_Z + 28 * ZS
    if ZTAG: K3 = 1
    BMAX = B0 + max(BP1, BP2, BP3, BALL)
    def stamp(k):
        if prof: a(f's_memrealtime s[96:97]\ns_waitcnt lgkmcnt(0)\nv_writelane_b32 v255, s96, {k}')
    def cstamp(k):
        if prof: a(f's_memtime s[96:97]\ns_waitcnt lgkmcnt(0)\nv_writelane_b32 v255, s96, {k}')
    def finish(): a('s_branch L_prof_end' if prof else 's_endpgm')
    def srd(d, lo, size):
        a(f's_mov_b32 s{d}, s{lo}\ns_mov_b32 s{d+1}, s{lo+1}\ns_mov_b32 s{d+2}, {size}\ns_mov_b32 s{d+3}, 0x20000')
    def masks():
        a('''v_and_b32 v6, 1, v0
             v_lshlrev_b32 v6, 4, v6
             v_mov_b32 v5, 0xffff
             v_lshlrev_b32 v5, v6, v5
             v_bfe_u32 v6, v0, 1, 2''')
        for j in range(4):
            a(f'v_cmp_eq_u32 vcc, {j}, v6\nv_cndmask_b32 v{8+j}, 0, v5, vcc')
    def abuild(dst, src):
        for j in range(4): a(f'v_and_b32 v{dst+j}, v{src}, v{8+j}')
    def mfma(acc, A, B, first):
        c = '0' if first else f'v[{acc}:{acc+3}]'
        a(f'v_mfma_f32_16x16x32_bf16 v[{acc}:{acc+3}], v[{A}:{A+3}], v[{B}:{B+3}], {c}')
    def pkadd(d, x, y): a(f'v_pk_add_f32 v[{d}:{d+1}], v[{x}:{x+1}], v[{y}:{y+1}]')
    def ldswait(flag, val, tmp, extra='', sleep=1):
        L = a.uniq('L_w'); Ld = L + '_d'
        a(f's_mov_b32 s30, {SPIN}\n{L}:\nds_read_b32 v{tmp}, v7 offset:{flag}')
        a(extra)
        a(f'''s_waitcnt lgkmcnt(0)
              v_readfirstlane_b32 s7, v{tmp}
              s_cmp_ge_u32 s7, {val}
              s_cbranch_scc1 {Ld}
              s_sleep {sleep}
              s_sub_u32 s30, s30, 1
              s_cmp_lg_u32 s30, 0
              s_cbranch_scc1 {L}
              {Ld}:''')
    def ldsflag(flag, op='ds_write_b32', val='1'):
        a(f'v_mov_b32 v6, {val}\ns_mov_b64 exec, 1\n{op} v7, v6 offset:{flag}\ns_mov_b64 exec, -1')
    def allred(op, regs, tmps, width):
        steps = ['quad_perm:[1,0,3,2]', 'quad_perm:[2,3,0,1]', 'row_half_mirror', 'row_mirror']
        n = {8: 3, 16: 4, 32: 4, 64: 4}[width]
        for st_ in steps[:n]:
            for r in regs: a(f'{op}_dpp v{r}, v{r}, v{r} {st_} {DPPF}')
        for wd, ins in ((32, 'v_permlane16_swap_b32'), (64, 'v_permlane32_swap_b32')):
            if width >= wd:
                for r, t in zip(regs, tmps): a(f'v_mov_b32 v{t}, v{r}')
                for r, t in zip(regs, tmps): a(f'{ins} v{r}, v{t}')
                for r, t in zip(regs, tmps): a(f'{op} v{r}, v{r}, v{t}')
    def rnd2(x, y, t):
        a(f'v_cvt_pk_bf16_f32 v{t}, v{x}, v{y}\nv_lshlrev_b32 v{x}, 16, v{t}\nv_and_b32 v{y}, 0xffff0000, v{t}')
    def rnd1(x):
        a(f'v_cvt_pk_bf16_f32 v{x}, v{x}, v{x}\nv_lshlrev_b32 v{x}, 16, v{x}')
    def unpack(x, y, src):
        a(f'v_lshlrev_b32 v{x}, 16, v{src}\nv_and_b32 v{y}, 0xffff0000, v{src}')
    def poll_begin():
        L = a.uniq('L_p')
        a(f's_mov_b32 s30, {SPIN}\n{L}:')
        return L
    def poll_end(L, sleep=0, mask=True):
        Ld = L + '_d'
        a(f's_cbranch_vccz {Ld}')
        if sleep: a(f's_sleep {sleep}')
        if mask: a('s_mov_b64 exec, vcc')
        a(f's_sub_u32 s30, s30, 1\ns_cmp_lg_u32 s30, 0\ns_cbranch_scc1 {L}')
        if mask: a('s_mov_b64 exec, -1')
        a(f'{Ld}:')
    def tagchk(regs, first=True):
        for k, r in enumerate(regs):
            if k == 0 and first: a(f'v_cmp_ne_u32 vcc, s31, v{r}')
            else: a(f'v_cmp_ne_u32 s[100:101], s31, v{r}\ns_or_b64 vcc, vcc, s[100:101]')
    def store2(flagreg, lines):
        L = a.uniq('L_s')
        a(f's_cmp_eq_u32 s{flagreg}, 2\ns_cbranch_scc0 {L}_slow')
        for l in lines: a(l)
        a(f's_branch {L}_done\n{L}_slow:')
        for l in lines: a(l + ' sc1')
        a(f'{L}_done:')
    def trole():
        L = a.uniq('L_r')
        a(f'''s_mov_b32 s61, 1
              s_cmp_lt_u32 s5, 14
              s_cbranch_scc1 {L}
              s_sub_u32 s62, s5, 14
              s_lshl_b32 s62, s62, 3
              s_add_u32 s62, s62, s4
              s_cmp_lt_u32 s62, 28
              s_cselect_b32 s61, 2, 0
              s_cmp_ge_u32 s5, 24
              s_cselect_b32 s61, 3, s61
              s_cmp_eq_u32 s5, 18
              s_cselect_b32 s61, 4, s61
              {L}:''')

    a(f'{NAME}_kernel:')
    if FASTENTRY:
        assert gmap == 'xcd' or True
        a('''s_load_dwordx2 s[8:9], s[0:1], 8
             v_readfirstlane_b32 s3, v0
             v_and_b32 v0, 63, v0''')
        if prof: a('v_mov_b32 v255, 0\ns_memrealtime s[96:97]')
        if gmap == 'xcd': a('s_and_b32 s4, s2, 7\ns_lshr_b32 s5, s2, 3')
        else: a('s_lshr_b32 s4, s2, 5\ns_and_b32 s5, s2, 31')
        a('''v_lshrrev_b32 v5, 4, v0
             v_and_b32 v1, 3, v0
             v_lshlrev_b32 v1, 4, v1
             s_lshl_b32 s6, s4, 5
             s_add_u32 s6, s6, s5
             v_lshl_add_u32 v1, v5, 6, v1
             v_and_b32 v6, 12, v0
             s_lshl_b32 s28, s3, 6
             s_lshr_b32 s3, s3, 6
             v_lshl_add_u32 v1, v6, 7, v1
             s_lshl_b32 s7, s6, 19
             s_bfm_b32 s10, 1, 19
             s_mov_b32 s11, 0x20000
             s_cmp_ge_u32 s3, 4
             s_cbranch_scc1 L_hbar
             s_cmpk_ge_u32 s2, 256
             s_cbranch_scc1 L_exit
             s_waitcnt lgkmcnt(0)
             s_add_u32 s8, s8, s7
             s_addc_u32 s9, s9, 0''')
    else:
        a('''s_load_dwordx16 s[32:47], s[0:1], 0
         s_load_dwordx8 s[48:55], s[0:1], 64
         s_load_dwordx4 s[56:59], s[0:1], 96
         s_cmp_ge_u32 s2, 256
         s_cbranch_scc1 L_exit
         v_lshrrev_b32 v1, 6, v0
         v_and_b32 v0, 63, v0
         v_readfirstlane_b32 s3, v1
         v_mov_b32 v7, 0
         v_lshlrev_b32 v2, 2, v0
         ds_write_b32 v2, v7''')
        if gmap == 'xcd': a('s_and_b32 s4, s2, 7\ns_lshr_b32 s5, s2, 3')
        else: a('s_lshr_b32 s4, s2, 5\ns_and_b32 s5, s2, 31')
        a('''s_lshl_b32 s6, s4, 5
         s_add_u32 s6, s6, s5
         s_lshl_b32 s7, s6, 19
         v_lshrrev_b32 v5, 4, v0
         v_bfe_u32 v6, v0, 2, 2
         v_and_b32 v1, 3, v0
         v_lshlrev_b32 v1, 4, v1
         v_lshl_add_u32 v1, v5, 6, v1
         v_lshl_add_u32 v1, v6, 9, v1
         s_lshl_b32 s28, s3, 12
         s_mov_b32 s10, 0x80000
         s_mov_b32 s11, 0x20000''')
        if prof: a('v_mov_b32 v255, 0\ns_memrealtime s[96:97]')
        a('''s_waitcnt lgkmcnt(0)
         s_add_u32 s8, s34, s7
         s_addc_u32 s9, s35, 0''')
        if prof: a('v_writelane_b32 v255, s96, 0')
        if EARLYBAR: a('s_barrier\ns_cmp_ge_u32 s3, 4\ns_cbranch_scc1 L_helper')
        else: a('s_cmp_ge_u32 s3, 4\ns_cbranch_scc1 L_hbar')


    RB = 36
    st = dict(issued=0, done=-1, lds=0)
    free = deque(RB + 4 * k for k in range(R))
    loc = {}; rdseq = {}
    progs = sorted(set([QTRIG, TRIGC, TRIGR, TRIGS]))
    assert min(LASTI, TRIGC, TRIGR, TRIGS) >= 128 + R and QTRIG < R + E and (not CK or CK[0] >= R + E)
    C0 = (CK[0] + CDLY) if CK else 1000
    def depth(i): return D + 1 if (B0 <= i < BMAX or i >= C0) else D
    def vwait(n):
        a(f's_waitcnt vmcnt({n})'); st['done'] = max(st['done'], st['issued'] - 1 - n)
    def inlds(i): return R <= i < R + E
    def can_issue(): return st['issued'] < 256 and (inlds(st['issued']) or len(free) > 0)
    def issue():
        i = st['issued']; d = depth(i)
        if i >= d and i < 256 - UNTH:
            if inlds(i): a(f's_add_u32 m0, s63, {(i-R)*1024 - (((i>>1)&1)*2048 + (i&1)*256) + 4096}')
            if d > D:
                L = a.uniq('L_b')
                a(f's_cmpk_gt_u32 s61, {i}\ns_cbranch_scc1 {L}')
                if i >= C0: a(f's_cmpk_le_u32 s60, {i}\ns_cbranch_scc1 {L}_n\ns_waitcnt vmcnt({D-2})\n{L}_n:')
                a(f's_waitcnt vmcnt({D-1})\n{L}:')
            if st['done'] < i - d: vwait(d - 1)
        if i == D: stamp(8)
        if i in (208, 232, 244): stamp({208: 9, 232: 10, 244: 11}[i])
        if i < 128:
            off = ((i >> 1) & 1) * 2048 + (i & 1) * 256
            if inlds(i):
                a(f'buffer_load_dwordx4 v1, s[8:11], s28 offen offset:{off} {spol} lds')
            else:
                r = loc[i] = free.popleft()
                a(f'buffer_load_dwordx4 v[{r}:{r+3}], v1, s[8:11], s28 offen offset:{off} {spol}')
            if i % 4 == 3 and i < 127: a('s_add_u32 s28, s28, 0x4000')
        else:
            r = loc[i] = free.popleft()
            a(f'buffer_load_dwordx4 v[{r}:{r+3}], v2, s[12:15], s29 offen offset:{(i&1)*2048} {spol}')
            if i % 4 == 1: a('s_add_u32 s29, s29, 0x1000')
            if i % 4 == 3 and i < 255: a('s_add_u32 s29, s29, 0x3000')
        st['issued'] += 1
        if i in progs:
            ldsflag(F_PROG, 'ds_max_u32', i); st['lds'] += 1
        if i == LASTI: ldsflag(F_LAST, 'ds_add_u32')
        for n, c in enumerate(CK):
            for role, pos in ((0, c), (1, c + T2BIAS)) if T2BIAS else ((None, c),):
                if i not in (pos, pos + CDLY - 2, pos + CDLY - 1): continue
                L = a.uniq('L_c')
                if role is not None: a(f's_cmp_lg_u32 s64, {role}\ns_cbranch_scc1 {L}')
                if i == pos:
                    a(f'v_mov_b32 v6, 1\ns_mov_b64 exec, 1\nds_add_rtn_u32 v253, v7, v6 offset:{F_CK+4*n}\ns_mov_b64 exec, -1')
                elif i == pos + CDLY - 2:
                    a(f'ds_read_b32 v254, v7 offset:{F_CTL+4*n}')
                else:
                    a(f'''s_waitcnt lgkmcnt(0)
                          v_readfirstlane_b32 s7, v253
                          v_readfirstlane_b32 s65, v254
                          s_mul_i32 s7, s7, {KW}
                          s_sub_u32 s7, s7, {(3*KW)//2}
                          s_add_u32 s7, s7, s65
                          s_add_u32 s61, s7, {i+1}
                          s_sub_u32 s60, {i+1}, s7''')
                a(f'{L}:')
    def ensure(i):
        if st['done'] < i: vwait(st['issued'] - 1 - i)
    for i in range(D): issue()
    if FASTENTRY:
        a('''L_hbar:
             s_cmpk_ge_u32 s2, 256
             s_cbranch_scc1 L_exit
             s_load_dwordx16 s[32:47], s[0:1], 0
             s_load_dwordx8 s[48:55], s[0:1], 64
             s_load_dwordx4 s[56:59], s[0:1], 96
             v_mov_b32 v7, 0
             v_lshlrev_b32 v2, 2, v0
             ds_write_b32 v2, v7
             v_lshrrev_b32 v6, 2, v6
             s_waitcnt lgkmcnt(0)''')
        if prof: a('v_writelane_b32 v255, s96, 0')
        a('s_barrier\ns_cmp_ge_u32 s3, 4\ns_cbranch_scc1 L_helper')
        while st['issued'] < SETUPAT: issue()
    elif not EARLYBAR: a('L_hbar:\ns_barrier\ns_cmp_ge_u32 s3, 4\ns_cbranch_scc1 L_helper')
    a(f'''s_add_u32 s12, s36, s7
          s_addc_u32 s13, s37, 0
          s_mov_b32 s14, 0x80000
          s_mov_b32 s15, 0x20000
          s_and_b32 s24, s3, 1
          s_lshr_b32 s25, s3, 1
          s_lshl_b32 s29, s25, 13
          s_lshl_b32 s7, s24, 8
          s_add_u32 s29, s29, s7
          v_and_b32 v2, 15, v0
          v_lshlrev_b32 v2, 4, v2
          v_lshl_add_u32 v2, v5, 9, v2
          s_lshl_b32 s7, s25, 11
          s_add_u32 s7, s7, {L_SC}
          v_bfe_u32 v4, v0, 3, 1
          v_mul_u32_u24 v4, {HS}, v4
          v_lshl_add_u32 v4, v5, 4, v4
          v_add_u32 v4, s7, v4
          s_lshl_b32 s26, s24, 3
          s_add_u32 s7, s7, s26
          v_and_b32 v3, 1, v5
          v_mul_u32_u24 v3, {HS}, v3
          v_lshl_add_u32 v3, v6, 4, v3
          v_lshrrev_b32 v12, 5, v0
          v_lshl_add_u32 v3, v12, 2, v3
          v_add_u32 v3, s7, v3
          v_bfe_u32 v12, v0, 2, 1
          v_lshlrev_b32 v12, 9, v12
          v_lshl_add_u32 v12, v5, 6, v12
          v_and_b32 v13, 3, v0
          v_lshl_add_u32 v12, v13, 4, v12
          s_mul_i32 s63, s3, {E*1024}
          s_add_u32 s63, s63, {L_EXT}
          v_lshl_add_u32 v252, v0, 4, s63
          s_sub_u32 s63, s63, 4096''')
    srd(16, 58, W_END)
    masks()
    trole()
    a(f'''s_cmp_eq_u32 s61, 2
          s_cselect_b32 s64, 1, 0
          s_mov_b32 s69, s62
          s_mov_b32 s60, 0
          s_cmp_ge_u32 s2, {256-106}
          s_cselect_b32 s7, {BP3}, {BALL}
          s_cmp_ge_u32 s2, {256-78}
          s_cselect_b32 s7, {BP2}, s7
          s_cmp_ge_u32 s2, {256-14}
          s_cselect_b32 s7, {BP1}, s7
          s_add_u32 s61, s7, {B0}''')
    while st['issued'] < R + E: issue()
    stamp(1)
    ldswait(F_Q, 0 if 's' in X else 1, 5, extra=f'ds_read_b128 v[28:31], v12 offset:{L_Q}\nds_read_b128 v[32:35], v12 offset:{L_Q+256}')
    stamp(2)
    a('v_bfe_u32 v5, v0, 3, 1\nv_cmp_eq_u32 vcc, 0, v5')
    for k in range(8): a(f'v_cndmask_b32 v{20+k}, 0, v{28+k}, vcc')
    a('v_cmp_eq_u32 vcc, 1, v5')
    for k in range(8): a(f'v_cndmask_b32 v{28+k}, 0, v{28+k}, vcc')
    def post_group(gm):
        d = 12 + 4 * (gm & 1)
        a(f'''v_mov_b32_dpp v5, v{d} quad_perm:[0,0,0,0] {DPPF}
              v_add_f32_dpp v5, v{d+1}, v5 quad_perm:[1,1,1,1] {DPPF}
              v_add_f32_dpp v5, v{d+2}, v5 quad_perm:[2,2,2,2] {DPPF}
              v_add_f32_dpp v5, v{d+3}, v5 quad_perm:[3,3,3,3] {DPPF}
              ds_write_b32 v3, v5 offset:{gm*64}''')
        st['lds'] += 1
    def consumeK(i):
        k = i + 4
        if inlds(k):
            ensure(k)
            r = loc[k] = free.popleft()
            a(f'ds_read_b128 v[{r}:{r+3}], v252 offset:{(k-R)*1024}')
            rdseq[k] = st['lds']; st['lds'] += 1
        if inlds(i): a(f's_waitcnt lgkmcnt({min(15, st["lds"] - rdseq[i] - 1)})')
        else: ensure(i)
        gm, q = i >> 2, i & 3
        mfma(12 + 4 * (gm & 1), 20 + 4 * q, loc[i], q == 0)
        free.append(loc[i])
        if q == 2 and gm > 0: post_group(gm - 1)
        if i == 127:
            post_group(31)
            ldsflag(F_SCNT, 'ds_add_u32')
    def consumeV(i):
        t = i - 128
        ab = 20 + 4 * (t & 1); pb = 28 + 4 * ((t >> 2) & 1)
        if t & 3 == 0:
            a('s_waitcnt lgkmcnt(0)')
            if t + 4 < 128:
                pn = 28 + 4 * (((t >> 2) + 1) & 1)
                a(f'ds_read_b128 v[{pn}:{pn+3}], v4 offset:{((t>>2)+1)*64}')
        abuild(ab, pb + (t & 3))
        ensure(i)
        mfma(12, ab, loc[i], t == 0)
        free.append(loc[i])
        if i == 200:
            a(f'''s_lshl_b32 s7, s3, 10
                  s_add_u32 s7, s7, {L_RED2}
                  v_lshl_add_u32 v3, v0, 4, s7
                  v_xor_b32 v1, 0x800, v3
                  s_lshl_b32 s7, s24, 2
                  v_mov_b32 v16, s7
                  v_mov_b32 v17, 1
                  v_lshrrev_b32 v5, 5, v0
                  v_bfe_u32 v6, v0, 1, 3
                  v_lshl_add_u32 v5, v5, 4, v6
                  v_mul_u32_u24 v5, {PS}, v5
                  v_and_b32 v6, 1, v0
                  v_lshl_add_u32 v5, v6, 5, v5
                  v_bfe_u32 v6, v0, 4, 1
                  v_lshl_add_u32 v18, v6, 4, v5
                  s_lshl_b32 s28, s4, 2
                  s_add_u32 s28, s28, s24
                  s_mul_i32 s28, s28, {8*PS}
                  s_lshl_b32 s7, s5, 6
                  s_add_u32 s28, s28, s7
                  s_add_u32 s28, s28, {W_PART}''')
    def run(consume, c0, c1):
        c = c0
        while c < c1:
            n_is = st['issued']; lag = n_is - c
            if n_is >= 256 - UNTH and can_issue():
                issue(); continue
            dd = depth(n_is)
            if lag > dd or n_is >= 256:
                n = min(CATCH, c1 - c, max(1, lag - dd)) if n_is < 256 else c1 - c
                for _ in range(n): consume(c); c += 1
            if can_issue(): issue()
    run(consumeK, 0, 128)
    stamp(3)
    while can_issue(): issue()
    assert st['issued'] == 128 + R
    stamp(4)
    ldswait(F_P, 0 if ('s' in X or 'M' in X) else 1, 5, extra='ds_read_b128 v[28:31], v4')
    a('s_mov_b32 s62, 2' if ('s' in X or 'M' in X) else 's_mov_b32 s62, s7')
    stamp(5)
    run(consumeV, 128, 253)
    if not ('s' in X or 'T' in X): ldswait(F_RS, 1, 5, sleep=1)
    run(consumeV, 253, 256)
    stamp(6)
    a(f'''ds_write_b128 v3, v[12:15]
          s_mov_b64 exec, 1
          ds_add_rtn_u32 v5, v16, v17 offset:{F_PAIR}
          s_mov_b64 exec, -1
          ds_read_b128 v[40:43], v1
          s_mov_b64 exec, 1
          ds_add_u32 v7, v17 offset:{F_OCNT}
          s_mov_b64 exec, -1
          s_waitcnt lgkmcnt(1)
          v_readfirstlane_b32 s7, v5''')
    pkadd(12, 12, 40); pkadd(14, 14, 42)
    a('s_cmp_lg_u32 s7, 1\ns_cbranch_scc1 L_stream_end')
    store2(62, ['buffer_store_dwordx4 v[12:15], v18, s[16:19], s28 offen'])
    stamp(7)
    a('L_stream_end:')
    if not ('s' in X or 'T' in X): a('s_cmp_eq_u32 s3, 0\ns_cselect_b32 s7, s64, 0\ns_cmp_eq_u32 s7, 1\ns_cbranch_scc1 L_T3')
    finish()

    a('.p2align 6\nL_helper:')
    stamp(1)
    srd(16, 58, W_END)
    if 's' in X: finish()
    a('s_load_dword s31, s[58:59], 0\ns_getreg_b32 s24, hwreg(HW_REG_XCC_ID, 0, 4)')
    a(f'''s_sub_u32 s60, s3, 4
          s_mul_i32 s7, s60, 112
          v_lshrrev_b32 v1, 3, v0
          v_and_b32 v2, 7, v0
          v_mul_u32_u24 v13, 14, v1
          v_add_u32 v13, s7, v13
          v_lshl_add_u32 v12, v2, 1, v13
          v_cmp_eq_u32 vcc, 7, v2
          v_lshlrev_b32 v14, 1, v12
          v_lshlrev_b32 v15, 2, v12
          v_mov_b32 v3, {BIG}
          v_cndmask_b32 v14, v14, v3, vcc
          v_cndmask_b32 v15, v15, v3, vcc
          s_sub_u32 s62, 255, s2
          s_cmp_ge_u32 s62, 106
          s_cbranch_scc1 L_noP
          s_cmp_ge_u32 s62, 78
          s_cbranch_scc1 L_P3
          s_cmp_ge_u32 s62, 14
          s_cbranch_scc1 L_P2''')
    def wtile(base, srdn, stride, n, voff, sreg, dep, m0, m1):
        for m in range(m0, m1):
            if m >= dep: a(f's_waitcnt vmcnt({dep-1})')
            a(f'buffer_load_dwordx4 v[{base+4*m}:{base+4*m+3}], v{voff}, s[{srdn}:{srdn+3}], s{sreg} offen {wpol}')
            if m < n - 1: a(f's_add_u32 s{sreg}, s{sreg}, {stride}')
    def common_addrs():
        a(f'''s_lshl_b32 s7, s60, 9
              s_add_u32 s7, s7, {L_BC}
              v_lshl_add_u32 v16, v0, 3, s7
              v_lshl_add_u32 v17, v1, 6, s7
              s_lshl_b32 s7, s60, 10
              s_add_u32 s7, s7, {L_RED}
              v_lshl_add_u32 v18, v0, 4, s7
              v_bfe_u32 v5, v0, 2, 3
              v_bfe_u32 v6, v0, 1, 1
              v_lshl_add_u32 v5, v6, 4, v5
              v_and_b32 v6, 1, v0
              v_lshlrev_b32 v6, 3, v6
              v_lshl_add_u32 v19, v5, 4, v6
              v_lshlrev_b32 v4, 3, v0
              v_cmp_lt_u32 vcc, 31, v0
              v_cndmask_b32 v4, v4, v3, vcc''')
        masks()
        L = a.uniq('L_i')
        a(f'''s_waitcnt lgkmcnt(0)
              s_mul_i32 s31, s31, 1664525
              s_add_u32 s31, s31, 1013904223
              s_xor_b32 s24, s24, s31
              v_and_b32 v63, 31, v0
              v_lshlrev_b32 v63, 2, v63
              s_lshl_b32 s27, s4, 7
              s_add_u32 s27, s27, {W_ID}
              s_cmp_lg_u32 s60, 0
              s_cbranch_scc1 {L}
              s_lshl_b32 s7, s5, 2
              v_mov_b32 v5, s7
              v_mov_b32 v6, s24
              s_mov_b64 exec, 1
              buffer_store_dword v6, v5, s[16:19], s27 offen
              s_mov_b64 exec, -1
              {L}:''')
    def mktag(): pass
    def idflag(r):
        a(f'v_cmp_ne_u32 vcc, s24, v{r}\ns_cmp_eq_u64 vcc, 0\ns_cselect_b32 s25, {1 if force_slow else 2}, 1')
    def p1body(dep, crit):
        if crit:
            a(f'''v_lshrrev_b32 v5, 4, v0
                  v_mul_u32_u24 v5, 1792, v5
                  v_and_b32 v6, 15, v0
                  v_lshl_add_u32 v5, v6, 4, v5
                  v_lshrrev_b32 v6, 1, v0
                  v_lshlrev_b32 v6, {8 if CROT else 10}, v6
                  v_cmp_lt_u32 vcc, {63 if CROT else 15}, v0
                  v_cndmask_b32 v6, v6, v3, vcc
                  v_and_b32 v40, 1, v0
                  v_lshl_add_u32 v6, v40, 4, v6
                  s_mul_i32 s28, s60, {4*1792}
                  s_lshl_b32 s7, s62, 8
                  s_add_u32 s28, s28, s7
                  s_add_u32 s28, s28, {W_Y}
                  s_lshl_b32 s29, s60, 13
                  s_add_u32 s29, s29, {W_CNT}
                  s_cmp_ge_u32 s62, {0 if 'y' in X else 8}
                  s_cbranch_scc1 L_noclr
                  s_cmp_lt_u32 s62, 7
                  s_cselect_b32 s28, s28, s29
                  s_cselect_b32 s7, -1, 0
                  s_cselect_b64 vcc, -1, 0
                  v_mov_b32 v40, s7
                  v_mov_b32 v41, s7
                  v_mov_b32 v42, s7
                  v_mov_b32 v43, s7
                  v_cndmask_b32 v5, v6, v5, vcc
                  buffer_store_dwordx4 v[40:43], v5, s[16:19], s28 offen {RP}
                  L_noclr:''')
        srd(8, 52, 0 if ('w' in X or 'm' in X) else 448 * 5376)
        srd(12, 50, 896)
        a('''buffer_load_dword v52, v14, s[12:15], 0 offen nt
             v_mul_u32_u24 v53, 5376, v13
             v_lshl_add_u32 v53, v2, 4, v53
             s_lshl_b32 s28, s62, 7''')
        wtile(64, 8, 5376, 14, 53, 28, dep, 0, dep)
        a(f's_lshl_b32 s63, s62, 8\ns_add_u32 s63, s63, {W_MOD}')
        common_addrs()
        a(f's_waitcnt vmcnt({dep})')
        unpack(54, 55, 52)
        for r in (54, 55): a(f'v_mul_f32 v{r+2}, {NLOG2E}, v{r}')
        for r in (54, 55): a(f'v_exp_f32 v{r+2}, v{r+2}')
        for r in (54, 55): a(f'v_add_f32 v{r+2}, 1.0, v{r+2}')
        for r in (54, 55): a(f'v_rcp_f32 v{r+2}, v{r+2}')
        for r in (54, 55): a(f'v_mul_f32 v{r}, v{r}, v{r+2}')
        wtile(64, 8, 5376, 14, 53, 28, dep, dep, 14)
        a('s_mov_b32 s25, 1')
        if crit: a(f'v_lshlrev_b32 v62, 6, v0\nv_cmp_gt_u32 vcc, 16, v0\nv_cndmask_b32 v62, v3, v62, vcc\ns_lshl_b32 s26, s62, 2\ns_add_u32 s26, s26, {W_HM}')
        else: a('v_mov_b32 v62, v3\ns_mov_b32 s26, 0')
        stamp(12)
        a('s_branch L_Pgemv')
    p1body(P1D, True)
    a('L_P3:\ns_sub_u32 s62, s62, 64')
    p1body(P3D, False)

    a('L_P2:\ns_sub_u32 s62, s62, 14')
    a(f's_and_b32 s26, s62, 15\ns_lshl_b32 s26, s26, 6\ns_add_u32 s26, s26, {W_HM}')
    if gmap == 'xcd':
        a('s_lshr_b32 s62, s62, 3\ns_lshl_b32 s7, s4, 3\ns_add_u32 s62, s62, s7')
    srd(8, 38, 0 if ('w' in X or 'q' in X) else 448 * 8192)
    srd(12, 32, 896)
    a('''v_lshlrev_b32 v5, 4, v0
         buffer_load_dwordx4 v[20:23], v5, s[12:15], 0 offen nt
         buffer_load_dword v52, v14, s[12:15], 0 offen nt
         v_lshlrev_b32 v53, 13, v13
         v_lshl_add_u32 v53, v2, 4, v53
         s_lshl_b32 s28, s62, 7''')
    wtile(64, 8, 8192, 14, 53, 28, P2D, 0, P2D)
    a(f's_lshl_b32 s63, s62, 8\ns_add_u32 s63, s63, {W_Q}')
    common_addrs()
    wtile(64, 8, 8192, 14, 53, 28, P2D, P2D, min(14, 2 * P2D))
    if P2D == 14: a('s_waitcnt vmcnt(14)')
    for k in range(4): unpack(24 + 2 * k, 25 + 2 * k, 20 + k)
    a('v_add_f32 v32, v24, v25')
    for k in range(2, 8): a(f'v_add_f32 v32, v32, v{24+k}')
    allred('v_add_f32', [32], [33], 64)
    a(f'v_mul_f32 v32, {INV448}, v32')
    for k in range(8): a(f'v_sub_f32 v{24+k}, v{24+k}, v32')
    a('v_mul_f32 v34, v24, v24')
    for k in range(1, 8): a(f'v_fmac_f32 v34, v{24+k}, v{24+k}')
    a('v_cmp_gt_u32 vcc, 56, v0\nv_cndmask_b32 v34, 0, v34, vcc')
    allred('v_add_f32', [34], [33], 64)
    a(f'v_mul_f32 v34, {INV448}, v34')
    def ln_tail(mu, var, t, x0, x1):
        rnd2(mu, var, t)
        a(f'v_add_f32 v{var}, {EPS}, v{var}')
        a(f'v_sub_f32 v{x0}, v{x0}, v{mu}\nv_sub_f32 v{x1}, v{x1}, v{mu}')
        rnd1(var)
        a(f'v_sqrt_f32 v{var}, v{var}')
        rnd2(x0, x1, t)
        rnd1(var)
        a(f'v_rcp_f32 v{var}, v{var}')
        a(f'v_mul_f32 v{x0}, v{x0}, v{var}\nv_mul_f32 v{x1}, v{x1}, v{var}')
        rnd2(x0, x1, t)
    unpack(54, 55, 52)
    ln_tail(32, 34, 33, 54, 55)
    wtile(64, 8, 8192, 14, 53, 28, P2D, min(14, 2 * P2D), 14)
    mktag()
    stamp(12)
    a(f's_mov_b32 s28, {W_MOD}\nv_cmp_ne_u32 s[98:99], 7, v2\nv_mov_b32 v62, v3')
    a('s_cmp_lg_u32 s60, 0\ns_cbranch_scc1 L_mw')
    L = a.uniq('L_hm')
    a(f's_mov_b32 s30, {SPIN}\n{L}:\ns_load_dwordx16 s[76:91], s[58:59], s26 glc\ns_mov_b32 s7, 0\ns_waitcnt lgkmcnt(0)')
    for r in range(14): a(f's_cmp_eq_u32 s{76+r}, s31\ns_addc_u32 s7, s7, 0')
    a(f's_cmp_ge_u32 s7, 14\ns_cbranch_scc1 {L}_d\ns_sleep {HSL}\ns_sub_u32 s30, s30, 1\ns_cmp_lg_u32 s30, 0\ns_cbranch_scc1 {L}\n{L}_d:')
    ldsflag(F_M)
    a('L_mw:')
    ldswait(F_M, 1, 5, sleep=1)
    a('buffer_load_dword v35, v63, s[16:19], s27 offen sc1')
    L = poll_begin()
    a(f'''buffer_load_dwordx2 v[56:57], v15, s[16:19], s28 offen {PP}
         buffer_load_dwordx2 v[58:59], v15, s[16:19], s28 offen offset:1792 {PP}
         s_waitcnt vmcnt(0)''')
    tagchk([57, 59]); a('s_and_b64 vcc, vcc, s[98:99]')
    poll_end(L, sleep=MSL, mask=False)
    stamp(2)
    if gmap == 'xcd': idflag(35)
    else: a('s_mov_b32 s25, 1')
    unpack(60, 61, 58)
    a('v_add_f32 v60, 1.0, v60\nv_add_f32 v61, 1.0, v61')
    rnd2(60, 61, 33)
    a('v_mul_f32 v54, v54, v60\nv_mul_f32 v55, v55, v61')
    rnd2(54, 55, 33)
    unpack(60, 61, 56)
    a('v_add_f32 v54, v54, v60\nv_add_f32 v55, v55, v61')

    a('L_Pgemv:')
    def bcast14(x0, x1):
        a(f'''v_cvt_pk_bf16_f32 v{x0}, v{x0}, v{x0}
              v_cvt_pk_bf16_f32 v{x1}, v{x1}, v{x1}
              ds_write_b64 v16, v[{x0}:{x1}]''')
        for k in range(4): a(f'ds_read_b128 v[{20+4*k}:{23+4*k}], v17 offset:{16*k}')
    bcast14(54, 55)
    a('s_waitcnt lgkmcnt(0)')
    stamp(13)
    for m in range(14):
        ab = 36 + 4 * (m & 1)
        abuild(ab, 20 + m)
        a(f's_waitcnt vmcnt({13-m})')
        mfma(44, ab, 64 + 4 * m, m == 0)
    def red8(cnt, skip):
        a(f'''v_mov_b32 v6, 1
              ds_write_b128 v18, v[44:47]
              s_mov_b64 exec, 1
              ds_add_rtn_u32 v5, v7, v6 offset:{cnt}
              s_mov_b64 exec, -1''')
        for w in range(4):
            for x in range(2):
                r = 20 + 4 * w + 2 * x
                a(f'ds_read_b64 v[{r}:{r+1}], v19 offset:{L_RED + w*1024 + x*640}')
        a(f'''s_waitcnt lgkmcnt(0)
              v_readfirstlane_b32 s7, v5''')
        for stp in (2, 4, 8):
            for r in range(20, 36, 2 * stp): pkadd(r, r, r + stp)
        a(f's_cmp_lg_u32 s7, 3\ns_cbranch_scc1 {skip}')
    stamp(14)
    red8(F_PCNT, 'L_Pdone')
    a(f'''v_cvt_pk_bf16_f32 v20, v20, v21
         v_mov_b32 v21, s31''')
    store2(25, ['buffer_store_dwordx2 v[20:21], v4, s[16:19], s63 offen'])
    a('buffer_store_dword v21, v62, s[16:19], s26 offen sc1')
    stamp(3)
    a('s_branch L_Pdone')

    a('L_noP:')
    if codepf:
        a(f'''s_cmp_ge_u32 s2, 16
              s_cbranch_scc1 L_nopf
              s_getpc_b64 s[42:43]
              L_pc:
              s_sub_u32 s42, s42, L_pc-{NAME}_kernel
              s_subb_u32 s43, s43, 0
              s_mul_i32 s7, s60, CODE_Q
              v_lshl_add_u32 v5, v0, 4, s7
              .rept CODE_Q/1024
              global_load_dwordx4 v[20:23], v5, s[42:43]
              v_add_u32 v5, 0x400, v5
              .endr
              L_nopf:''')
    common_addrs()
    mktag()
    a('L_Pdone:')
    trole()
    a('s_cmp_lg_u32 s60, 0\ns_cbranch_scc1 L_early')
    a(f'''v_lshlrev_b32 v48, 4, v0
          v_mov_b32 v40, -1
          v_mov_b32 v41, -1
          v_mov_b32 v42, -1
          v_mov_b32 v43, -1
          s_cmp_lg_u32 s61, {7 if ('z' in X or ZTAG) else 2}
          s_cbranch_scc1 L_rs2
          s_mul_i32 s29, s62, 3584
          s_add_u32 s29, s29, {W_Z}
          v_lshlrev_b32 v5, 3, v0
          buffer_store_dwordx4 v[40:43], v48, s[16:19], s29 offen {RP}
          buffer_store_dwordx4 v[40:43], v48, s[16:19], s29 offen offset:1024 {RP}
          buffer_store_dwordx4 v[40:43], v48, s[16:19], s29 offen offset:2048 {RP}
          buffer_store_dwordx2 v[40:41], v5, s[16:19], s29 offen offset:3072 {RP}''')
    a(f'''L_rs2:
          s_lshl_b32 s28, s4, 11
          s_add_u32 s28, s28, {W_Q}''')
    ldswait(F_PROG, QTRIG, 5, sleep=4)
    L = poll_begin()
    a(f'''buffer_load_dwordx4 v[20:23], v48, s[16:19], s28 offen {PP}
         buffer_load_dwordx4 v[24:27], v48, s[16:19], s28 offen offset:1024 {PP}
         s_waitcnt vmcnt(0)
         s_mov_b64 exec, -1''')
    tagchk([21, 23, 25, 27])
    poll_end(L, sleep=QSL)
    a(f'''v_lshlrev_b32 v6, 3, v0
          v_add_u32 v6, {L_Q}, v6
          ds_write2_b32 v6, v20, v22 offset0:0 offset1:1
          ds_write2_b32 v6, v24, v26 offset0:128 offset1:129''')
    ldsflag(F_Q)
    stamp(4)
    a('buffer_load_dword v20, v63, s[16:19], s27 offen sc1\ns_waitcnt vmcnt(0)')
    idflag(20)
    a('L_early:')
    def t1loads(dep, n0=0, n1=8):
        n = 0
        for t in range(4):
            for hf in range(2):
                r = 64 + 8 * t + 4 * hf
                n += 1
                if not n0 <= n - 1 < n1: continue
                if n - 1 >= dep: a(f's_waitcnt vmcnt({dep-1})')
                a(f'buffer_load_dwordx4 v[{r}:{r+3}], v250, s[8:11], s{66+2*hf+(t>>1)} offen offset:{1792*(t&1)} {wpol}')
    tl2 = []
    for base, sr, so in ((64, 8, 66), (120, 12, 68)):
        for t in range(7):
            for hf in range(2):
                r = base + 8 * t + 4 * hf
                tl2.append((f'buffer_load_dwordx4 v[{r}:{r+3}], v250, s[{sr}:{sr+3}], s{so+hf} offen {wpol}', f's_add_u32 s{so+hf}, s{so+hf}, 7168'))
    for t in range(4):
        for k in range(2):
            for hf in range(2):
                r = 176 + 16 * t + 8 * k + 4 * hf
                tl2.append((f'buffer_load_dwordx4 v[{r}:{r+3}], v{251+k}, s[20:23], s{70+hf} offen {wpol}', f's_add_u32 s{70+hf}, s{70+hf}, 1792' if k == 1 else ''))
    a('''v_lshrrev_b32 v5, 5, v0
         v_bfe_u32 v6, v0, 3, 1
         v_lshl_add_u32 v253, v5, 1, v6
         v_bfe_u32 v254, v0, 4, 1
         v_mov_b32 v250, v3
         v_mov_b32 v251, v3
         v_mov_b32 v252, v3''')
    a('s_cmp_lg_u32 s61, 1\ns_cbranch_scc1 L_early2')
    srd(8, 40, 0 if 'o' in X else 4096 * 896)
    a(f'''s_and_b32 s64, s5, 1
          s_lshl_b32 s66, s4, 1
          s_add_u32 s66, s66, s64
          s_lshl_b32 s66, s66, 8
          s_lshl_b32 s7, s60, 6
          s_add_u32 s66, s66, s7
          s_mul_i32 s66, s66, 896
          s_lshr_b32 s7, s5, 1
          s_lshl_b32 s7, s7, 7
          s_add_u32 s66, s66, s7
          s_add_u32 s67, s66, {4*896}
          s_add_u32 s68, s66, {32*896}
          s_add_u32 s69, s66, {36*896}
          v_lshl_add_u32 v250, v253, 3, v254
          v_mul_u32_u24 v250, 896, v250
          v_lshl_add_u32 v250, v2, 4, v250''')
    if not T1LATE: t1loads(T1D)
    elif T1EARLY: t1loads(T1D, 0, T1EARLY)
    a('L_early2:\ns_cmp_lg_u32 s61, 2\ns_cbranch_scc1 L_early3')
    srd(8, 44, 0 if 't' in X else 448 * 3584)
    srd(12, 46, 0 if 't' in X else 448 * 3584)
    srd(20, 48, 0 if 't' in X else 1792 * 896)
    a(f'''v_mad_u32_u24 v250, v253, 14, v254
          v_mul_u32_u24 v250, 3584, v250
          v_lshl_add_u32 v250, v2, 4, v250
          v_lshl_add_u32 v251, v253, 3, v254
          v_mul_u32_u24 v251, 896, v251
          v_lshl_add_u32 v251, v2, 4, v251
          v_add_u32 v252, 128, v251
          s_cmp_lg_u32 s60, 3
          s_cbranch_scc1 L_T2b
          v_mov_b32 v252, v3
          L_T2b:
          s_mul_i32 s66, s60, {112*3584}
          s_lshl_b32 s7, s62, 7
          s_add_u32 s66, s66, s7
          s_add_u32 s67, s66, {56*3584}
          s_mov_b32 s68, s66
          s_mov_b32 s69, s67
          s_mul_i32 s70, s62, {64*896}
          s_lshl_b32 s7, s60, 8
          s_add_u32 s70, s70, s7
          s_add_u32 s71, s70, {32*896}
          s_cmp_eq_u32 s60, 0
          s_cselect_b64 vcc, -1, 0''')
    for n, (ld, nx) in enumerate(tl2[:44 - NLATE]):
        if n >= T2D and T2D4 > T2D:
            L = a.uniq('L_e')
            a(f's_cbranch_vccnz {L}\ns_waitcnt vmcnt({T2D-1})\n{L}:')
        if n >= T2D4: a(f's_waitcnt vmcnt({T2D4-1})')
        a(ld); a(nx)
    a('L_early3:')
    stamp(12)
    if CK:
        a('s_cmp_lg_u32 s60, 1\ns_cbranch_scc1 L_noctl')
        tab = TAB or [8 * r - R0 for r in range(8)]
        tv = sum((t & 255) << (8 * r) for r, t in enumerate(tab))
        a(f's_mov_b32 s90, {tv & 0xffffffff}\ns_mov_b32 s91, {tv >> 32}')
        for n, (c, kg) in enumerate(zip(CK, KG)):
            a(f'''s_and_b32 s26, s2, 7
                  s_mul_i32 s26, s26, {(5, 9, 3, 13, 7, 11, 15, 1)[n]}
                  s_lshr_b32 s29, s2, 3
                  s_add_u32 s29, s29, s26
                  s_and_b32 s29, s29, 31
                  s_lshl_b32 s29, s29, 10
                  s_add_u32 s29, s29, {W_CNT + (n&3)*256*CROT + 4*n}
                  s_mov_b32 s94, 1''')
            ldswait(F_CK + 4 * n, CNTRIG, 5, sleep=CSL)
            a(f'''{'s_mov_b32 s94, 3' if 'a' in X else 's_atomic_add s94, s[58:59], s29 glc'}
                  s_waitcnt lgkmcnt(0)
                  s_min_u32 s7, s94, 7
                  s_lshl_b32 s7, s7, 3
                  s_lshr_b64 s[92:93], s[90:91], s7
                  s_sext_i32_i8 s7, s92
                  s_mul_i32 s7, s7, {kg}
                  s_ashr_i32 s7, s7, 4
                  s_min_i32 s7, s7, {CLEN}
                  s_max_i32 s7, s7, {-CLEN}''')
            ldsflag(F_CTL + 4 * n, val='s7')
        a('L_noctl:')
    a('s_cmp_lg_u32 s60, 0\ns_cbranch_scc1 L_tail')
    if 'M' in X: a('s_branch L_tail')
    a(f'''v_lshrrev_b32 v5, 5, v0
          v_mul_u32_u24 v5, {HS}, v5
          v_and_b32 v6, 31, v0
          v_lshl_add_u32 v60, v6, 4, v5
          v_mov_b32 v62, {CEXP}
          v_lshlrev_b32 v61, 7, v6
          v_lshlrev_b32 v247, 4, v0
          s_lshl_b32 s28, s6, 7
          s_add_u32 s28, s28, {W_STATS}
          s_lshl_b32 s29, s4, 12
          s_add_u32 s29, s29, {W_STATS}''')
    ldswait(F_SCNT, 4, 5, sleep=4)
    stamp(5)
    for n in range(8): a(f'ds_read_b128 v[{20+4*n}:{23+4*n}], v60 offset:{L_SC + 512*n}')
    for n in range(8):
        a(f's_waitcnt lgkmcnt({7-n})')
        rnd2(20 + 4 * n, 21 + 4 * n, 5)
        rnd2(22 + 4 * n, 23 + 4 * n, 6)
    a('v_max_f32 v52, v20, v21')
    for k in range(22, 52, 2): a(f'v_max3_f32 v52, v52, v{k}, v{k+1}')
    allred('v_max_f32', [52], [53], 32)
    for k in range(20, 52): a(f'v_sub_f32 v{k}, v{k}, v52')
    for k in range(20, 52): a(f'v_mul_f32 v{k}, v62, v{k}')
    for k in range(20, 52): a(f'v_exp_f32 v{k}, v{k}')
    a('v_add_f32 v54, v20, v21\nv_add_f32 v55, v22, v23')
    for k in range(24, 52, 2): a(f'v_add_f32 v54, v54, v{k}\nv_add_f32 v55, v55, v{k+1}')
    a('v_add_f32 v54, v54, v55')
    allred('v_add_f32', [54], [53], 32)
    a('''v_readlane_b32 s90, v52, 0
         v_readlane_b32 s91, v52, 32
         v_readlane_b32 s92, v54, 32
         s_pack_hh_b32_b16 s90, s90, s91
         v_mov_b32 v56, s90
         v_mov_b32 v57, v54
         v_mov_b32 v58, s92
         v_mov_b32 v59, s31
         s_waitcnt vmcnt(0)
         s_mov_b64 exec, 0xff''')
    store2(25, ['buffer_store_dwordx4 v[56:59], v247, s[16:19], s28 offen'])
    a('s_mov_b64 exec, -1')
    stamp(6)
    L = poll_begin()
    a(f'''buffer_load_dwordx4 v[240:243], v61, s[16:19], s29 offen {PP}
         s_waitcnt vmcnt(0)
         s_mov_b64 exec, -1''')
    tagchk([243])
    poll_end(L, sleep=SSL)
    stamp(7)
    unpack(244, 245, 240)
    a('''v_cmp_lt_u32 vcc, 31, v0
         v_cndmask_b32 v244, v244, v245, vcc
         v_cndmask_b32 v241, v241, v242, vcc
         v_mov_b32 v246, v244''')
    allred('v_max_f32', [246], [53], 32)
    a('''v_sub_f32 v244, v244, v246
         v_sub_f32 v52, v52, v246
         v_mul_f32 v244, v62, v244
         v_mul_f32 v52, v62, v52
         v_exp_f32 v244, v244
         v_exp_f32 v52, v52
         v_mul_f32 v241, v241, v244''')
    allred('v_add_f32', [241], [53], 32)
    a('v_rcp_f32 v241, v241\nv_mul_f32 v52, v52, v241')
    for n in range(8):
        for k in range(20 + 4 * n, 24 + 4 * n): a(f'v_mul_f32 v{k}, v52, v{k}')
        for k in range(20 + 4 * n, 24 + 4 * n): a(f'v_cvt_pk_bf16_f32 v{k}, v{k}, v{k}')
        a(f'ds_write_b128 v60, v[{20+4*n}:{23+4*n}] offset:{L_SC + 512*n}')
    ldsflag(F_P, val='s25')
    stamp(8)

    def smf(acc, A, B): a(f'v_smfmac_f32_16x16x64_bf16 v[{acc}:{acc+3}], v[{A}:{A+3}], v[{B}:{B+7}], v19')
    def sbuild(dst, p0, p1):
        a(f'v_and_b32 v{dst}, v{p0}, v8\nv_and_b32 v{dst+1}, v{p1}, v9\nv_and_b32 v{dst+2}, v{p0}, v10\nv_and_b32 v{dst+3}, v{p1}, v11')
    def pkop(op, d, x, y, mod=''): a(f'v_pk_{op}_f32 v[{d}:{d+1}], v[{x}:{x+1}], v[{y}:{y+1}] {mod}')
    def spin_back(L, sleep=0):
        if sleep: a(f's_sleep {sleep}')
        a(f's_sub_u32 s30, s30, 1\ns_cmp_lg_u32 s30, 0\ns_cbranch_scc1 {L}')
    a('L_tail:')
    if 'T' in X: finish()
    a(f'''s_cmp_lg_u32 s61, 3
          s_cbranch_scc1 L_noRclr
          s_cmp_lg_u32 s60, 2
          s_cbranch_scc1 L_noRclr
          s_sub_u32 s7, s5, 24
          s_lshl_b32 s7, s7, 2
          s_lshl_b32 s72, s4, 5
          s_add_u32 s7, s7, s72
          s_mul_i32 s72, s7, {PS}
          s_add_u32 s72, s72, {W_PART}
          s_add_u32 s73, s72, {2*PS}
          s_lshl_b32 s63, s7, 5
          s_add_u32 s63, s63, {W_O}
          s_lshl_b32 s26, s7, 2
          s_add_u32 s26, s26, {W_RS}
          v_lshlrev_b32 v13, 4, v0
          v_cmp_gt_u32 vcc, 8, v0
          v_cndmask_b32 v14, v3, v13, vcc''')
    for k in range(4): a(f'v_mov_b32 v{20+k}, -1\nv_mov_b32 v{24+k}, s31')
    ldswait(F_PROG, TRIGR, 5, sleep=4)
    ldswait(F_P, 1, 5, sleep=1)
    a('s_mov_b32 s25, s7')
    if PREB:
        for k in range(8): a(f'buffer_load_dwordx4 v[28:31], v13, s[16:19], s{72+(k>>2)} offen offset:{((k>>1)&1)*PS + (k&1)*1024} {PREB}')
        a(f'buffer_load_dwordx4 v[28:31], v14, s[16:19], s63 offen {PREB}\ns_waitcnt vmcnt(0)')
    store2(25, [f'buffer_store_dwordx4 v[20:23], v13, s[16:19], s{72+(k>>2)} offen offset:{((k>>1)&1)*PS + (k&1)*1024}' for k in range(8)]
               + ['buffer_store_dwordx4 v[20:23], v14, s[16:19], s63 offen'])
    a('s_waitcnt vmcnt(0)\ns_mov_b64 exec, 1')
    store2(25, ['buffer_store_dwordx4 v[24:27], v7, s[16:19], s26 offen'])
    a('s_mov_b64 exec, -1\nL_noRclr:')
    def rswatch():
        L0 = a.uniq('L_rw')
        a(f's_cmp_lg_u32 s60, 3\ns_cbranch_scc1 {L0}\ns_add_u32 s27, s27, {W_RS - W_ID}')
        ldswait(F_PROG, TRIGS, 5, sleep=4)
        L = poll_begin()
        a('buffer_load_dword v6, v63, s[16:19], s27 offen sc1\ns_waitcnt vmcnt(0)')
        tagchk([6])
        poll_end(L, sleep=2, mask=False)
        ldsflag(F_RS)
        a(f'{L0}:')
    a('s_cmp_eq_u32 s61, 2\ns_cbranch_scc1 L_norw')
    rswatch()
    a('L_norw:')
    a(f'''s_cmp_eq_u32 s61, 0
          s_cbranch_scc1 L_helper_end
          v_cmp_gt_u32 vcc, 4, v2
          v_mov_b32 v5, 0xffff
          v_cndmask_b32 v8, 0, v5, vcc
          v_xor_b32 v9, v5, v8
          v_lshlrev_b32 v10, 16, v8
          v_lshlrev_b32 v11, 16, v9
          v_and_b32 v6, 3, v0
          v_mul_u32_u24 v19, 0x5555, v6
          v_lshlrev_b32 v245, 2, v0
          v_lshrrev_b32 v5, 5, v0
          v_lshlrev_b32 v244, 9, v5
          v_lshl_add_u32 v244, v2, 5, v244
          v_bfe_u32 v6, v0, 4, 1
          v_lshl_add_u32 v244, v6, 4, v244
          s_lshl_b32 s7, s60, 10
          s_add_u32 s7, s7, {L_RED}
          v_add_u32 v244, s7, v244
          s_mov_b32 s50, 0x00ff00ff
          s_mov_b32 s51, 0xff00ff00
          s_cmp_eq_u32 s61, 2
          s_cbranch_scc1 L_T2''')
    a('s_cmp_eq_u32 s61, 3\ns_cbranch_scc1 L_R\ns_cmp_eq_u32 s61, 4\ns_cbranch_scc1 L_H')
    srd(8, 40, 0 if 'o' in X else 4096 * 896)
    a(f'''s_lshl_b32 s63, s4, 1
          s_add_u32 s63, s63, s64
          s_lshl_b32 s72, s63, 9
          s_mul_i32 s63, s63, 1792
          s_lshr_b32 s7, s5, 1
          s_lshl_b32 s7, s7, 8
          s_add_u32 s63, s63, s7
          s_add_u32 s63, s63, {W_Y}
          s_lshl_b32 s7, s60, 7
          s_add_u32 s72, s72, s7
          s_add_u32 s72, s72, {W_O}
          v_lshlrev_b32 v13, 4, v1
          v_lshlrev_b32 v4, 2, v0
          v_mov_b32 v16, 1''')
    for k in range(44, 48): a(f'v_mov_b32 v{k}, 0')
    ldswait(F_LAST, 4, 5, sleep=2)
    stamp(9)
    if T1LATE: t1loads(8, T1EARLY, T1SPLIT)
    ldswait(F_RS, 1, 5, sleep=1)
    if T1W: ldswait(F_OCNT, T1W, 5, sleep=1)
    if T1LATE: t1loads(8, T1SPLIT, 8)
    stamp(13)
    ldo = f'buffer_load_dwordx4 v[20:23], v13, s[16:19], s72 offen {PP}'
    a(ldo + '\ns_nop 15\n' + ldo + '\ns_nop 15')
    L = poll_begin()
    a(f'''{ldo}
          s_waitcnt vmcnt(2)
          v_max3_u32 v24, v20, v21, v22
          v_max_u32 v24, v24, v23
          v_cmp_eq_u32 vcc, -1, v24''')
    poll_end(L, mask=False)
    stamp(10)
    if prof: a(f's_sub_u32 s7, {SPIN+1}, s30\nv_writelane_b32 v255, s7, 14')
    sbuild(36, 20, 20)
    sbuild(40, 21, 21); smf(44, 36, 64)
    sbuild(32, 22, 22); smf(44, 40, 72)
    sbuild(36, 23, 23); smf(44, 32, 80)
    smf(44, 36, 88)
    a(f'''s_mov_b64 exec, s[50:51]
          ds_write_b128 v244, v[44:47]
          s_mov_b64 exec, 1
          ds_add_rtn_u32 v5, v7, v16 offset:{F_TCNT}
          s_mov_b64 exec, -1''')
    for w in range(4): a(f'ds_read2st64_b32 v[{24+2*w}:{25+2*w}], v245 offset0:{L_RED//256+4*w} offset1:{L_RED//256+4*w+2}')
    a('s_waitcnt lgkmcnt(0)\nv_readfirstlane_b32 s7, v5')
    pkadd(24, 24, 26); pkadd(28, 28, 30); pkadd(24, 24, 28)
    a('''s_cmp_lg_u32 s7, 3
         v_add_f32 v24, v24, v25
         s_cbranch_scc1 L_helper_end
         buffer_store_dword v24, v4, s[16:19], s63 offen sc1''')
    stamp(11)
    a('L_helper_end:')
    finish()

    a(f'''.p2align 6
          L_R:
          s_sub_u32 s7, s5, 24
          s_lshl_b32 s7, s7, 2
          s_add_u32 s7, s7, s60
          s_lshl_b32 s72, s4, 5
          s_add_u32 s7, s7, s72
          s_mul_i32 s72, s7, {PS}
          s_add_u32 s72, s72, {W_PART}
          s_lshl_b32 s63, s7, 5
          s_add_u32 s63, s63, {W_O}
          v_lshlrev_b32 v13, 4, v0
          v_and_b32 v4, 3, v0
          v_lshlrev_b32 v4, 3, v4
          v_lshrrev_b32 v5, 5, v0
          v_lshl_add_u32 v4, v5, 2, v4
          v_bfe_u32 v5, v0, 2, 3
          v_cmp_ne_u32 vcc, 0, v5
          v_cndmask_b32 v4, v4, v3, vcc''')
    ldr = f'buffer_load_dwordx4 v[20:23], v13, s[16:19], s72 offen {PP}\nbuffer_load_dwordx4 v[24:27], v13, s[16:19], s72 offen offset:1024 {PP}'
    ldswait(F_RS, 1, 5, sleep=4)
    if PRET: a(ldr.replace(PP, PRET))
    ldswait(F_P, 1, 5, sleep=1)
    a('s_mov_b32 s25, s7')
    ldswait(F_LAST, 4, 5, sleep=2)
    stamp(9)
    if PRE0: a(ldr.replace(PP, PRE0))
    if RW: ldswait(F_OCNT, RW, 5, sleep=1)
    stamp(13)
    a(ldr + '\ns_nop 15\ns_nop 15')
    L = poll_begin()
    a(ldr + '\ns_waitcnt vmcnt(2)')
    pkadd(28, 20, 24); pkadd(30, 22, 26)
    a('v_permlane32_swap_b32 v28, v30\nv_permlane32_swap_b32 v29, v31')
    pkadd(28, 28, 30)
    a('v_cmp_u_f32 vcc, v28, v29')
    poll_end(L, mask=False)
    stamp(10)
    if prof: a(f's_sub_u32 s7, {SPIN+1}, s30\nv_writelane_b32 v255, s7, 14')
    a(f'''v_add_f32_dpp v28, v28, v28 row_ror:4 {DPPF}
          v_add_f32_dpp v29, v29, v29 row_ror:4 {DPPF}
          v_add_f32_dpp v30, v28, v28 row_ror:8 {DPPF}
          v_add_f32_dpp v31, v29, v29 row_ror:8 {DPPF}
          v_add_f32_dpp v28, v28, v28 row_ror:8 {DPPF}
          v_add_f32_dpp v29, v29, v29 row_ror:8 {DPPF}
          v_permlane16_swap_b32 v28, v30
          v_permlane16_swap_b32 v29, v31''')
    pkadd(28, 28, 30)
    a('v_cvt_pk_bf16_f32 v28, v28, v29')
    store2(25, ['buffer_store_dword v28, v4, s[16:19], s63 offen'])
    stamp(11)
    finish()

    a(f'''.p2align 6
          L_H:
          s_cmp_lg_u32 s60, 2
          s_cbranch_scc1 L_helper_end
          s_lshl_b32 s72, s4, 10
          s_add_u32 s72, s72, {W_O}
          s_lshl_b32 s63, s4, 2
          s_add_u32 s63, s63, {W_H}
          s_add_u32 s65, s63, 4096
          v_lshlrev_b32 v13, 4, v0
          v_lshlrev_b32 v4, 6, v0
          v_mov_b32 v16, s31
          s_mul_i32 s73, s4, {32*PS}
          s_add_u32 s73, s73, {W_PART}
          v_lshrrev_b32 v5, 5, v0
          v_mul_u32_u24 v5, {8*PS}, v5
          v_lshl_add_u32 v14, v63, 4, v5''')
    ldp = 'buffer_load_dword v24, v14, s[16:19], s73 offen sc1'
    ldswait(F_RS, 1, 5, sleep=4)
    a(ldo)
    if HSRC == 'part':
        ldswait(F_LAST, 4, 5, sleep=2)
        a(ldp)
        ldswait(F_OCNT, 4, 5, sleep=1)
        a(ldp + '\ns_nop 15')
        L = poll_begin()
        a(f'{ldp}\ns_waitcnt vmcnt(1)\nv_cmp_eq_u32 vcc, -1, v24')
    else:
        ldswait(F_OCNT, 4, 5, sleep=1)
        a(ldo + '\ns_nop 15\n' + ldo + '\ns_nop 15')
        L = poll_begin()
        a(f'''{ldo}
              s_waitcnt vmcnt(2)
              v_max3_u32 v24, v20, v21, v22
              v_max_u32 v24, v24, v23
              v_cmp_eq_u32 vcc, -1, v24''')
    poll_end(L, mask=False)
    a('''buffer_store_dword v16, v4, s[16:19], s63 offen sc1
         buffer_store_dword v16, v4, s[16:19], s65 offen sc1''')
    stamp(11)
    finish()

    a('.p2align 6\nL_T2:')
    srd(8, 44, 0 if 't' in X else 448 * 3584)
    srd(12, 46, 0 if 't' in X else 448 * 3584)
    srd(20, 48, 0 if 't' in X else 1792 * 896)
    srd(24, 32, 896)
    a(f'''v_lshrrev_b32 v5, 5, v0
          v_and_b32 v6, 31, v0
          v_cmp_gt_u32 s[98:99], 28, v6
          s_mul_i32 s7, s60, 112
          v_lshl_add_u32 v12, v6, 2, s7
          v_mul_u32_u24 v13, 1792, v5
          v_lshl_add_u32 v13, v12, 2, v13
          v_cndmask_b32 v13, v3, v13, s[98:99]
          v_lshl_add_u32 v12, v5, 1, v12
          v_lshlrev_b32 v14, 1, v12
          v_lshlrev_b32 v15, 2, v12
          v_add_u32 v240, {L_X1}, v15
          v_cndmask_b32 v14, v3, v14, s[98:99]
          v_cndmask_b32 v15, v3, v15, s[98:99]
          v_mov_b32 v16, {L_X1 + 1792}
          v_cndmask_b32 v240, v16, v240, s[98:99]
          v_lshl_add_u32 v16, v6, 1, v5
          v_mul_u32_u24 v17, 37, v16
          v_lshrrev_b32 v17, 8, v17
          v_add_u32 v16, v16, v17
          s_lshl_b32 s7, s60, 9
          s_add_u32 s7, s7, {L_BC}
          v_lshl_add_u32 v16, v16, 2, s7
          v_lshl_add_u32 v17, v1, 5, s7
          s_mov_b32 s28, {W_MOD + 4*896}
          s_lshl_b32 s7, s62, 4
          v_and_b32 v61, 3, v0
          v_lshlrev_b32 v61, 2, v61
          v_lshrrev_b32 v5, 4, v0
          v_add3_u32 v61, v61, v5, s7
          v_lshrrev_b32 v62, 1, v61
          v_lshlrev_b32 v62, 3, v62
          s_mov_b32 s29, {W_MOD + 4*2240}''')
    ldswait(F_PROG, TRIGC, 5, sleep=8)
    a('buffer_load_dword v52, v14, s[24:27], 0 offen nt')
    L = poll_begin()
    a('''buffer_load_dwordx2 v[20:21], v15, s[16:19], s28 offen sc1
         buffer_load_dwordx2 v[22:23], v15, s[16:19], s28 offen offset:1792 sc1
         buffer_load_dwordx2 v[24:25], v15, s[16:19], s28 offen offset:3584 sc1
         buffer_load_dwordx2 v[26:27], v62, s[16:19], s29 offen sc1
         s_waitcnt vmcnt(0)''')
    tagchk([21, 23, 25]); a('s_and_b64 vcc, vcc, s[98:99]'); tagchk([27], first=False)
    poll_end(L, sleep=8, mask=False)
    a('v_mov_b32 v28, v52')
    unpack(52, 53, 28)
    unpack(54, 55, 20)
    unpack(58, 59, 22)
    unpack(56, 57, 24)
    a('v_add_f32 v56, 1.0, v56\nv_add_f32 v57, 1.0, v57')
    rnd2(56, 57, 28)
    a('v_and_b32 v28, 0xffff0000, v26\nv_lshlrev_b32 v26, 16, v26')
    a(f'''v_and_b32 v5, 1, v61
          v_cmp_eq_u32 vcc, 1, v5
          v_cndmask_b32 v26, v26, v28, vcc
          v_lshlrev_b32 v5, 3, v0
          ds_write_b64 v5, v[26:27] offset:{L_GB}
          s_lshl_b32 s7, s60, 3
          s_add_u32 s7, s7, {L_ST2}
          v_bfe_u32 v6, v0, 4, 1
          v_lshl_add_u32 v243, v6, 2, s7
          v_lshrrev_b32 v5, 5, v0
          v_bfe_u32 v6, v0, 3, 1
          v_cmp_ne_u32 vcc, v5, v6
          v_lshrrev_b32 v247, 1, v2
          v_mul_u32_u24 v247, {ZS}, v247
          v_lshl_add_u32 v247, v5, 6, v247
          v_and_b32 v6, 1, v0
          v_lshl_add_u32 v247, v6, 5, v247
          v_bfe_u32 v6, v0, 4, 1
          v_lshl_add_u32 v247, v6, 4, v247
          v_cndmask_b32 v247, v247, v3, vcc
          s_mul_i32 s63, s60, {8*ZS}
          s_lshl_b32 s7, s62, 7
          s_add_u32 s63, s63, s7
          s_add_u32 s63, s63, {W_Z}
          s_add_u32 s65, s63, {4*ZS}
          s_mov_b32 s18, {W_ZEND}
          s_lshl_b32 s7, s62, 2
          s_add_u32 s7, s7, s60
          s_lshl_b32 s7, s7, 6
          s_add_u32 s7, s7, {W_H}
          s_add_u32 s56, s58, s7
          s_addc_u32 s57, s59, 0
          v_mov_b32 v248, {INV448}
          v_mov_b32 v249, {INV448}''')
    for n in range(8): a(f's_mov_b32 s{72+n}, {W_Y + 3584*n}\ns_mov_b64 s[{80+2*n}:{81+2*n}], -1')
    a('s_waitcnt lgkmcnt(0)')
    for k in range(20, 52): a(f'v_mov_b32 v{k}, -1')
    a(f's_lshl_b32 s27, s4, 7\ns_add_u32 s27, s27, {W_ID}')
    rswatch()
    ldswait(F_LAST, 4, 5, sleep=1)
    stamp(9)
    cstamp(6)
    for ld, nx in tl2[44 - NLATE:]:
        a(ld); a(nx)
    if prof: a('s_waitcnt vmcnt(0)')
    stamp(10)
    ldswait(F_OCNT, 4, 5, sleep=1)
    stamp(2)
    for n in range(8): a(f's_mov_b32 s{32+n}, s31\ns_not_b32 s{40+n}, s31')
    Lh = a.uniq('L_h')
    a(f's_mov_b32 s30, {SPIN}\ns_mov_b32 s29, 8\n{Lh}:\ns_load_dwordx8 s[40:47], s[56:57], 0 glc\ns_waitcnt lgkmcnt({HLIM})')
    for n in range(8): a(f's_cmp_eq_u32 s{40+n}, s{32+n}\ns_cbranch_scc1 {Lh}_f{n}\n{Lh}_r{n}:')
    a(f's_sub_u32 s30, s30, 1\ns_cmp_lg_u32 s30, 0\ns_cbranch_scc1 {Lh}\ns_branch {Lh}_all')
    for n in range(8):
        a(f'''{Lh}_f{n}:
              buffer_load_dwordx4 v[{20+4*n}:{23+4*n}], v13, s[16:19], s{72+n} offen sc1
              s_xor_b32 s{32+n}, s{32+n}, 0x55555555
              s_sub_u32 s29, s29, 1
              s_cmp_lg_u32 s29, 0
              s_cbranch_scc1 {Lh}_r{n}
              s_mov_b32 s30, {SPIN - 1}
              s_branch {Lh}_chk''')
    a(f'{Lh}_all:')
    L = poll_begin()
    for n in range(8):
        a(f's_cmp_eq_u64 s[{80+2*n}:{81+2*n}], 0\ns_cbranch_scc1 {L}_s{n}')
        a(f'buffer_load_dwordx4 v[{20+4*n}:{23+4*n}], v13, s[16:19], s{72+n} offen sc1\n{L}_s{n}:')
    a(f'{Lh}_chk:\ns_waitcnt vmcnt(0)')
    for n in range(1, 8):
        for k in (0, 2): pkadd(60 + k, 20 + k if n == 1 else 60 + k, 20 + 4 * n + k)
    a('v_permlane32_swap_b32 v60, v62\nv_permlane32_swap_b32 v61, v63')
    pkadd(60, 60, 62)
    a(f'v_cmp_u_f32 vcc, v60, v61\ns_cbranch_vccz {L}_d')
    for n in range(8): a(f'v_cmp_eq_u32 s[{80+2*n}:{81+2*n}], -1, v{20+4*n}')
    a(f's_and_b32 s7, s30, 15\ns_cbranch_scc1 {L}_k')
    for n in range(8): a(f's_mov_b32 s{80+2*n}, 1')
    a(f'{L}_k:')
    spin_back(L, T2SL)
    a(f'{L}_d:')
    stamp(11)
    cstamp(4)
    if prof: a(f's_sub_u32 s7, {SPIN+1}, s30\nv_writelane_b32 v255, s7, 3')
    rnd2(60, 61, 22)
    pkop('mul', 60, 54, 60)
    rnd2(60, 61, 22)
    pkadd(52, 52, 60)
    rnd2(52, 53, 22)
    a(f'''v_mul_f32 v25, v52, v52
          v_add_f32 v24, v52, v53
          v_fmac_f32 v25, v53, v53
          ds_write_b64 v240, v[52:53]
          v_mov_b32 v44, 0
          v_permlane16_swap_b32 v24, v25
          v_add_f32 v24, v24, v25
          v_mov_b32 v45, 0
          v_mov_b32 v46, 0
          v_add_f32_dpp v24, v24, v24 quad_perm:[1,0,3,2] {DPPF}
          v_mov_b32 v47, 0
          v_mov_b32 v48, 0
          v_add_f32_dpp v24, v24, v24 quad_perm:[2,3,0,1] {DPPF}
          v_mov_b32 v49, 0
          v_mov_b32 v50, 0
          v_add_f32_dpp v24, v24, v24 row_half_mirror {DPPF}
          v_mov_b32 v51, 0
          s_nop 0
          v_add_f32_dpp v25, v24, v24 row_mirror {DPPF}
          v_add_f32_dpp v24, v24, v24 row_mirror {DPPF}
          v_permlane32_swap_b32 v24, v25
          v_add_f32 v24, v24, v25
          s_mov_b64 exec, 0x10001
          ds_write_b32 v243, v24
          s_mov_b64 exec, -1
          s_waitcnt lgkmcnt(0)
          s_barrier''')
    cstamp(7)
    a(f'''ds_read_b128 v[24:27], v7 offset:{L_ST2}
          ds_read_b128 v[28:31], v7 offset:{L_ST2+16}
          s_waitcnt lgkmcnt(1)''')
    pkadd(24, 24, 26); a('s_waitcnt lgkmcnt(0)'); pkadd(28, 28, 30); pkadd(24, 24, 28)
    pkop('mul', 24, 24, 248)
    a(f'''v_fma_f32 v25, -v24, v24, v25
          v_max_f32 v25, 0, v25
          v_cvt_pk_bf16_f32 v22, v24, v25
          v_and_b32 v26, 0xffff0000, v22
          v_add_f32 v26, {EPS}, v26
          v_cvt_pk_bf16_f32 v26, v26, v26
          v_lshlrev_b32 v26, 16, v26
          v_sqrt_f32 v26, v26
          v_lshlrev_b32 v24, 16, v22
          v_cvt_pk_bf16_f32 v26, v26, v26
          v_lshlrev_b32 v26, 16, v26
          v_rcp_f32 v26, v26''')
    pkop('add', 52, 52, 24, 'op_sel_hi:[1,0] neg_lo:[0,1] neg_hi:[0,1]')
    rnd2(52, 53, 22)
    pkop('mul', 52, 52, 26, 'op_sel_hi:[1,0]')
    rnd2(52, 53, 22)
    pkop('mul', 52, 52, 56)
    rnd2(52, 53, 22)
    pkadd(52, 52, 58)
    a('''v_cvt_pk_bf16_f32 v52, v52, v53
         ds_write_b32 v16, v52
         ds_read_b128 v[20:23], v17
         ds_read_b128 v[24:27], v17 offset:16''')
    for k in range(56, 64): a(f'v_mov_b32 v{k}, ' + ('s31' if ZTAG and k in (60, 61) else '0'))
    if ZTAG: a('v_mov_b32 v54, s31\nv_mov_b32 v55, s31')
    def smf_pairs(n, P, acc0, acc1, B0_, B1_, bstep, waits):
        def half(t, h):
            if t >= n: return
            if h == 0 and t in waits: a(f's_waitcnt lgkmcnt({waits[t]})')
            ab = 36 + 4 * (t & 1) + 2 * h
            a(f'v_and_b32 v{ab}, v{P+t}, v{8+2*h}\nv_and_b32 v{ab+1}, v{P+t}, v{9+2*h}')
        half(0, 0); half(0, 1); half(1, 0)
        for t in range(n):
            ab = 36 + 4 * (t & 1)
            smf(acc0, ab, B0_ + bstep * t)
            half(t + 1, 1)
            smf(acc1, ab, B1_ + bstep * t)
            half(t + 2, 0)
    smf_pairs(7, 20, 44, 48, 64, 120, 8, {0: 1, 4: 0})
    a('''s_mov_b64 exec, s[50:51]
         ds_write_b128 v244, v[44:47]
         ds_write_b128 v244, v[48:51] offset:256
         s_mov_b64 exec, -1
         s_waitcnt lgkmcnt(0)
         s_barrier''')
    cstamp(8)
    for w in range(4):
        for x in range(2):
            r = 20 + 4 * w + 2 * x
            a(f'ds_read2st64_b32 v[{r}:{r+1}], v245 offset0:{L_RED//256+4*w+2*x} offset1:{L_RED//256+4*w+2*x+1}')
    if ZTAG: a('v_mov_b32 v64, 0\nv_mov_b32 v65, 0\nv_mov_b32 v66, s31\nv_mov_b32 v67, s31')
    for n in range(1, 8):
        a(f's_waitcnt lgkmcnt({7-n})'); pkadd(20, 20, 20 + 2 * n)
    a(f'''v_cvt_pk_bf16_f32 v21, v20, v21
          v_lshlrev_b32 v20, 16, v21
          v_mul_f32 v22, {NLOG2E}, v20
          v_exp_f32 v22, v22
          v_and_b32 v21, 0xffff0000, v21
          v_add_f32 v22, 1.0, v22
          v_rcp_f32 v22, v22
          v_mul_f32 v20, v20, v22''')
    rnd1(20)
    a(f'''v_mul_f32 v20, v20, v21
          v_mov_b32_dpp v21, v20 quad_perm:[1,1,3,3] {DPPF}
          v_cvt_pk_bf16_f32 v20, v20, v21''')
    for t in range(4): a(f'ds_swizzle_b32 v{24+t}, v20 offset:swizzle(BROADCAST,8,{2*t})')
    smf_pairs(4, 24, 56, 62 if ZTAG else 60, 176, 184, 16, {0: 3, 1: 2, 2: 1, 3: 0})
    if ZTAG:
        a('''buffer_store_dwordx4 v[54:57], v247, s[16:19], s63 offen sc1
             buffer_store_dwordx4 v[58:61], v247, s[16:19], s63 offen offset:3584 sc1
             buffer_store_dwordx4 v[60:63], v247, s[16:19], s65 offen sc1
             buffer_store_dwordx4 v[64:67], v247, s[16:19], s65 offen offset:3584 sc1''')
    else:
        a('''buffer_store_dwordx4 v[56:59], v247, s[16:19], s63 offen sc1
             buffer_store_dwordx4 v[60:63], v247, s[16:19], s65 offen sc1''')
    stamp(12)
    cstamp(5)
    if ZMODE == 'ack': a('s_waitcnt vmcnt(0)\ns_barrier')
    if ZMODE == 'ack3': a('s_cmp_lg_u32 s60, 3\ns_cbranch_scc1 L_zb\ns_waitcnt vmcnt(0)\nL_zb:\ns_barrier')
    if ZMODE == 'now': a('s_barrier')
    finish()

    a('.p2align 6\nL_T3:')
    srd(24, 54, 896)
    a(f'''s_mov_b64 exec, -1
          v_mov_b32 v3, {BIG}
          s_lshl_b32 s7, s69, 4
          v_and_b32 v5, 3, v0
          v_lshlrev_b32 v5, 2, v5
          v_lshrrev_b32 v6, 4, v0
          v_add3_u32 v5, v5, v6, s7
          v_lshlrev_b32 v8, 2, v5
          v_lshlrev_b32 v9, 1, v5
          v_bfe_u32 v5, v0, 2, 2
          v_cmp_ne_u32 vcc, 0, v5
          v_cndmask_b32 v9, v9, v3, vcc
          v_lshlrev_b32 v10, 4, v0
          v_cmp_lt_u32 vcc, 31, v0
          v_cndmask_b32 v11, v10, v3, vcc
          v_lshlrev_b32 v5, 3, v0
          s_mul_i32 s28, s69, {ZS}
          s_add_u32 s28, s28, {W_Z}''')
    for k in range(64, 80): a(f'v_mov_b32 v{k}, -1')
    a(f'''s_barrier
          ds_read_b32 v30, v8 offset:{L_X1}
          ds_read_b64 v[28:29], v5 offset:{L_GB}
          s_waitcnt vmcnt(0) lgkmcnt(0)''')
    if ZTAG: a('s_add_u32 s29, s28, 3584\nv_mov_b32 v77, v29\nv_mov_b32 v78, 0\nv_mov_b32 v79, 0\nv_mov_b32 v92, 0\nv_mov_b32 v93, 0\nv_mov_b32 v94, v29')
    a('s_barrier')
    if ZMODE != 'pre': a('s_barrier')
    L = poll_begin()
    if ZTAG:
        for n in (3, 0, 1, 2):
            if n == 3: a('s_mov_b32 exec_hi, 0')
            for h in range(2): a(f'buffer_load_dwordx4 v[{64+16*h+4*n}:{67+16*h+4*n}], v10, s[16:19], s{28+h} offen offset:{1024*n} sc1')
            if n == 3: a('s_mov_b64 exec, -1')
        for k, n in enumerate((3, 0, 1, 2)):
            a(f's_waitcnt vmcnt({6-2*k})')
            a(f'v_sad_u32 v24, v{65+4*n}, v29, ' + ('0' if k == 0 else 'v24') + ' clamp')
            a(f'v_sad_u32 v24, v{82+4*n}, v29, v24 clamp')
            if k >= 1:
                pkadd(20, 78 if k == 1 else 20, 66 + 4 * n); pkadd(22, 92 if k == 1 else 22, 80 + 4 * n)
        a('v_cmp_ne_u32 vcc, 0, v24\nv_permlane32_swap_b32 v20, v22\nv_permlane32_swap_b32 v21, v23')
        pkadd(20, 20, 22)
    else:
        for n in range(4): a(f'buffer_load_dwordx4 v[{64+4*n}:{67+4*n}], v{10 if n < 3 else 11}, s[16:19], s28 offen offset:{1024*n} sc1')
        a(f's_waitcnt vmcnt({4*(K3-1)})')
        for n in range(1, 4):
            for k in (0, 2): pkadd(20 + k, 64 + k if n == 1 else 20 + k, 64 + 4 * n + k)
        a('v_permlane32_swap_b32 v20, v22\nv_permlane32_swap_b32 v21, v23')
        pkadd(20, 20, 22)
        a('v_cmp_u_f32 vcc, v20, v21')
    poll_end(L, mask=False)
    stamp(13)
    a(f'''v_permlane16_swap_b32 v20, v21
          v_add_f32 v20, v20, v21
          v_add_f32_dpp v20, v20, v20 row_ror:4 {DPPF}
          v_add_f32_dpp v20, v20, v20 row_ror:8 {DPPF}''')
    rnd1(20)
    a('v_mul_f32 v20, v28, v20')
    rnd1(20)
    a('''v_add_f32 v20, v30, v20
         v_cvt_pk_bf16_f32 v20, v20, v20
         buffer_store_short v20, v9, s[24:27], 0 offen
         s_cmp_lg_u32 s69, 0
         s_cbranch_scc1 L_T3_end
         s_mov_b64 exec, 1
         buffer_store_dword v29, v7, s[16:19], 0 offen sc1''')
    a('L_T3_end:')
    stamp(14)
    finish()
    if prof:
        a('L_prof_end:\ns_mov_b64 exec, -1\ns_getreg_b32 s95, hwreg(HW_REG_XCC_ID)\nv_writelane_b32 v255, s95, 15')
        if cal:
            X, wg, wv, k = cal
            a(f's_cmp_lg_u32 s2, {wg}\ns_cbranch_scc1 L_exit\ns_cmp_lg_u32 s3, {wv}\ns_cbranch_scc1 L_exit')
            a(f'v_readlane_b32 s7, v255, {k}\ns_add_u32 s7, s7, {X*100}')
            a('L_cal:\ns_memrealtime s[96:97]\ns_waitcnt lgkmcnt(0)\ns_sub_u32 s96, s96, s7\ns_cmp_lt_i32 s96, 0\ns_cbranch_scc1 L_cal\ns_branch L_exit')
        a(f'''s_lshl_b32 s7, s2, 3
              s_add_u32 s7, s7, s3
              s_lshl_b32 s7, s7, 6
              s_add_u32 s7, s7, {W_PROF}
              v_mbcnt_lo_u32_b32 v2, -1, 0
              v_lshlrev_b32 v2, 2, v2
              s_mov_b32 s18, 0x400000
              s_mov_b64 exec, 0xffff
              buffer_store_dword v255, v2, s[16:19], s7 offen''')
    a('L_exit:\ns_endpgm\nL_code_end:')
    body = a.text()
    head = open('cdna_kernels/' + NAME + '.s.ref').read().split('; Override launch')[0]
    head += f'; @launch grid=(256,1,1) block=(512,1,1) lds={LDS_BYTES}\n'
    return head, body

def assemble_text(head, body, code_q):
    return head + f'''.amdgcn_target "amdgcn-amd-amdhsa--gfx950"
.text
.set CODE_Q, {code_q}
.globl {NAME}_kernel
.p2align 8
.type {NAME}_kernel,@function
''' + body + f'''.fill 1024, 4, 0xbf810000
.section .rodata,"a"
.p2align 6
.amdhsa_kernel {NAME}_kernel
  .amdhsa_next_free_vgpr 256
  .amdhsa_next_free_sgpr 102
  .amdhsa_accum_offset 256
  .amdhsa_group_segment_fixed_size 0
  .amdhsa_kernarg_size 112
  .amdhsa_user_sgpr_count 2
  .amdhsa_user_sgpr_kernarg_segment_ptr 1
  .amdhsa_system_sgpr_workgroup_id_x 1
.end_amdhsa_kernel
'''

def code_size(text):
    import subprocess, re, tempfile
    d = tempfile.mkdtemp()
    open(d + '/k.s', 'w').write(text)
    r = subprocess.run(['clang', '-x', 'assembler', '-target', 'amdgcn-amd-amdhsa', '-mcpu=gfx950', '-c', d + '/k.s', '-o', d + '/k.o'], capture_output=True, text=True)
    if r.returncode: print(r.stderr[:3000]); raise SystemExit(1)
    o = subprocess.run(['llvm-objdump', '-t', d + '/k.o'], capture_output=True, text=True).stdout
    return int(re.search(r'([0-9a-f]+) .* L_code_end', o).group(1), 16)

def full(**kw):
    head, body = gen(**kw)
    sz = code_size(assemble_text(head, body, 4096))
    q = -(-(sz + 128) // 4096) * 1024
    return assemble_text(head, body, q)

if __name__ == '__main__':
    kw = eval('dict(' + (sys.argv[2] if len(sys.argv) > 2 else '') + ')')
    t = full(**kw)
    open(sys.argv[1], 'w').write(t)
    print('code bytes', code_size(t), 'lines', t.count('\n'))
```

```python
import sys
from collections import deque
sys.path.insert(0, 'work')
from asmlib import Asm

NAME = 'adaLN_cond__gqa_block_cached__swiglu_ffn__decode'
W_EPOCH = 0
W_MOD = 0x1000
W_Q = 0x4000
W_ID = 0x8000
W_RS = 0x8400
W_HM = 0x8800
W_STATS = 0x10000
W_CNT = 0x18000
W_PART = 0x20000
PS = 2176
W_O = 0xa8000
W_H = 0xe8000
W_Y = 0xaa000
W_Z = 0xb2000
W_END = W_H + 112 * 64
W_PROF = 0x200000
F_Q, F_SCNT, F_P, F_PROG, F_PCNT, F_OCNT, F_TCNT, F_LAST, F_PAIR, F_M, F_RS, F_PUB, F_YL, F_HM, F_CK, F_CTL = 0, 4, 8, 12, 16, 20, 24, 28, 32, 40, 44, 48, 52, 56, 64, 128
L_Q = 0x100
L_BC = 0x800
L_RED = 0x1000
L_SC = 0x3000
HS = 4096 + 64
L_X1 = 0x5100
L_ST2 = 0x5900
L_GB = 0x5a00
L_RED2 = 0x6000
L_EXT = 0x7000
BIG = 0x40000000
NLOG2E = 0xbfb8aa3b
CEXP = 0x3db8aa3b
INV448 = 0x3b124925
EPS = 0x3727c5ac
SPIN = 0x40000
DPPF = 'row_mask:0xf bank_mask:0xf'

def gen(D=5, R=54, E=28, CATCH=4, gmap='xcd', prof=False, cal=None, UNTH=0, wpol='nt', codepf=True,
        QSL=4, SSL=8, MSL=2, QTRIG=40, LASTI=255, TRIGC=200, CK=(), KG=(), CLEN=24, CDLY=8, KW=3, RP='sc1', PP='sc1', GP='sc1', TAB=None, BALL=0, EARLYBAR=True, TRIGR=214, TRIGS=232, HSL=4, HSRC='o', CROT=True, T1SPLIT=8, NE=0, NL1=5, NPU=0, PFP='', PF=True, DPRE=0, RPF=True, FBIAS=True, NB2=0, ROT=3, DHINT=True, DTRIG=2, ZD='ack', HDLY=0, D0=0, WB=False, CD2=0, ROTV=None, TAB2=None, spol='nt', T1EARLY=0, FASTENTRY=True, SETUPAT=24, ZTAG=False, BIGB=0, PRET=None, PRE0=None, PREB=None, ZMODE='ack', HLIM=8, CNTRIG=2, K3=5, T2BIAS=0, R0=28, T1D=1, T2D=2, T2D4=3, NLATE=16, T1LATE=False, T1W=4, RW=4, SH=32, CSL=2, X='', P1D=5, P2D=3, P3D=2,
        B0=48, BP1=0, BP2=0, BP3=0, BT2=0, force_slow=False, T1SL=0, T2SL=0):
    a = Asm()
    if cal: prof = True
    LDS_BYTES = L_EXT + 4 * E * 1024
    ZS = 7168 if ZTAG else 3584
    W_ZEND = W_Z + 28 * ZS
    if ZTAG: K3 = 1
    BMAX = B0 + max(BP1, BP2, BP3, BALL)
    def stamp(k):
        if prof: a(f's_memrealtime s[96:97]\ns_waitcnt lgkmcnt(0)\nv_writelane_b32 v255, s96, {k}')
    def cstamp(k):
        if prof: a(f's_memtime s[96:97]\ns_waitcnt lgkmcnt(0)\nv_writelane_b32 v255, s96, {k}')
    fs = []
    def fstamp():
        if 'f' in X:
            k = len(fs); fs.append(k); a(f's_memtime s[{72+2*k}:{73+2*k}]')
    def fdump(base):
        if 'f' in X:
            a('s_waitcnt lgkmcnt(0)')
            for k in fs: a(f'v_writelane_b32 v255, s{72+2*k}, {base+k}')
            fs.clear()
    def finish(): a('s_branch L_prof_end' if prof else 's_endpgm')
    def srd(d, lo, size):
        a(f's_mov_b32 s{d}, s{lo}\ns_mov_b32 s{d+1}, s{lo+1}\ns_mov_b32 s{d+2}, {size}\ns_mov_b32 s{d+3}, 0x20000')
    def masks():
        a('''v_and_b32 v6, 1, v0
             v_lshlrev_b32 v6, 4, v6
             v_mov_b32 v5, 0xffff
             v_lshlrev_b32 v5, v6, v5
             v_bfe_u32 v6, v0, 1, 2''')
        for j in range(4):
            a(f'v_cmp_eq_u32 vcc, {j}, v6\nv_cndmask_b32 v{8+j}, 0, v5, vcc')
    def abuild(dst, src):
        for j in range(4): a(f'v_and_b32 v{dst+j}, v{src}, v{8+j}')
    def mfma(acc, A, B, first):
        c = '0' if first else f'v[{acc}:{acc+3}]'
        a(f'v_mfma_f32_16x16x32_bf16 v[{acc}:{acc+3}], v[{A}:{A+3}], v[{B}:{B+3}], {c}')
    def pkadd(d, x, y): a(f'v_pk_add_f32 v[{d}:{d+1}], v[{x}:{x+1}], v[{y}:{y+1}]')
    def ldswait(flag, val, tmp, extra='', sleep=1):
        L = a.uniq('L_w'); Ld = L + '_d'
        a(f's_mov_b32 s30, {SPIN}\n{L}:\nds_read_b32 v{tmp}, v7 offset:{flag}')
        a(extra)
        a(f'''s_waitcnt lgkmcnt(0)
              v_readfirstlane_b32 s7, v{tmp}
              s_cmp_ge_u32 s7, {val}
              s_cbranch_scc1 {Ld}
              s_sleep {sleep}
              s_sub_u32 s30, s30, 1
              s_cmp_lg_u32 s30, 0
              s_cbranch_scc1 {L}
              {Ld}:''')
    def ldsflag(flag, op='ds_write_b32', val='1'):
        a(f'v_mov_b32 v6, {val}\ns_mov_b64 exec, 1\n{op} v7, v6 offset:{flag}\ns_mov_b64 exec, -1')
    def allred(op, regs, tmps, width):
        steps = ['quad_perm:[1,0,3,2]', 'quad_perm:[2,3,0,1]', 'row_half_mirror', 'row_mirror']
        n = {8: 3, 16: 4, 32: 4, 64: 4}[width]
        for st_ in steps[:n]:
            for r in regs: a(f'{op}_dpp v{r}, v{r}, v{r} {st_} {DPPF}')
        for wd, ins in ((32, 'v_permlane16_swap_b32'), (64, 'v_permlane32_swap_b32')):
            if width >= wd:
                for r, t in zip(regs, tmps): a(f'v_mov_b32 v{t}, v{r}')
                for r, t in zip(regs, tmps): a(f'{ins} v{r}, v{t}')
                for r, t in zip(regs, tmps): a(f'{op} v{r}, v{r}, v{t}')
    def rnd2(x, y, t):
        a(f'v_cvt_pk_bf16_f32 v{t}, v{x}, v{y}\nv_lshlrev_b32 v{x}, 16, v{t}\nv_and_b32 v{y}, 0xffff0000, v{t}')
    def rnd1(x):
        a(f'v_cvt_pk_bf16_f32 v{x}, v{x}, v{x}\nv_lshlrev_b32 v{x}, 16, v{x}')
    def unpack(x, y, src):
        a(f'v_lshlrev_b32 v{x}, 16, v{src}\nv_and_b32 v{y}, 0xffff0000, v{src}')
    def poll_begin():
        L = a.uniq('L_p')
        a(f's_mov_b32 s30, {SPIN}\n{L}:')
        return L
    def poll_end(L, sleep=0, mask=True):
        Ld = L + '_d'
        a(f's_cbranch_vccz {Ld}')
        if sleep: a(f's_sleep {sleep}')
        if mask: a('s_mov_b64 exec, vcc')
        a(f's_sub_u32 s30, s30, 1\ns_cmp_lg_u32 s30, 0\ns_cbranch_scc1 {L}')
        if mask: a('s_mov_b64 exec, -1')
        a(f'{Ld}:')
    def tagchk(regs, first=True):
        for k, r in enumerate(regs):
            if k == 0 and first: a(f'v_cmp_ne_u32 vcc, s31, v{r}')
            else: a(f'v_cmp_ne_u32 s[100:101], s31, v{r}\ns_or_b64 vcc, vcc, s[100:101]')
    def store2(flagreg, lines):
        L = a.uniq('L_s')
        a(f's_cmp_eq_u32 s{flagreg}, 2\ns_cbranch_scc0 {L}_slow')
        for l in lines: a(l)
        a(f's_branch {L}_done\n{L}_slow:')
        for l in lines: a(l + ' sc1')
        a(f'{L}_done:')
    def trole():
        L = a.uniq('L_r')
        a(f'''s_mov_b32 s61, 1
              s_cmp_lt_u32 s5, 14
              s_cbranch_scc1 {L}
              s_sub_u32 s62, s5, 14
              s_lshl_b32 s62, s62, 3
              s_add_u32 s62, s62, s4
              s_cmp_lt_u32 s62, 28
              s_cselect_b32 s61, 2, 0
              s_cmp_ge_u32 s5, 24
              s_cselect_b32 s61, 3, s61
              s_cmp_eq_u32 s5, 18
              s_cselect_b32 s61, 4, s61
              s_sub_u32 s7, s62, 40
              s_cmp_lt_u32 s7, 28
              s_cselect_b32 s61, 5, s61
              {L}:''')

    a(f'{NAME}_kernel:')
    if FASTENTRY:
        assert gmap == 'xcd' or True
        a('''s_load_dwordx16 s[32:47], s[0:1], 0
             s_load_dwordx8 s[48:55], s[0:1], 64
             s_load_dwordx4 s[56:59], s[0:1], 96
             v_readfirstlane_b32 s3, v0
             v_and_b32 v0, 63, v0
             v_mov_b32 v7, 0
             v_lshlrev_b32 v2, 2, v0
             ds_write_b32 v2, v7''')
        if prof: a('v_mov_b32 v255, 0\ns_memrealtime s[96:97]')
        if gmap == 'xcd': a('s_and_b32 s4, s2, 7\ns_lshr_b32 s5, s2, 3')
        else: a('s_lshr_b32 s4, s2, 5\ns_and_b32 s5, s2, 31')
        a('''v_lshrrev_b32 v5, 4, v0
             v_and_b32 v1, 3, v0
             v_lshlrev_b32 v1, 4, v1
             s_lshl_b32 s6, s4, 5
             s_add_u32 s6, s6, s5
             v_lshl_add_u32 v1, v5, 6, v1
             v_and_b32 v6, 12, v0
             s_lshl_b32 s28, s3, 6
             s_lshr_b32 s3, s3, 6
             v_lshl_add_u32 v1, v6, 7, v1
             s_mov_b32 s11, 0x20000''')
        if ROT is None:
            a('s_lshl_b32 s7, s6, 19\ns_bfm_b32 s10, 1, 19')
        else:
            a(f's_mul_i32 s7, s4, {32*ROT}\ns_add_u32 s7, s7, s5\n' + ('s_and_b32 s7, s7, 1023\n' if ROT > 4 else '') + f's_lshl_b32 s7, s7, 14\ns_add_u32 s28, s28, s7\ns_lshl_b32 s7, s4, 24\ns_bfm_b32 s10, 1, 24')
        a('''s_cmpk_ge_u32 s2, 256
             s_cbranch_scc1 L_exit
             s_cmp_ge_u32 s3, 4
             s_waitcnt lgkmcnt(0)
             s_barrier''')
        if prof: a('v_writelane_b32 v255, s96, 0')
        a('''s_cbranch_scc1 L_helper
             s_add_u32 s8, s34, s7
             s_addc_u32 s9, s35, 0''')
    else:
        a('''s_load_dwordx16 s[32:47], s[0:1], 0
         s_load_dwordx8 s[48:55], s[0:1], 64
         s_load_dwordx4 s[56:59], s[0:1], 96
         s_cmp_ge_u32 s2, 256
         s_cbranch_scc1 L_exit
         v_lshrrev_b32 v1, 6, v0
         v_and_b32 v0, 63, v0
         v_readfirstlane_b32 s3, v1
         v_mov_b32 v7, 0
         v_lshlrev_b32 v2, 2, v0
         ds_write_b32 v2, v7''')
        if gmap == 'xcd': a('s_and_b32 s4, s2, 7\ns_lshr_b32 s5, s2, 3')
        else: a('s_lshr_b32 s4, s2, 5\ns_and_b32 s5, s2, 31')
        a('''s_lshl_b32 s6, s4, 5
         s_add_u32 s6, s6, s5
         s_lshl_b32 s7, s6, 19
         v_lshrrev_b32 v5, 4, v0
         v_bfe_u32 v6, v0, 2, 2
         v_and_b32 v1, 3, v0
         v_lshlrev_b32 v1, 4, v1
         v_lshl_add_u32 v1, v5, 6, v1
         v_lshl_add_u32 v1, v6, 9, v1
         s_lshl_b32 s28, s3, 12
         s_mov_b32 s10, 0x80000
         s_mov_b32 s11, 0x20000''')
        if prof: a('v_mov_b32 v255, 0\ns_memrealtime s[96:97]')
        a('''s_waitcnt lgkmcnt(0)
         s_add_u32 s8, s34, s7
         s_addc_u32 s9, s35, 0''')
        if prof: a('v_writelane_b32 v255, s96, 0')
        if EARLYBAR: a('s_barrier\ns_cmp_ge_u32 s3, 4\ns_cbranch_scc1 L_helper')
        else: a('s_cmp_ge_u32 s3, 4\ns_cbranch_scc1 L_hbar')


    RB = 36
    st = dict(issued=0, done=-1, lds=0)
    free = deque(RB + 4 * k for k in range(R))
    loc = {}; rdseq = {}
    progs = sorted(set([QTRIG, TRIGC, TRIGR, TRIGS]))
    assert min(LASTI, TRIGC, TRIGR, TRIGS) >= 128 + R and QTRIG < R + E and (not CK or CK[0] >= R + E)
    C0 = (CK[0] + CDLY) if CK else 1000
    C2X = (CK[NB2] + CDLY if NB2 < len(CK) else 256) if NB2 else 0
    def depth(i): return (D + 2 if i < C2X else D + 1) if (B0 <= i < BMAX or i >= C0) else D
    def vwait(n):
        a(f's_waitcnt vmcnt({n})'); st['done'] = max(st['done'], st['issued'] - 1 - n)
    def inlds(i): return R <= i < R + E
    def can_issue(): return st['issued'] < 256 and (inlds(st['issued']) or len(free) > 0)
    def issue():
        i = st['issued']; d = depth(i)
        if i >= max(d, D0) and i < 256 - UNTH:
            if inlds(i): a(f's_add_u32 m0, s63, {(i-R)*1024 - (((i>>1)&1)*2048 + (i&1)*256) + 4096}')
            if d > D:
                L = a.uniq('L_b')
                a(f's_cmpk_gt_u32 s61, {i}\ns_cbranch_scc1 {L}')
                if i >= C0: a(f's_cmpk_le_u32 s60, {i}\ns_cbranch_scc1 {L}_n\ns_waitcnt vmcnt({D-2})\n{L}_n:')
                a(f's_waitcnt vmcnt({D-1})\n{L}:')
            if st['done'] < i - d: vwait(d - 1)
        if i == D: stamp(8)
        if i in (208, 232, 244) and 'u' in X: stamp({208: 9, 232: 10, 244: 11}[i])
        if i < 128:
            off = ((i >> 1) & 1) * 2048 + (i & 1) * 256
            if inlds(i):
                a(f'buffer_load_dwordx4 v1, s[8:11], s28 offen offset:{off} {spol} lds')
            else:
                r = loc[i] = free.popleft()
                a(f'buffer_load_dwordx4 v[{r}:{r+3}], v1, s[8:11], s28 offen offset:{off} {spol}')
            if i % 4 == 3 and i < 127: a('s_add_u32 s28, s28, 0x4000' if ROT is None else 's_add_u32 s28, s28, 0x80000\ns_bitset0_b32 s28, 24')
        else:
            r = loc[i] = free.popleft()
            a(f'buffer_load_dwordx4 v[{r}:{r+3}], v2, s[12:15], s29 offen offset:{(i&1)*2048} {spol}')
            if i % 4 == 1: a('s_add_u32 s29, s29, 0x1000')
            if i % 4 == 3 and i < 255: a('s_add_u32 s29, s29, 0x3000' if ROT is None else 's_add_u32 s29, s29, 0x7f000\ns_bitset0_b32 s29, 24')
        st['issued'] += 1
        if i in progs:
            ldsflag(F_PROG, 'ds_max_u32', i); st['lds'] += 1
        if i == LASTI: ldsflag(F_LAST, 'ds_add_u32')
        for n, c in enumerate(CK):
            for role, pos in ((0, c), (1, c + T2BIAS)) if T2BIAS else ((None, c),):
                if i not in (pos, pos + CDLY - 2, pos + CDLY - 1, pos + CDLY + CD2 - 2, pos + CDLY + CD2 - 1): continue
                L = a.uniq('L_c')
                if role is not None: a(f's_cmp_lg_u32 s64, {role}\ns_cbranch_scc1 {L}')
                if i == pos:
                    a(f'v_mov_b32 v6, 1\ns_mov_b64 exec, 1\nds_add_rtn_u32 v253, v7, v6 offset:{F_CK+4*n}\ns_mov_b64 exec, -1')
                elif i in (pos + CDLY - 2, pos + CDLY + CD2 - 2):
                    a(f'ds_read_b32 v254, v7 offset:{F_CTL+4*n}')
                else:
                    a(f'''s_waitcnt lgkmcnt(0)
                          v_readfirstlane_b32 s7, v253
                          v_readfirstlane_b32 s65, v254
                          s_mul_i32 s7, s7, {KW}
                          s_sub_u32 s7, s7, {(3*KW)//2}
                          s_add_u32 s7, s7, s65
                          s_add_u32 s61, s7, {pos+CDLY}
                          s_sub_u32 s60, {pos+CDLY}, s7''')
                a(f'{L}:')
    def ensure(i):
        if st['done'] < i: vwait(st['issued'] - 1 - i)
    for i in range(D): issue()
    if FASTENTRY:
        while st['issued'] < SETUPAT: issue()
        a('v_lshrrev_b32 v6, 2, v6')
    elif not EARLYBAR: a('L_hbar:\ns_barrier\ns_cmp_ge_u32 s3, 4\ns_cbranch_scc1 L_helper')
    a(f'''s_add_u32 s12, s36, s7
          s_addc_u32 s13, s37, 0
          s_mov_b32 s14, s10
          s_mov_b32 s15, 0x20000
          s_and_b32 s24, s3, 1
          s_lshr_b32 s25, s3, 1
          s_lshl_b32 s29, s25, 13
          s_lshl_b32 s7, s24, 8
          s_add_u32 s29, s29, s7
          s_mul_i32 s7, s4, {32*(ROT or 0)}
          s_add_u32 s7, s7, s5
          s_and_b32 s7, s7, 1023
          s_lshl_b32 s7, s7, 14
          s_add_u32 s29, s29, {'0' if ROT is None else 's7'}
          v_and_b32 v2, 15, v0
          v_lshlrev_b32 v2, 4, v2
          v_lshl_add_u32 v2, v5, 9, v2
          s_lshl_b32 s7, s25, 11
          s_add_u32 s7, s7, {L_SC}
          v_bfe_u32 v4, v0, 3, 1
          v_mul_u32_u24 v4, {HS}, v4
          v_lshl_add_u32 v4, v5, 4, v4
          v_add_u32 v4, s7, v4
          s_lshl_b32 s26, s24, 3
          s_add_u32 s7, s7, s26
          v_and_b32 v3, 1, v5
          v_mul_u32_u24 v3, {HS}, v3
          v_lshl_add_u32 v3, v6, 4, v3
          v_lshrrev_b32 v12, 5, v0
          v_lshl_add_u32 v3, v12, 2, v3
          v_add_u32 v3, s7, v3
          v_bfe_u32 v12, v0, 2, 1
          v_lshlrev_b32 v12, 9, v12
          v_lshl_add_u32 v12, v5, 6, v12
          v_and_b32 v13, 3, v0
          v_lshl_add_u32 v12, v13, 4, v12
          s_mul_i32 s63, s3, {E*1024}
          s_add_u32 s63, s63, {L_EXT}
          v_lshl_add_u32 v252, v0, 4, s63
          s_sub_u32 s63, s63, 4096''')
    srd(16, 58, W_END)
    masks()
    trole()
    a(f'''s_cmp_eq_u32 s61, 2
          s_cselect_b32 s64, 1, 0
          s_mov_b32 s68, s64
          s_cmp_eq_u32 s61, {5 if FBIAS else 2}
          s_cselect_b32 s64, 1, s64
          s_mov_b32 s69, s62
          s_mov_b32 s60, 0
          s_cmp_ge_u32 s2, {256-106}
          s_cselect_b32 s7, {BP3}, {BALL}
          s_cmp_ge_u32 s2, {256-78}
          s_cselect_b32 s7, {BP2}, s7
          s_cmp_ge_u32 s2, {256-14}
          s_cselect_b32 s7, {BP1}, s7
          s_add_u32 s61, s7, {B0}''')
    while st['issued'] < R + E: issue()
    stamp(1)
    ldswait(F_Q, 0 if 's' in X else 1, 5, extra=f'ds_read_b128 v[28:31], v12 offset:{L_Q}\nds_read_b128 v[32:35], v12 offset:{L_Q+256}')
    stamp(2)
    a('v_bfe_u32 v5, v0, 3, 1\nv_cmp_eq_u32 vcc, 0, v5')
    for k in range(8): a(f'v_cndmask_b32 v{20+k}, 0, v{28+k}, vcc')
    a('v_cmp_eq_u32 vcc, 1, v5')
    for k in range(8): a(f'v_cndmask_b32 v{28+k}, 0, v{28+k}, vcc')
    def post_group(gm):
        d = 12 + 4 * (gm & 1)
        a(f'''v_mov_b32_dpp v5, v{d} quad_perm:[0,0,0,0] {DPPF}
              v_add_f32_dpp v5, v{d+1}, v5 quad_perm:[1,1,1,1] {DPPF}
              v_add_f32_dpp v5, v{d+2}, v5 quad_perm:[2,2,2,2] {DPPF}
              v_add_f32_dpp v5, v{d+3}, v5 quad_perm:[3,3,3,3] {DPPF}
              ds_write_b32 v3, v5 offset:{gm*64}''')
        st['lds'] += 1
    def consumeK(i):
        k = i + 4
        if inlds(k):
            ensure(k)
            r = loc[k] = free.popleft()
            a(f'ds_read_b128 v[{r}:{r+3}], v252 offset:{(k-R)*1024}')
            rdseq[k] = st['lds']; st['lds'] += 1
        if inlds(i): a(f's_waitcnt lgkmcnt({min(15, st["lds"] - rdseq[i] - 1)})')
        else: ensure(i)
        gm, q = i >> 2, i & 3
        mfma(12 + 4 * (gm & 1), 20 + 4 * q, loc[i], q == 0)
        free.append(loc[i])
        if q == 2 and gm > 0: post_group(gm - 1)
        if i == 127:
            post_group(31)
            ldsflag(F_SCNT, 'ds_add_u32')
    def consumeV(i):
        t = i - 128
        ab = 20 + 4 * (t & 1); pb = 28 + 4 * ((t >> 2) & 1)
        if t & 3 == 0:
            a('s_waitcnt lgkmcnt(0)')
            if t + 4 < 128:
                pn = 28 + 4 * (((t >> 2) + 1) & 1)
                a(f'ds_read_b128 v[{pn}:{pn+3}], v4 offset:{((t>>2)+1)*64}')
        abuild(ab, pb + (t & 3))
        ensure(i)
        mfma(12, ab, loc[i], t == 0)
        free.append(loc[i])
        if i == 200:
            a(f'''s_lshl_b32 s7, s3, 10
                  s_add_u32 s7, s7, {L_RED2}
                  v_lshl_add_u32 v3, v0, 4, s7
                  v_xor_b32 v1, 0x800, v3
                  s_lshl_b32 s7, s24, 2
                  v_mov_b32 v16, s7
                  v_mov_b32 v17, 1
                  v_lshrrev_b32 v5, 5, v0
                  v_bfe_u32 v6, v0, 1, 3
                  v_lshl_add_u32 v5, v5, 4, v6
                  v_mul_u32_u24 v5, {PS}, v5
                  v_and_b32 v6, 1, v0
                  v_lshl_add_u32 v5, v6, 5, v5
                  v_bfe_u32 v6, v0, 4, 1
                  v_lshl_add_u32 v18, v6, 4, v5
                  s_lshl_b32 s28, s4, 2
                  s_add_u32 s28, s28, s24
                  s_mul_i32 s28, s28, {8*PS}
                  s_lshl_b32 s7, s5, 6
                  s_add_u32 s28, s28, s7
                  s_add_u32 s28, s28, {W_PART}''')
    def run(consume, c0, c1):
        c = c0
        while c < c1:
            n_is = st['issued']; lag = n_is - c
            if n_is >= 256 - UNTH and can_issue():
                issue(); continue
            dd = depth(n_is)
            if lag > dd or n_is >= 256:
                n = min(CATCH, c1 - c, max(1, lag - dd)) if n_is < 256 else c1 - c
                for _ in range(n): consume(c); c += 1
            if can_issue(): issue()
    run(consumeK, 0, 128)
    stamp(3)
    while can_issue(): issue()
    assert st['issued'] == 128 + R
    stamp(4)
    ldswait(F_P, 0 if ('s' in X or 'M' in X) else 1, 5, extra='ds_read_b128 v[28:31], v4')
    a('s_mov_b32 s62, 2' if ('s' in X or 'M' in X) else 's_mov_b32 s62, s7')
    stamp(5)
    run(consumeV, 128, 253)
    if not ('s' in X or 'T' in X): ldswait(F_RS, 1, 5, sleep=1)
    run(consumeV, 253, 256)
    stamp(6)
    a(f'''ds_write_b128 v3, v[12:15]
          s_mov_b64 exec, 1
          ds_add_rtn_u32 v5, v16, v17 offset:{F_PAIR}
          s_mov_b64 exec, -1
          ds_read_b128 v[40:43], v1
          s_mov_b64 exec, 1
          ds_add_u32 v7, v17 offset:{F_OCNT}
          s_mov_b64 exec, -1
          s_waitcnt lgkmcnt(1)
          v_readfirstlane_b32 s7, v5''')
    pkadd(12, 12, 40); pkadd(14, 14, 42)
    a('s_cmp_lg_u32 s7, 1\ns_cbranch_scc1 L_stream_end')
    if 'n' not in X: store2(62, ['buffer_store_dwordx4 v[12:15], v18, s[16:19], s28 offen'])
    ldsflag(F_PUB, 'ds_add_u32')
    stamp(7)
    a('L_stream_end:')
    if not ('s' in X or 'T' in X): a('s_cmp_eq_u32 s68, 1\ns_cbranch_scc1 L_D')
    finish()

    a('.p2align 6\nL_helper:')
    stamp(1)
    srd(16, 58, W_END)
    if 's' in X: finish()
    a('s_load_dword s31, s[58:59], 0\ns_getreg_b32 s24, hwreg(HW_REG_XCC_ID, 0, 4)')
    a(f'''s_sub_u32 s60, s3, 4
          s_mul_i32 s7, s60, 112
          v_lshrrev_b32 v1, 3, v0
          v_and_b32 v2, 7, v0
          v_mul_u32_u24 v13, 14, v1
          v_add_u32 v13, s7, v13
          v_lshl_add_u32 v12, v2, 1, v13
          v_cmp_eq_u32 vcc, 7, v2
          v_lshlrev_b32 v14, 1, v12
          v_lshlrev_b32 v15, 2, v12
          v_mov_b32 v3, {BIG}
          v_cndmask_b32 v14, v14, v3, vcc
          v_cndmask_b32 v15, v15, v3, vcc
          s_sub_u32 s62, 255, s2
          s_cmp_ge_u32 s62, 106
          s_cbranch_scc1 L_noP
          s_cmp_ge_u32 s62, 78
          s_cbranch_scc1 L_P3
          s_cmp_ge_u32 s62, 14
          s_cbranch_scc1 L_P2''')
    def wtile(base, srdn, stride, n, voff, sreg, dep, m0, m1):
        for m in range(m0, m1):
            if m >= dep: a(f's_waitcnt vmcnt({dep-1})')
            a(f'buffer_load_dwordx4 v[{base+4*m}:{base+4*m+3}], v{voff}, s[{srdn}:{srdn+3}], s{sreg} offen {wpol}')
            if m < n - 1: a(f's_add_u32 s{sreg}, s{sreg}, {stride}')
    def common_addrs():
        a(f'''s_lshl_b32 s7, s60, 9
              s_add_u32 s7, s7, {L_BC}
              v_lshl_add_u32 v16, v0, 3, s7
              v_lshl_add_u32 v17, v1, 6, s7
              s_lshl_b32 s7, s60, 10
              s_add_u32 s7, s7, {L_RED}
              v_lshl_add_u32 v18, v0, 4, s7
              v_bfe_u32 v5, v0, 2, 3
              v_bfe_u32 v6, v0, 1, 1
              v_lshl_add_u32 v5, v6, 4, v5
              v_and_b32 v6, 1, v0
              v_lshlrev_b32 v6, 3, v6
              v_lshl_add_u32 v19, v5, 4, v6
              v_lshlrev_b32 v4, 3, v0
              v_cmp_lt_u32 vcc, 31, v0
              v_cndmask_b32 v4, v4, v3, vcc''')
        masks()
        L = a.uniq('L_i')
        a(f'''s_waitcnt lgkmcnt(0)
              s_mul_i32 s31, s31, 1664525
              s_add_u32 s31, s31, 1013904223
              s_xor_b32 s24, s24, s31
              v_and_b32 v63, 31, v0
              v_lshlrev_b32 v63, 2, v63
              s_lshl_b32 s27, s4, 7
              s_add_u32 s27, s27, {W_ID}
              s_cmp_lg_u32 s60, 0
              s_cbranch_scc1 {L}
              s_lshl_b32 s7, s5, 2
              v_mov_b32 v5, s7
              v_mov_b32 v6, s24
              s_mov_b64 exec, 1
              buffer_store_dword v6, v5, s[16:19], s27 offen
              s_mov_b64 exec, -1
              {L}:''')
    def mktag(): pass
    def idflag(r):
        a(f'v_cmp_ne_u32 vcc, s24, v{r}\ns_cmp_eq_u64 vcc, 0\ns_cselect_b32 s25, {1 if force_slow else 2}, 1')
    def p1body(dep, crit):
        if crit:
            a(f'''v_lshrrev_b32 v5, 4, v0
                  v_mul_u32_u24 v5, 1792, v5
                  v_and_b32 v6, 15, v0
                  v_lshl_add_u32 v5, v6, 4, v5
                  v_lshrrev_b32 v6, 1, v0
                  v_lshlrev_b32 v6, {8 if CROT else 10}, v6
                  v_cmp_lt_u32 vcc, {63 if CROT else 15}, v0
                  v_cndmask_b32 v6, v6, v3, vcc
                  v_and_b32 v40, 1, v0
                  v_lshl_add_u32 v6, v40, 4, v6
                  s_mul_i32 s28, s60, {4*1792}
                  s_lshl_b32 s7, s62, 8
                  s_add_u32 s28, s28, s7
                  s_add_u32 s28, s28, {W_Y}
                  s_lshl_b32 s29, s60, 13
                  s_add_u32 s29, s29, {W_CNT}
                  s_cmp_ge_u32 s62, {0 if 'y' in X else 8}
                  s_cbranch_scc1 L_noclr
                  s_cmp_lt_u32 s62, 7
                  s_cselect_b32 s28, s28, s29
                  s_cselect_b32 s7, -1, 0
                  s_cselect_b64 vcc, -1, 0
                  v_mov_b32 v40, s7
                  v_mov_b32 v41, s7
                  v_mov_b32 v42, s7
                  v_mov_b32 v43, s7
                  v_cndmask_b32 v5, v6, v5, vcc
                  buffer_store_dwordx4 v[40:43], v5, s[16:19], s28 offen {RP}
                  L_noclr:''')
        srd(8, 52, 0 if ('w' in X or 'm' in X) else 448 * 5376)
        srd(12, 50, 896)
        a('''buffer_load_dword v52, v14, s[12:15], 0 offen nt
             v_mul_u32_u24 v53, 5376, v13
             v_lshl_add_u32 v53, v2, 4, v53
             s_lshl_b32 s28, s62, 7''')
        wtile(64, 8, 5376, 14, 53, 28, dep, 0, dep)
        a(f's_lshl_b32 s63, s62, 8\ns_add_u32 s63, s63, {W_MOD}')
        common_addrs()
        a(f's_waitcnt vmcnt({dep})')
        unpack(54, 55, 52)
        for r in (54, 55): a(f'v_mul_f32 v{r+2}, {NLOG2E}, v{r}')
        for r in (54, 55): a(f'v_exp_f32 v{r+2}, v{r+2}')
        for r in (54, 55): a(f'v_add_f32 v{r+2}, 1.0, v{r+2}')
        for r in (54, 55): a(f'v_rcp_f32 v{r+2}, v{r+2}')
        for r in (54, 55): a(f'v_mul_f32 v{r}, v{r}, v{r+2}')
        wtile(64, 8, 5376, 14, 53, 28, dep, dep, 14)
        a('s_mov_b32 s25, 1')
        if crit: a(f'v_lshlrev_b32 v62, 6, v0\nv_cmp_gt_u32 vcc, 16, v0\nv_cndmask_b32 v62, v3, v62, vcc\ns_lshl_b32 s26, s62, 2\ns_add_u32 s26, s26, {W_HM}')
        else: a('v_mov_b32 v62, v3\ns_mov_b32 s26, 0')
        stamp(12)
        a('s_branch L_Pgemv')
    p1body(P1D, True)
    a('L_P3:\ns_sub_u32 s62, s62, 64')
    p1body(P3D, False)

    a('L_P2:\ns_sub_u32 s62, s62, 14')
    a(f's_and_b32 s26, s62, 15\ns_lshl_b32 s26, s26, 6\ns_add_u32 s26, s26, {W_HM}')
    if gmap == 'xcd':
        a('s_lshr_b32 s62, s62, 3\ns_lshl_b32 s7, s4, 3\ns_add_u32 s62, s62, s7')
    srd(8, 38, 0 if ('w' in X or 'q' in X) else 448 * 8192)
    srd(12, 32, 896)
    a('''v_lshlrev_b32 v5, 4, v0
         buffer_load_dwordx4 v[20:23], v5, s[12:15], 0 offen nt
         buffer_load_dword v52, v14, s[12:15], 0 offen nt
         v_lshlrev_b32 v53, 13, v13
         v_lshl_add_u32 v53, v2, 4, v53
         s_lshl_b32 s28, s62, 7''')
    wtile(64, 8, 8192, 14, 53, 28, P2D, 0, P2D)
    a(f's_lshl_b32 s63, s62, 8\ns_add_u32 s63, s63, {W_Q}')
    common_addrs()
    wtile(64, 8, 8192, 14, 53, 28, P2D, P2D, min(14, 2 * P2D))
    if P2D == 14: a('s_waitcnt vmcnt(14)')
    for k in range(4): unpack(24 + 2 * k, 25 + 2 * k, 20 + k)
    a('v_add_f32 v32, v24, v25')
    for k in range(2, 8): a(f'v_add_f32 v32, v32, v{24+k}')
    allred('v_add_f32', [32], [33], 64)
    a(f'v_mul_f32 v32, {INV448}, v32')
    for k in range(8): a(f'v_sub_f32 v{24+k}, v{24+k}, v32')
    a('v_mul_f32 v34, v24, v24')
    for k in range(1, 8): a(f'v_fmac_f32 v34, v{24+k}, v{24+k}')
    a('v_cmp_gt_u32 vcc, 56, v0\nv_cndmask_b32 v34, 0, v34, vcc')
    allred('v_add_f32', [34], [33], 64)
    a(f'v_mul_f32 v34, {INV448}, v34')
    def ln_tail(mu, var, t, x0, x1):
        rnd2(mu, var, t)
        a(f'v_add_f32 v{var}, {EPS}, v{var}')
        a(f'v_sub_f32 v{x0}, v{x0}, v{mu}\nv_sub_f32 v{x1}, v{x1}, v{mu}')
        rnd1(var)
        a(f'v_sqrt_f32 v{var}, v{var}')
        rnd2(x0, x1, t)
        rnd1(var)
        a(f'v_rcp_f32 v{var}, v{var}')
        a(f'v_mul_f32 v{x0}, v{x0}, v{var}\nv_mul_f32 v{x1}, v{x1}, v{var}')
        rnd2(x0, x1, t)
    unpack(54, 55, 52)
    ln_tail(32, 34, 33, 54, 55)
    wtile(64, 8, 8192, 14, 53, 28, P2D, min(14, 2 * P2D), 14)
    mktag()
    stamp(12)
    a(f's_mov_b32 s28, {W_MOD}\nv_cmp_ne_u32 s[98:99], 7, v2\nv_mov_b32 v62, v3')
    a('s_cmp_lg_u32 s60, 0\ns_cbranch_scc1 L_mw')
    L = a.uniq('L_hm')
    a(f's_mov_b32 s30, {SPIN}\n{L}:\ns_load_dwordx16 s[76:91], s[58:59], s26 glc\ns_mov_b32 s7, 0\ns_waitcnt lgkmcnt(0)')
    for r in range(14): a(f's_cmp_eq_u32 s{76+r}, s31\ns_addc_u32 s7, s7, 0')
    a(f's_cmp_ge_u32 s7, 14\ns_cbranch_scc1 {L}_d\ns_sleep {HSL}\ns_sub_u32 s30, s30, 1\ns_cmp_lg_u32 s30, 0\ns_cbranch_scc1 {L}\n{L}_d:')
    ldsflag(F_M)
    a('L_mw:')
    ldswait(F_M, 1, 5, sleep=1)
    a('buffer_load_dword v35, v63, s[16:19], s27 offen sc1')
    L = poll_begin()
    a(f'''buffer_load_dwordx2 v[56:57], v15, s[16:19], s28 offen {PP}
         buffer_load_dwordx2 v[58:59], v15, s[16:19], s28 offen offset:1792 {PP}
         s_waitcnt vmcnt(0)''')
    tagchk([57, 59]); a('s_and_b64 vcc, vcc, s[98:99]')
    poll_end(L, sleep=MSL, mask=False)
    stamp(2)
    if gmap == 'xcd': idflag(35)
    else: a('s_mov_b32 s25, 1')
    unpack(60, 61, 58)
    a('v_add_f32 v60, 1.0, v60\nv_add_f32 v61, 1.0, v61')
    rnd2(60, 61, 33)
    a('v_mul_f32 v54, v54, v60\nv_mul_f32 v55, v55, v61')
    rnd2(54, 55, 33)
    unpack(60, 61, 56)
    a('v_add_f32 v54, v54, v60\nv_add_f32 v55, v55, v61')

    a('L_Pgemv:')
    def bcast14(x0, x1):
        a(f'''v_cvt_pk_bf16_f32 v{x0}, v{x0}, v{x0}
              v_cvt_pk_bf16_f32 v{x1}, v{x1}, v{x1}
              ds_write_b64 v16, v[{x0}:{x1}]''')
        for k in range(4): a(f'ds_read_b128 v[{20+4*k}:{23+4*k}], v17 offset:{16*k}')
    bcast14(54, 55)
    a('s_waitcnt lgkmcnt(0)')
    stamp(13)
    for m in range(14):
        ab = 36 + 4 * (m & 1)
        abuild(ab, 20 + m)
        a(f's_waitcnt vmcnt({13-m})')
        mfma(44, ab, 64 + 4 * m, m == 0)
    def red8(cnt, skip):
        a(f'''v_mov_b32 v6, 1
              ds_write_b128 v18, v[44:47]
              s_mov_b64 exec, 1
              ds_add_rtn_u32 v5, v7, v6 offset:{cnt}
              s_mov_b64 exec, -1''')
        for w in range(4):
            for x in range(2):
                r = 20 + 4 * w + 2 * x
                a(f'ds_read_b64 v[{r}:{r+1}], v19 offset:{L_RED + w*1024 + x*640}')
        a(f'''s_waitcnt lgkmcnt(0)
              v_readfirstlane_b32 s7, v5''')
        for stp in (2, 4, 8):
            for r in range(20, 36, 2 * stp): pkadd(r, r, r + stp)
        a(f's_cmp_lg_u32 s7, 3\ns_cbranch_scc1 {skip}')
    stamp(14)
    red8(F_PCNT, 'L_Pdone')
    a(f'''v_cvt_pk_bf16_f32 v20, v20, v21
         v_mov_b32 v21, s31''')
    store2(25, ['buffer_store_dwordx2 v[20:21], v4, s[16:19], s63 offen'])
    a('buffer_store_dword v21, v62, s[16:19], s26 offen sc1')
    stamp(3)
    a('s_branch L_Pdone')

    a('L_noP:')
    if codepf:
        a(f'''s_cmp_ge_u32 s2, 16
              s_cbranch_scc1 L_nopf
              s_getpc_b64 s[42:43]
              L_pc:
              s_sub_u32 s42, s42, L_pc-{NAME}_kernel
              s_subb_u32 s43, s43, 0
              s_mul_i32 s7, s60, CODE_Q
              v_lshl_add_u32 v5, v0, 4, s7
              .rept CODE_Q/1024
              global_load_dwordx4 v[20:23], v5, s[42:43]
              v_add_u32 v5, 0x400, v5
              .endr
              L_nopf:''')
    common_addrs()
    mktag()
    a('L_Pdone:')
    trole()
    a('s_cmp_lg_u32 s60, 0\ns_cbranch_scc1 L_early')
    a(f'''v_lshlrev_b32 v48, 4, v0
          v_mov_b32 v40, -1
          v_mov_b32 v41, -1
          v_mov_b32 v42, -1
          v_mov_b32 v43, -1
          s_cmp_lg_u32 s61, {7 if ('z' in X or ZTAG) else 2}
          s_cbranch_scc1 L_rs2
          s_mul_i32 s29, s62, 3584
          s_add_u32 s29, s29, {W_Z}
          v_lshlrev_b32 v5, 3, v0
          buffer_store_dwordx4 v[40:43], v48, s[16:19], s29 offen {RP}
          buffer_store_dwordx4 v[40:43], v48, s[16:19], s29 offen offset:1024 {RP}
          buffer_store_dwordx4 v[40:43], v48, s[16:19], s29 offen offset:2048 {RP}
          buffer_store_dwordx2 v[40:41], v5, s[16:19], s29 offen offset:3072 {RP}''')
    a(f'''L_rs2:
          s_lshl_b32 s28, s4, 11
          s_add_u32 s28, s28, {W_Q}''')
    ldswait(F_PROG, QTRIG, 5, sleep=4)
    L = poll_begin()
    a(f'''buffer_load_dwordx4 v[20:23], v48, s[16:19], s28 offen {PP}
         buffer_load_dwordx4 v[24:27], v48, s[16:19], s28 offen offset:1024 {PP}
         s_waitcnt vmcnt(0)
         s_mov_b64 exec, -1''')
    tagchk([21, 23, 25, 27])
    poll_end(L, sleep=QSL)
    a(f'''v_lshlrev_b32 v6, 3, v0
          v_add_u32 v6, {L_Q}, v6
          ds_write2_b32 v6, v20, v22 offset0:0 offset1:1
          ds_write2_b32 v6, v24, v26 offset0:128 offset1:129''')
    ldsflag(F_Q)
    stamp(4)
    a('buffer_load_dword v20, v63, s[16:19], s27 offen sc1\ns_waitcnt vmcnt(0)')
    idflag(20)
    a('L_early:')
    def t1loads(dep, n0=0, n1=8):
        n = 0
        for t in range(4):
            for hf in range(2):
                r = 64 + 8 * t + 4 * hf
                n += 1
                if not n0 <= n - 1 < n1: continue
                if n - 1 >= dep: a(f's_waitcnt vmcnt({dep-1})')
                a(f'buffer_load_dwordx4 v[{r}:{r+3}], v250, s[8:11], s{66+2*hf+(t>>1)} offen offset:{1792*(t&1)} {wpol}')
    tl2 = []
    for base, sr, so in ((64, 8, 66), (120, 12, 68)):
        for t in range(7):
            for hf in range(2):
                r = base + 8 * t + 4 * hf
                tl2.append((f'buffer_load_dwordx4 v[{r}:{r+3}], v250, s[{sr}:{sr+3}], s{so+hf} offen {wpol}', f's_add_u32 s{so+hf}, s{so+hf}, {4*3584}'))
    def guaddr(idx):
        a(f'''v_mad_u32_u24 v250, v253, 28, v254
              v_mul_u32_u24 v250, 3584, v250
              v_lshl_add_u32 v250, v2, 4, v250
              s_mul_i32 s66, s60, {112*3584}
              s_lshl_b32 s7, s{idx}, 7
              s_add_u32 s66, s66, s7
              s_add_u32 s67, s66, {2*3584}
              s_mov_b32 s68, s66
              s_mov_b32 s69, s67''')
    a('''v_lshrrev_b32 v5, 5, v0
         v_bfe_u32 v6, v0, 3, 1
         v_lshl_add_u32 v253, v5, 1, v6
         v_bfe_u32 v254, v0, 4, 1
         v_mov_b32 v250, v3
         v_mov_b32 v251, v3
         v_mov_b32 v252, v3''')
    a('s_cmp_lg_u32 s61, 1\ns_cbranch_scc1 L_early2')
    srd(8, 40, 0 if 'o' in X else 4096 * 896)
    a(f'''s_and_b32 s64, s5, 1
          s_lshl_b32 s66, s4, 1
          s_add_u32 s66, s66, s64
          s_lshl_b32 s66, s66, 8
          s_lshl_b32 s7, s60, 6
          s_add_u32 s66, s66, s7
          s_mul_i32 s66, s66, 896
          s_lshr_b32 s7, s5, 1
          s_lshl_b32 s7, s7, 7
          s_add_u32 s66, s66, s7
          s_add_u32 s67, s66, {4*896}
          s_add_u32 s68, s66, {32*896}
          s_add_u32 s69, s66, {36*896}
          v_lshl_add_u32 v250, v253, 3, v254
          v_mul_u32_u24 v250, 896, v250
          v_lshl_add_u32 v250, v2, 4, v250''')
    if not T1LATE: t1loads(T1D)
    elif T1EARLY: t1loads(T1D, 0, T1EARLY)
    a('L_early2:\ns_cmp_lg_u32 s61, 2\ns_cbranch_scc1 L_early3')
    srd(8, 44, 0 if 't' in X else 448 * 3584)
    srd(12, 46, 0 if 't' in X else 448 * 3584)
    guaddr(62)
    a('s_cmp_eq_u32 s60, 0\ns_cselect_b64 vcc, -1, 0')
    for n, (ld, nx) in enumerate(tl2[:NE]):
        if n >= T2D and T2D4 > T2D:
            L = a.uniq('L_e')
            a(f's_cbranch_vccnz {L}\ns_waitcnt vmcnt({T2D-1})\n{L}:')
        if n >= T2D4: a(f's_waitcnt vmcnt({T2D4-1})')
        a(ld); a(nx)
    srd(20, 32, 896)
    a(f'''v_lshrrev_b32 v5, 5, v0
          v_bfe_u32 v6, v0, 3, 2
          v_mad_u32_u24 v6, v6, 7, v2
          v_cmp_ne_u32 s[98:99], 7, v2
          s_mul_i32 s7, s60, 112
          v_lshl_add_u32 v12, v6, 2, s7
          v_mul_u32_u24 v13, 1792, v5
          v_lshl_add_u32 v13, v12, 2, v13
          v_cndmask_b32 v13, v3, v13, s[98:99]
          v_lshl_add_u32 v12, v5, 1, v12
          v_lshlrev_b32 v14, 1, v12
          v_lshlrev_b32 v15, 2, v12
          v_add_u32 v184, {L_X1}, v15
          v_cndmask_b32 v14, v3, v14, s[98:99]
          v_cndmask_b32 v15, v3, v15, s[98:99]
          v_mov_b32 v16, {L_X1 + 1792}
          v_cndmask_b32 v184, v16, v184, s[98:99]
          s_mov_b32 s28, {W_MOD + 4*896}
          s_lshl_b32 s7, s62, 4
          v_and_b32 v61, 3, v0
          v_lshlrev_b32 v61, 2, v61
          v_lshrrev_b32 v5, 4, v0
          v_add3_u32 v61, v61, v5, s7
          v_lshrrev_b32 v62, 1, v61
          v_lshlrev_b32 v62, 3, v62
          s_mov_b32 s29, {W_MOD + 4*2240}''')
    ldswait(F_Q, 1, 5, sleep=8)
    a('buffer_load_dword v52, v14, s[20:23], 0 offen')
    L = poll_begin()
    a('''buffer_load_dwordx2 v[20:21], v15, s[16:19], s28 offen sc1
         buffer_load_dwordx2 v[22:23], v15, s[16:19], s28 offen offset:1792 sc1
         buffer_load_dwordx2 v[24:25], v15, s[16:19], s28 offen offset:3584 sc1
         buffer_load_dwordx2 v[26:27], v62, s[16:19], s29 offen sc1
         s_waitcnt vmcnt(0)''')
    tagchk([21, 23, 25]); a('s_and_b64 vcc, vcc, s[98:99]'); tagchk([27], first=False)
    poll_end(L, sleep=8, mask=False)
    unpack(176, 177, 52)
    unpack(178, 179, 20)
    unpack(182, 183, 22)
    unpack(180, 181, 24)
    a('v_add_f32 v180, 1.0, v180\nv_add_f32 v181, 1.0, v181')
    rnd2(180, 181, 28)
    a('v_and_b32 v28, 0xffff0000, v26\nv_lshlrev_b32 v26, 16, v26')
    a(f'''v_and_b32 v5, 1, v61
          v_cmp_eq_u32 vcc, 1, v5
          v_cndmask_b32 v26, v26, v28, vcc
          v_lshlrev_b32 v5, 3, v0
          ds_write_b64 v5, v[26:27] offset:{L_GB}''')
    a('L_early3:')
    stamp(12)
    if CK:
        a('s_cmp_lg_u32 s60, 1\ns_cbranch_scc1 L_noctl')
        for n, (c, kg) in enumerate(zip(CK, KG)):
            tab = (TAB2 if n < NB2 else TAB) or [8 * r - R0 for r in range(8)]
            tv = sum((t & 255) << (8 * r) for r, t in enumerate(tab))
            a(f's_mov_b32 s90, {tv & 0xffffffff}\ns_mov_b32 s91, {tv >> 32}')
            a(f'''s_and_b32 s26, s2, 7
                  s_mul_i32 s26, s26, {(5, 9, 3, 13, 7, 11, 15, 1)[n]}
                  s_lshr_b32 s29, s2, 3
                  s_add_u32 s29, s29, s26
                  s_and_b32 s29, s29, 31
                  s_lshl_b32 s29, s29, 10
                  s_add_u32 s29, s29, {W_CNT + (n&3)*256*CROT + 4*n}
                  s_mov_b32 s94, 1''')
            ldswait(F_CK + 4 * n, CNTRIG, 5, sleep=CSL)
            a(f'''{'s_mov_b32 s94, 3' if 'a' in X else 's_atomic_add s94, s[58:59], s29 glc'}
                  s_waitcnt lgkmcnt(0)
                  s_min_u32 s7, s94, 7
                  s_lshl_b32 s7, s7, 3
                  s_lshr_b64 s[92:93], s[90:91], s7
                  s_sext_i32_i8 s7, s92
                  s_mul_i32 s7, s7, {kg}
                  s_ashr_i32 s7, s7, 4
                  s_min_i32 s7, s7, {CLEN}
                  s_max_i32 s7, s7, {-CLEN}''')
            ldsflag(F_CTL + 4 * n, val='s7')
        a('L_noctl:')
    a('s_cmp_lg_u32 s60, 0\ns_cbranch_scc1 L_tail')
    if 'M' in X: a('s_branch L_tail')
    a(f'''v_lshrrev_b32 v5, 5, v0
          v_mul_u32_u24 v5, {HS}, v5
          v_and_b32 v6, 31, v0
          v_lshl_add_u32 v60, v6, 4, v5
          v_mov_b32 v62, {CEXP}
          v_lshlrev_b32 v61, 7, v6
          v_lshlrev_b32 v247, 4, v0
          s_lshl_b32 s28, s6, 7
          s_add_u32 s28, s28, {W_STATS}
          s_lshl_b32 s29, s4, 12
          s_add_u32 s29, s29, {W_STATS}''')
    ldswait(F_SCNT, 4, 5, sleep=4)
    stamp(5)
    for n in range(8): a(f'ds_read_b128 v[{20+4*n}:{23+4*n}], v60 offset:{L_SC + 512*n}')
    for n in range(8):
        a(f's_waitcnt lgkmcnt({7-n})')
        rnd2(20 + 4 * n, 21 + 4 * n, 5)
        rnd2(22 + 4 * n, 23 + 4 * n, 6)
    a('v_max_f32 v52, v20, v21')
    for k in range(22, 52, 2): a(f'v_max3_f32 v52, v52, v{k}, v{k+1}')
    allred('v_max_f32', [52], [53], 32)
    for k in range(20, 52): a(f'v_sub_f32 v{k}, v{k}, v52')
    for k in range(20, 52): a(f'v_mul_f32 v{k}, v62, v{k}')
    for k in range(20, 52): a(f'v_exp_f32 v{k}, v{k}')
    a('v_add_f32 v54, v20, v21\nv_add_f32 v55, v22, v23')
    for k in range(24, 52, 2): a(f'v_add_f32 v54, v54, v{k}\nv_add_f32 v55, v55, v{k+1}')
    a('v_add_f32 v54, v54, v55')
    allred('v_add_f32', [54], [53], 32)
    a('''v_readlane_b32 s90, v52, 0
         v_readlane_b32 s91, v52, 32
         v_readlane_b32 s92, v54, 32
         s_pack_hh_b32_b16 s90, s90, s91
         v_mov_b32 v56, s90
         v_mov_b32 v57, v54
         v_mov_b32 v58, s92
         v_mov_b32 v59, s31
         s_waitcnt vmcnt(0)
         s_mov_b64 exec, 0xff''')
    store2(25, ['buffer_store_dwordx4 v[56:59], v247, s[16:19], s28 offen'])
    a('s_mov_b64 exec, -1')
    stamp(6)
    L = poll_begin()
    a(f'''buffer_load_dwordx4 v[240:243], v61, s[16:19], s29 offen {PP}
         s_waitcnt vmcnt(0)
         s_mov_b64 exec, -1''')
    tagchk([243])
    poll_end(L, sleep=SSL)
    stamp(7)
    unpack(244, 245, 240)
    a('''v_cmp_lt_u32 vcc, 31, v0
         v_cndmask_b32 v244, v244, v245, vcc
         v_cndmask_b32 v241, v241, v242, vcc
         v_mov_b32 v246, v244''')
    allred('v_max_f32', [246], [53], 32)
    a('''v_sub_f32 v244, v244, v246
         v_sub_f32 v52, v52, v246
         v_mul_f32 v244, v62, v244
         v_mul_f32 v52, v62, v52
         v_exp_f32 v244, v244
         v_exp_f32 v52, v52
         v_mul_f32 v241, v241, v244''')
    allred('v_add_f32', [241], [53], 32)
    a('v_rcp_f32 v241, v241\nv_mul_f32 v52, v52, v241')
    for n in range(8):
        for k in range(20 + 4 * n, 24 + 4 * n): a(f'v_mul_f32 v{k}, v52, v{k}')
        for k in range(20 + 4 * n, 24 + 4 * n): a(f'v_cvt_pk_bf16_f32 v{k}, v{k}, v{k}')
        a(f'ds_write_b128 v60, v[{20+4*n}:{23+4*n}] offset:{L_SC + 512*n}')
    ldsflag(F_P, val='s25')
    stamp(8)

    def smf(acc, A, B): a(f'v_smfmac_f32_16x16x64_bf16 v[{acc}:{acc+3}], v[{A}:{A+3}], v[{B}:{B+7}], v19')
    def sbuild(dst, p0, p1):
        a(f'v_and_b32 v{dst}, v{p0}, v8\nv_and_b32 v{dst+1}, v{p1}, v9\nv_and_b32 v{dst+2}, v{p0}, v10\nv_and_b32 v{dst+3}, v{p1}, v11')
    def pkop(op, d, x, y, mod=''): a(f'v_pk_{op}_f32 v[{d}:{d+1}], v[{x}:{x+1}], v[{y}:{y+1}] {mod}')
    def spin_back(L, sleep=0):
        if sleep: a(f's_sleep {sleep}')
        a(f's_sub_u32 s30, s30, 1\ns_cmp_lg_u32 s30, 0\ns_cbranch_scc1 {L}')
    a('L_tail:')
    if 'T' in X: finish()
    a(f'''s_cmp_lg_u32 s61, 3
          s_cbranch_scc1 L_noRclr
          s_cmp_lg_u32 s60, 2
          s_cbranch_scc1 L_noRclr
          s_sub_u32 s7, s5, 24
          s_lshl_b32 s7, s7, 2
          s_lshl_b32 s72, s4, 5
          s_add_u32 s7, s7, s72
          s_mul_i32 s72, s7, {PS}
          s_add_u32 s72, s72, {W_PART}
          s_add_u32 s73, s72, {2*PS}
          s_lshl_b32 s63, s7, 5
          s_add_u32 s63, s63, {W_O}
          s_lshl_b32 s26, s7, 2
          s_add_u32 s26, s26, {W_RS}
          v_lshlrev_b32 v13, 4, v0
          v_cmp_gt_u32 vcc, 8, v0
          v_cndmask_b32 v14, v3, v13, vcc''')
    for k in range(4): a(f'v_mov_b32 v{20+k}, -1\nv_mov_b32 v{24+k}, s31')
    ldswait(F_PROG, TRIGR, 5, sleep=4)
    ldswait(F_P, 1, 5, sleep=1)
    a('s_mov_b32 s25, s7')
    if PREB:
        for k in range(8): a(f'buffer_load_dwordx4 v[28:31], v13, s[16:19], s{72+(k>>2)} offen offset:{((k>>1)&1)*PS + (k&1)*1024} {PREB}')
        a(f'buffer_load_dwordx4 v[28:31], v14, s[16:19], s63 offen {PREB}\ns_waitcnt vmcnt(0)')
    store2(25, [f'buffer_store_dwordx4 v[20:23], v13, s[16:19], s{72+(k>>2)} offen offset:{((k>>1)&1)*PS + (k&1)*1024}' for k in range(8)]
               + ['buffer_store_dwordx4 v[20:23], v14, s[16:19], s63 offen'])
    a('s_waitcnt vmcnt(0)\ns_mov_b64 exec, 1')
    store2(25, ['buffer_store_dwordx4 v[24:27], v7, s[16:19], s26 offen'])
    a('s_mov_b64 exec, -1\nL_noRclr:')
    def rswatch():
        L0 = a.uniq('L_rw')
        a(f's_cmp_lg_u32 s60, 3\ns_cbranch_scc1 {L0}\ns_add_u32 s27, s27, {W_RS - W_ID}')
        ldswait(F_PROG, TRIGS, 5, sleep=4)
        L = poll_begin()
        a('buffer_load_dword v6, v63, s[16:19], s27 offen sc1\ns_waitcnt vmcnt(0)')
        tagchk([6])
        poll_end(L, sleep=2, mask=False)
        ldsflag(F_RS)
        a(f'{L0}:')
    a('s_cmp_eq_u32 s61, 2\ns_cbranch_scc1 L_norw')
    rswatch()
    a('L_norw:')
    a(f'''s_cmp_eq_u32 s61, 0
          s_cbranch_scc1 L_helper_end
          v_cmp_gt_u32 vcc, 4, v2
          v_mov_b32 v5, 0xffff
          v_cndmask_b32 v8, 0, v5, vcc
          v_xor_b32 v9, v5, v8
          v_lshlrev_b32 v10, 16, v8
          v_lshlrev_b32 v11, 16, v9
          v_and_b32 v6, 3, v0
          v_mul_u32_u24 v19, 0x5555, v6
          v_lshlrev_b32 v245, 2, v0
          v_lshrrev_b32 v5, 5, v0
          v_lshlrev_b32 v244, 9, v5
          v_lshl_add_u32 v244, v2, 5, v244
          v_bfe_u32 v6, v0, 4, 1
          v_lshl_add_u32 v244, v6, 4, v244
          s_lshl_b32 s7, s60, 10
          s_add_u32 s7, s7, {L_RED}
          v_add_u32 v244, s7, v244
          s_mov_b32 s50, 0x00ff00ff
          s_mov_b32 s51, 0xff00ff00
          s_cmp_eq_u32 s61, 2
          s_cbranch_scc1 L_T2''')
    a('s_cmp_eq_u32 s61, 3\ns_cbranch_scc1 L_R\ns_cmp_eq_u32 s61, 4\ns_cbranch_scc1 L_H\ns_cmp_eq_u32 s61, 5\ns_cbranch_scc1 L_F')
    srd(8, 40, 0 if 'o' in X else 4096 * 896)
    a(f'''s_lshl_b32 s63, s4, 1
          s_add_u32 s63, s63, s64
          s_lshl_b32 s72, s63, 9
          s_mul_i32 s63, s63, 1792
          s_lshr_b32 s7, s5, 1
          s_lshl_b32 s7, s7, 8
          s_add_u32 s63, s63, s7
          s_add_u32 s63, s63, {W_Y}
          s_lshl_b32 s7, s60, 7
          s_add_u32 s72, s72, s7
          s_add_u32 s72, s72, {W_O}
          v_lshlrev_b32 v13, 4, v1
          v_lshlrev_b32 v4, 2, v0
          v_mov_b32 v16, 1''')
    for k in range(44, 48): a(f'v_mov_b32 v{k}, 0')
    ldswait(F_LAST, 4, 5, sleep=2)
    stamp(9)
    if T1LATE: t1loads(8, T1EARLY, T1SPLIT)
    ldswait(F_RS, 1, 5, sleep=1)
    if T1W: ldswait(F_OCNT, T1W, 5, sleep=1)
    if T1LATE: t1loads(8, T1SPLIT, 8)
    stamp(13)
    ldo = f'buffer_load_dwordx4 v[20:23], v13, s[16:19], s72 offen {PP}'
    a(ldo + '\ns_nop 15\n' + ldo + '\ns_nop 15')
    L = poll_begin()
    a(f'''{ldo}
          s_waitcnt vmcnt(2)
          v_max3_u32 v24, v20, v21, v22
          v_max_u32 v24, v24, v23
          v_cmp_eq_u32 vcc, -1, v24''')
    poll_end(L, mask=False)
    stamp(10)
    if prof: a(f's_sub_u32 s7, {SPIN+1}, s30\nv_writelane_b32 v255, s7, 14')
    sbuild(36, 20, 20)
    sbuild(40, 21, 21); smf(44, 36, 64)
    sbuild(32, 22, 22); smf(44, 40, 72)
    sbuild(36, 23, 23); smf(44, 32, 80)
    smf(44, 36, 88)
    a(f'''s_mov_b64 exec, s[50:51]
          ds_write_b128 v244, v[44:47]
          s_mov_b64 exec, 1
          ds_add_rtn_u32 v5, v7, v16 offset:{F_TCNT}
          s_mov_b64 exec, -1''')
    for w in range(4): a(f'ds_read2st64_b32 v[{24+2*w}:{25+2*w}], v245 offset0:{L_RED//256+4*w} offset1:{L_RED//256+4*w+2}')
    a('s_waitcnt lgkmcnt(0)\nv_readfirstlane_b32 s7, v5')
    pkadd(24, 24, 26); pkadd(28, 28, 30); pkadd(24, 24, 28)
    a('''s_cmp_lg_u32 s7, 3
         v_add_f32 v24, v24, v25
         s_cbranch_scc1 L_helper_end
         buffer_store_dword v24, v4, s[16:19], s63 offen sc1''')
    stamp(11)
    a('L_helper_end:')
    finish()

    a(f'''.p2align 6
          L_R:
          s_sub_u32 s7, s5, 24
          s_lshl_b32 s7, s7, 2
          s_add_u32 s7, s7, s60
          s_lshl_b32 s72, s4, 5
          s_add_u32 s7, s7, s72
          s_mul_i32 s72, s7, {PS}
          s_add_u32 s72, s72, {W_PART}
          s_lshl_b32 s63, s7, 5
          s_add_u32 s63, s63, {W_O}
          s_bfe_u32 s70, s7, 0x20003
          s_lshl_b32 s70, s70, 3
          s_add_u32 s70, s70, s4
          s_lshl_b32 s70, s70, 3
          s_and_b32 s7, s7, 7
          s_add_u32 s70, s70, s7
          s_mul_i32 s70, s70, 7168
          s_add_u32 s71, s70, 4096
          s_mov_b32 s20, s48
          s_mov_b32 s21, s49
          s_mov_b32 s22, {0 if 't' in X else 1792 * 896}
          s_mov_b32 s23, 0x20000
          v_lshlrev_b32 v13, 4, v0
          v_and_b32 v4, 3, v0
          v_lshlrev_b32 v4, 3, v4
          v_lshrrev_b32 v5, 5, v0
          v_lshl_add_u32 v4, v5, 2, v4
          v_bfe_u32 v5, v0, 2, 3
          v_cmp_ne_u32 vcc, 0, v5
          v_cndmask_b32 v4, v4, v3, vcc''')
    ldr = f'buffer_load_dwordx4 v[20:23], v13, s[16:19], s72 offen {PP}\nbuffer_load_dwordx4 v[24:27], v13, s[16:19], s72 offen offset:1024 {PP}'
    ldswait(F_RS, 1, 5, sleep=4)
    if PRET: a(ldr.replace(PP, PRET))
    ldswait(F_P, 1, 5, sleep=1)
    a('s_mov_b32 s25, s7')
    ldswait(F_LAST, 4, 5, sleep=2)
    stamp(9)
    if PRE0: a(ldr.replace(PP, PRE0))
    if RW: ldswait(F_OCNT, RW, 5, sleep=1)
    stamp(13)
    a(ldr + '\ns_nop 15\ns_nop 15')
    L = poll_begin()
    a(ldr + '\ns_waitcnt vmcnt(2)')
    pkadd(28, 20, 24); pkadd(30, 22, 26)
    a('v_permlane32_swap_b32 v28, v30\nv_permlane32_swap_b32 v29, v31')
    pkadd(28, 28, 30)
    a('v_cmp_u_f32 vcc, v28, v29')
    poll_end(L, mask=False)
    stamp(10)
    if prof: a(f's_sub_u32 s7, {SPIN+1}, s30\nv_writelane_b32 v255, s7, 14')
    a(f'''v_add_f32_dpp v28, v28, v28 row_ror:4 {DPPF}
          v_add_f32_dpp v29, v29, v29 row_ror:4 {DPPF}
          v_add_f32_dpp v30, v28, v28 row_ror:8 {DPPF}
          v_add_f32_dpp v31, v29, v29 row_ror:8 {DPPF}
          v_add_f32_dpp v28, v28, v28 row_ror:8 {DPPF}
          v_add_f32_dpp v29, v29, v29 row_ror:8 {DPPF}
          v_permlane16_swap_b32 v28, v30
          v_permlane16_swap_b32 v29, v31''')
    pkadd(28, 28, 30)
    a('v_cvt_pk_bf16_f32 v28, v28, v29')
    store2(25, ['buffer_store_dword v28, v4, s[16:19], s63 offen'])
    stamp(11)
    if RPF:
        a('s_waitcnt vmcnt(0)\ns_barrier')
        for m in range(7): a(f'buffer_load_dwordx4 v[32:35], v13, s[20:23], s{70 + (m>>2)} offen offset:{1024*(m&3)} {PFP}')
    finish()

    a(f'''.p2align 6
          L_H:
          s_cmp_lg_u32 s60, 2
          s_cbranch_scc1 L_helper_end
          s_lshl_b32 s72, s4, 10
          s_add_u32 s72, s72, {W_O}
          s_lshl_b32 s63, s4, 2
          s_add_u32 s63, s63, {W_H}
          s_add_u32 s65, s63, 4096
          v_lshlrev_b32 v13, 4, v0
          v_lshlrev_b32 v4, 6, v0
          v_mov_b32 v16, s31
          s_mul_i32 s73, s4, {32*PS}
          s_add_u32 s73, s73, {W_PART}
          v_lshrrev_b32 v5, 5, v0
          v_mul_u32_u24 v5, {8*PS}, v5
          v_lshl_add_u32 v14, v63, 4, v5''')
    ldp = 'buffer_load_dword v24, v14, s[16:19], s73 offen sc1'
    ldswait(F_RS, 1, 5, sleep=4)
    a(ldo)
    if HSRC == 'part':
        ldswait(F_LAST, 4, 5, sleep=2)
        a(ldp)
        ldswait(F_OCNT, 4, 5, sleep=1)
        a(ldp + '\ns_nop 15')
        L = poll_begin()
        a(f'{ldp}\ns_waitcnt vmcnt(1)\nv_cmp_eq_u32 vcc, -1, v24')
    else:
        ldswait(F_OCNT, 4, 5, sleep=1)
        a(ldo + '\ns_nop 15\n' + ldo + '\ns_nop 15')
        L = poll_begin()
        a(f'''{ldo}
              s_waitcnt vmcnt(2)
              v_max3_u32 v24, v20, v21, v22
              v_max_u32 v24, v24, v23
              v_cmp_eq_u32 vcc, -1, v24''')
    poll_end(L, mask=False)
    for _ in range(HDLY): a(f'{ldp}\ns_waitcnt vmcnt(0)')
    a('''buffer_store_dword v16, v4, s[16:19], s63 offen sc1
         buffer_store_dword v16, v4, s[16:19], s65 offen sc1''')
    if WB: a('s_waitcnt vmcnt(0)\nbuffer_wbl2 sc1')
    stamp(11)
    finish()

    a('.p2align 6\nL_F:')
    if PF:
        srd(12, 46, 0 if 't' in X else 448 * 3584)
        srd(20, 48, 0 if 't' in X else 1792 * 896)
        a('s_sub_u32 s62, s62, 40')
        guaddr(62)
        t0 = 7 - NPU // 2
        a(f'''s_add_u32 s68, s68, {t0*4*3584}
              s_add_u32 s69, s69, {t0*4*3584}
              s_lshl_b32 s70, s62, 2
              s_add_u32 s70, s70, s60
              s_mul_i32 s70, s70, {14*1024}
              v_lshlrev_b32 v13, 4, v0''')
        pl = [(ld.replace(wpol, PFP) if wpol else ld + PFP, nx) for ld, nx in tl2[28 - NPU:]] if NPU else []
        for m in range(0 if RPF else 14): pl.append((f'buffer_load_dwordx4 v[20:23], v13, s[20:23], s70 offen offset:{1024*(m&3)} {PFP}', 's_add_u32 s70, s70, 4096' if m & 3 == 3 else ''))
        ldswait(F_LAST, 4, 5, sleep=2)
        for n, (ld, nx) in enumerate(pl):
            if n == NL1: ldswait(F_PUB, 2, 5, sleep=1)
            a(ld); a(nx)
        if prof: a('s_waitcnt vmcnt(0)')
        stamp(10)
    finish()

    a('.p2align 6\nL_T2:')
    srd(8, 44, 0 if 't' in X else 448 * 3584)
    srd(12, 46, 0 if 't' in X else 448 * 3584)
    a(f'''s_lshl_b32 s7, s60, 3
          s_add_u32 s7, s7, {L_ST2}
          v_bfe_u32 v6, v0, 4, 1
          v_lshl_add_u32 v243, v6, 2, s7
          s_lshl_b32 s7, s62, 2
          s_add_u32 s7, s7, s60
          s_lshl_b32 s7, s7, 6
          s_add_u32 s7, s7, {W_H}
          s_add_u32 s56, s58, s7
          s_addc_u32 s57, s59, 0
          v_mov_b32 v248, {INV448}
          v_mov_b32 v249, {INV448}''')
    for n in range(8): a(f's_mov_b32 s{72+n}, {W_Y + 3584*n}\ns_mov_b64 s[{80+2*n}:{81+2*n}], -1')
    a('s_waitcnt lgkmcnt(0)')
    for k in range(20, 52): a(f'v_mov_b32 v{k}, -1')
    rswatch()
    ldswait(F_LAST, 4, 5, sleep=1)
    stamp(9)
    cstamp(6)
    for n, (ld, nx) in enumerate(tl2[NE:]):
        if n == NL1: ldswait(F_PUB, 2, 5, sleep=1)
        a(ld); a(nx)
    if 28 - NE <= NL1: ldswait(F_PUB, 2, 5, sleep=1)
    if prof and 'v' in X: a('s_waitcnt vmcnt(0)')
    stamp(10)
    stamp(2)
    Lh = a.uniq('L_h')
    if DHINT:
        a(f'''s_mov_b32 s30, {SPIN}
              s_mov_b32 s29, 0xff
              v_mov_b32 v6, 1
              {Lh}:
              ds_read_b32 v5, v7 offset:{F_HM}
              s_sub_u32 s30, s30, 1
              s_cbranch_scc1 {Lh}_all
              s_waitcnt lgkmcnt(0)
              v_readfirstlane_b32 s7, v5
              s_and_b32 s7, s7, s29
              s_cbranch_scc0 {Lh}''')
        for n in range(8):
            a(f's_bitcmp0_b32 s7, {n}\ns_cbranch_scc0 {Lh}_f{n}\n{Lh}_r{n}:')
        a(f's_branch {Lh}')
        for n in range(8):
            a(f'''{Lh}_f{n}:
                  buffer_load_dwordx4 v[{20+4*n}:{23+4*n}], v13, s[16:19], s{72+n} offen sc1
                  s_andn2_b32 s29, s29, {1 << n}
                  s_cbranch_scc1 {Lh}_r{n}
                  s_branch {Lh}_last''')
    else:
        for n in range(8): a(f's_mov_b32 s{32+n}, s31\ns_not_b32 s{40+n}, s31')
        a(f'v_mov_b32 v6, 1\ns_mov_b32 s30, {SPIN}\ns_mov_b32 s29, 8\n{Lh}:\ns_load_dwordx8 s[40:47], s[56:57], 0 glc\ns_waitcnt lgkmcnt({HLIM})')
        for n in range(8): a(f's_cmp_eq_u32 s{40+n}, s{32+n}\ns_cbranch_scc1 {Lh}_f{n}\n{Lh}_r{n}:')
        a(f's_sub_u32 s30, s30, 1\ns_cmp_lg_u32 s30, 0\ns_cbranch_scc1 {Lh}\ns_branch {Lh}_all')
        for n in range(8):
            a(f'''{Lh}_f{n}:
                  buffer_load_dwordx4 v[{20+4*n}:{23+4*n}], v13, s[16:19], s{72+n} offen sc1
                  s_xor_b32 s{32+n}, s{32+n}, 0x55555555
                  s_sub_u32 s29, s29, 1
                  s_cmp_lg_u32 s29, 0
                  s_cbranch_scc1 {Lh}_r{n}
                  s_branch {Lh}_last''')
    a(f'''{Lh}_last:
          s_mov_b64 exec, 1
          ds_add_u32 v7, v6 offset:{F_YL}
          s_mov_b64 exec, -1
          s_mov_b32 s30, {SPIN - 1}
          s_branch {Lh}_chk''')
    a(f'{Lh}_all:')
    L = poll_begin()
    for n in range(8):
        a(f's_cmp_eq_u64 s[{80+2*n}:{81+2*n}], 0\ns_cbranch_scc1 {L}_s{n}')
        a(f'buffer_load_dwordx4 v[{20+4*n}:{23+4*n}], v13, s[16:19], s{72+n} offen sc1\n{L}_s{n}:')
    a(f'{Lh}_chk:\ns_waitcnt vmcnt(0)')
    for n in range(1, 8):
        for k in (0, 2): pkadd(60 + k, 20 + k if n == 1 else 60 + k, 20 + 4 * n + k)
    a('v_permlane32_swap_b32 v60, v62\nv_permlane32_swap_b32 v61, v63')
    pkadd(60, 60, 62)
    a(f'v_cmp_u_f32 vcc, v60, v61\ns_cbranch_vccz {L}_d')
    for n in range(8): a(f'v_cmp_eq_u32 s[{80+2*n}:{81+2*n}], -1, v{20+4*n}')
    a(f's_and_b32 s7, s30, 15\ns_cbranch_scc1 {L}_k')
    for n in range(8): a(f's_mov_b32 s{80+2*n}, 1')
    a(f'{L}_k:')
    spin_back(L, T2SL)
    a(f'{L}_d:')
    if 'f' not in X:
        stamp(11)
        cstamp(4)
        if prof: a(f's_sub_u32 s7, {SPIN+1}, s30\nv_writelane_b32 v255, s7, 3')
    fstamp()
    rnd2(60, 61, 22)
    pkop('mul', 60, 178, 60)
    rnd2(60, 61, 22)
    pkadd(52, 176, 60)
    rnd2(52, 53, 22)
    fstamp()
    a(f'''v_mul_f32 v25, v52, v52
          v_add_f32 v24, v52, v53
          v_fmac_f32 v25, v53, v53
          ds_write_b64 v184, v[52:53]
          v_mov_b32 v44, 0
          v_permlane16_swap_b32 v24, v25
          v_add_f32 v24, v24, v25
          v_mov_b32 v45, 0
          v_mov_b32 v46, 0
          v_add_f32_dpp v24, v24, v24 quad_perm:[1,0,3,2] {DPPF}
          v_mov_b32 v47, 0
          v_mov_b32 v48, 0
          v_add_f32_dpp v24, v24, v24 quad_perm:[2,3,0,1] {DPPF}
          v_mov_b32 v49, 0
          v_mov_b32 v50, 0
          v_add_f32_dpp v24, v24, v24 row_half_mirror {DPPF}
          v_mov_b32 v51, 0
          s_nop 0
          v_add_f32_dpp v25, v24, v24 row_mirror {DPPF}
          v_add_f32_dpp v24, v24, v24 row_mirror {DPPF}
          v_permlane32_swap_b32 v24, v25
          v_add_f32 v24, v24, v25''')
    fstamp()
    a(f'''s_mov_b64 exec, 0x10001
          ds_write_b32 v243, v24
          s_mov_b64 exec, -1
          s_waitcnt lgkmcnt(0)
          s_barrier''')
    if 'f' not in X: cstamp(7)
    fstamp()
    a(f'''ds_read_b128 v[24:27], v7 offset:{L_ST2}
          ds_read_b128 v[28:31], v7 offset:{L_ST2+16}
          s_waitcnt lgkmcnt(1)''')
    pkadd(24, 24, 26); a('s_waitcnt lgkmcnt(0)'); pkadd(28, 28, 30); pkadd(24, 24, 28)
    fstamp()
    pkop('mul', 24, 24, 248)
    a(f'''v_fma_f32 v25, -v24, v24, v25
          v_max_f32 v25, 0, v25
          v_cvt_pk_bf16_f32 v22, v24, v25
          v_and_b32 v26, 0xffff0000, v22
          v_add_f32 v26, {EPS}, v26
          v_cvt_pk_bf16_f32 v26, v26, v26
          v_lshlrev_b32 v26, 16, v26
          v_sqrt_f32 v26, v26
          v_lshlrev_b32 v24, 16, v22
          v_cvt_pk_bf16_f32 v26, v26, v26
          v_lshlrev_b32 v26, 16, v26
          v_rcp_f32 v26, v26''')
    fstamp()
    pkop('add', 52, 52, 24, 'op_sel_hi:[1,0] neg_lo:[0,1] neg_hi:[0,1]')
    rnd2(52, 53, 22)
    pkop('mul', 52, 52, 26, 'op_sel_hi:[1,0]')
    rnd2(52, 53, 22)
    pkop('mul', 52, 52, 180)
    rnd2(52, 53, 22)
    pkadd(52, 52, 182)
    def dand(d, src, q, m): a(f'v_and_b32_dpp v{d}, v{src}, v{m} quad_perm:[{q},{q},{q},{q}] {DPPF}')
    def smf_pairs(n, q0, q1, m1, acc0, acc1, B0_, B1_, bstep, pre=lambda t: None):
        def half(t, h):
            if t >= n: return
            ab = 36 + 4 * (t & 1)
            if h == 0: dand(ab, *q0(t), 8); dand(ab + 2, *q0(t), 10)
            else: dand(ab + 1, *q1(t), m1[0]); dand(ab + 3, *q1(t), m1[1])
        half(0, 0); pre(-1); half(0, 1); half(1, 0)
        for t in range(n):
            ab = 36 + 4 * (t & 1)
            pre(t)
            smf(acc0, ab, B0_ + bstep * t)
            half(t + 1, 1)
            smf(acc1, ab, B1_ + bstep * t)
            half(t + 2, 0)
    fstamp()
    a(f'v_cvt_pk_bf16_f32 v52, v52, v53\nv_mov_b32_dpp v53, v52 row_half_mirror {DPPF}')
    smf_pairs(7, lambda t: (52, t) if t < 4 else (53, 7 - t), lambda t: (53, 3 - t) if t < 4 else (52, t - 4), (9, 11), 44, 48, 64, 120, 8)
    fstamp()
    a('''s_mov_b64 exec, s[50:51]
         ds_write_b128 v244, v[44:47]
         ds_write_b128 v244, v[48:51] offset:256
         s_mov_b64 exec, -1''')
    fstamp()
    a('s_waitcnt lgkmcnt(0)')
    fstamp()
    a('s_barrier')
    fstamp(); fdump(1)
    if 'f' not in X: cstamp(8)
    finish()

    a('.p2align 6\nL_D:')
    srd(20, 48, 0 if 't' in X else 1792 * 896)
    srd(24, 54, 896)
    a(f'''s_mov_b64 exec, -1
          v_mov_b32 v3, {BIG}
          v_and_b32 v2, 7, v0
          v_cmp_gt_u32 vcc, 4, v2
          v_mov_b32 v5, 0xffff
          v_cndmask_b32 v8, 0, v5, vcc
          v_xor_b32 v9, v5, v8
          v_lshlrev_b32 v10, 16, v8
          v_lshlrev_b32 v11, 16, v9
          v_and_b32 v6, 3, v0
          v_mul_u32_u24 v19, 0x5555, v6
          v_lshlrev_b32 v245, 2, v0
          v_lshrrev_b32 v5, 5, v0
          v_bfe_u32 v6, v0, 3, 1
          v_cmp_ne_u32 vcc, v5, v6
          v_lshl_add_u32 v253, v5, 1, v6
          v_bfe_u32 v254, v0, 4, 1
          v_lshrrev_b32 v247, 1, v2
          v_mul_u32_u24 v247, {ZS}, v247
          v_lshl_add_u32 v247, v5, 6, v247
          v_and_b32 v6, 1, v0
          v_lshl_add_u32 v247, v6, 5, v247
          v_lshl_add_u32 v247, v254, 4, v247
          v_cndmask_b32 v247, v247, v3, vcc
          s_mul_i32 s63, s3, {8*ZS}
          s_lshl_b32 s7, s69, 7
          s_add_u32 s63, s63, s7
          s_add_u32 s63, s63, {W_Z}
          s_add_u32 s65, s63, {4*ZS}
          s_mov_b32 s18, {W_ZEND}
          v_mul_u32_u24 v5, 7, v254
          v_lshl_add_u32 v5, v253, 3, v5
          v_mul_u32_u24 v5, 896, v5
          v_lshl_add_u32 v240, v2, 4, v5
          v_mul_u32_u24 v5, 1792, v254
          v_sub_u32 v5, 896, v5
          v_add_u32 v241, v240, v5
          v_add_u32 v242, v241, v5
          v_add_u32 v243, v242, v5
          s_mul_i32 s70, s69, {64*896}
          s_lshl_b32 s7, s3, 8
          s_add_u32 s70, s70, s7
          s_add_u32 s71, s70, {32*896}
          s_lshl_b32 s7, s69, 4
          v_and_b32 v5, 3, v0
          v_lshlrev_b32 v5, 2, v5
          v_lshrrev_b32 v6, 4, v0
          v_add3_u32 v5, v5, v6, s7
          v_lshlrev_b32 v248, 2, v5
          v_lshlrev_b32 v249, 1, v5
          v_bfe_u32 v5, v0, 2, 2
          v_cmp_ne_u32 vcc, 0, v5
          v_cndmask_b32 v249, v249, v3, vcc
          v_lshlrev_b32 v250, 4, v0
          v_cmp_lt_u32 vcc, 31, v0
          v_cndmask_b32 v251, v250, v3, vcc
          v_lshlrev_b32 v5, 3, v0
          s_mul_i32 s28, s69, {ZS}
          s_add_u32 s28, s28, {W_Z}''')
    for k in range(56, 64): a(f'v_mov_b32 v{k}, 0')
    for t in range(4):
        for k in range(184 + 16 * t, 192 + 16 * t): a(f'v_mov_b32 v{k}, 0')
    def dloads(k):
        for t in range(4):
            for hf in range(2):
                r = 176 + 16 * t + 8 * k + 4 * hf
                a(f'buffer_load_dwordx4 v[{r}:{r+3}], v{240+t}, s[20:23], s{70+hf} offen offset:{128*k} {wpol}')
    if DHINT:
        Ld = a.uniq('L_dh')
        a(f'''ds_read_b32 v6, v7 offset:{L_GB + 4}
              s_lshl_b32 s7, s69, 2
              s_add_u32 s7, s7, s3
              s_lshl_b32 s7, s7, 6
              s_add_u32 s7, s7, {W_H}
              s_add_u32 s56, s58, s7
              s_addc_u32 s57, s59, 0
              s_mov_b32 s30, {SPIN}
              s_mov_b32 s29, 0
              s_waitcnt lgkmcnt(0)
              v_readfirstlane_b32 s31, v6
              s_mov_b64 exec, 1
              {Ld}:
              s_load_dwordx8 s[40:47], s[56:57], 0 glc
              s_sub_u32 s30, s30, 1
              s_cbranch_scc1 {Ld}_d
              s_mov_b32 s7, 0
              s_waitcnt lgkmcnt(0)''')
        for n in range(7, -1, -1): a(f's_cmp_eq_u32 s{40+n}, s31\ns_addc_u32 s7, s7, s7')
        a(f'''s_cmp_eq_u32 s7, s29
              s_cbranch_scc1 {Ld}
              v_mov_b32 v6, s7
              ds_or_b32 v7, v6 offset:{F_HM}
              s_mov_b32 s29, s7
              s_cmpk_lg_u32 s7, 0xff
              s_cbranch_scc1 {Ld}
              {Ld}_d:
              s_mov_b64 exec, -1''')
    if DTRIG: ldswait(F_YL, 4, 6, sleep=0)
    else: a('s_barrier')
    dloads(0)
    if DTRIG == 2: a('s_barrier')
    a('s_cmp_eq_u32 s3, 3\ns_cbranch_scc1 L_D3')
    dloads(1)
    a('L_D3:')
    if DTRIG == 1: a('s_barrier')
    a(f'''          ds_read_b32 v54, v248 offset:{L_X1}
          ds_read_b64 v[52:53], v5 offset:{L_GB}
          s_waitcnt lgkmcnt(0)
          s_barrier''')
    if 'f' not in X: cstamp(9)
    fstamp()
    for w in range(4):
        for x in range(2):
            r = 20 + 4 * w + 2 * x
            a(f'ds_read2st64_b32 v[{r}:{r+1}], v245 offset0:{L_RED//256+4*w+2*x} offset1:{L_RED//256+4*w+2*x+1}')
    for n in range(1, 8):
        a(f's_waitcnt lgkmcnt({7-n})'); pkadd(20, 20, 20 + 2 * n)
    fstamp()
    a(f'''v_cvt_pk_bf16_f32 v21, v20, v21
          v_lshlrev_b32 v20, 16, v21
          v_mul_f32 v22, {NLOG2E}, v20
          v_exp_f32 v22, v22
          v_and_b32 v21, 0xffff0000, v21
          v_add_f32 v22, 1.0, v22
          v_rcp_f32 v22, v22
          v_mul_f32 v20, v20, v22''')
    rnd1(20)
    a(f'''v_mul_f32 v20, v20, v21
          v_mov_b32_dpp v21, v20 row_half_mirror {DPPF}
          v_cvt_pk_bf16_f32 v20, v20, v21''')
    fstamp()
    smf_pairs(4, lambda t: (20, t), lambda t: (20, 3 - t), (11, 9), 56, 60, 176, 184, 16, pre=lambda t: a('s_waitcnt vmcnt(0)') if t == 0 else None)
    fstamp()
    a('''buffer_store_dwordx4 v[56:59], v247, s[16:19], s63 offen sc1
         s_cmp_eq_u32 s3, 3
         s_cbranch_scc1 L_T3
         buffer_store_dwordx4 v[60:63], v247, s[16:19], s65 offen sc1''')
    fstamp(); fdump(8)
    if 'f' not in X:
        stamp(12)
        cstamp(10)
    finish()
    a('L_T3:')
    if ZD == 'ack': a('s_waitcnt vmcnt(0)')
    if ZD == 'sld': a('s_load_dword s40, s[56:57], 0 glc\ns_waitcnt lgkmcnt(0)')
    L = poll_begin()
    for n in range(4): a(f'buffer_load_dwordx4 v[{64+4*n}:{67+4*n}], v{250 if n < 3 else 251}, s[16:19], s28 offen offset:{1024*n} sc1')
    for n in range(1, 4):
        a(f's_waitcnt vmcnt({3-n})')
        for k in (0, 2): pkadd(20 + k, 64 + k if n == 1 else 20 + k, 64 + 4 * n + k)
    a('v_permlane32_swap_b32 v20, v22\nv_permlane32_swap_b32 v21, v23')
    pkadd(20, 20, 22)
    a('v_cmp_u_f32 vcc, v20, v21')
    poll_end(L, mask=False)
    stamp(13)
    a(f'''v_permlane16_swap_b32 v20, v21
          v_add_f32 v20, v20, v21
          v_add_f32_dpp v20, v20, v20 row_ror:4 {DPPF}
          v_add_f32_dpp v20, v20, v20 row_ror:8 {DPPF}''')
    rnd1(20)
    a('v_mul_f32 v20, v52, v20')
    rnd1(20)
    a('''v_add_f32 v20, v54, v20
         v_cvt_pk_bf16_f32 v20, v20, v20
         buffer_store_short v20, v249, s[24:27], 0 offen
         s_cmp_lg_u32 s69, 0
         s_cbranch_scc1 L_T3_end
         s_mov_b64 exec, 1
         buffer_store_dword v53, v7, s[16:19], 0 offen sc1''')
    a('L_T3_end:')
    stamp(14)
    finish()
    if prof:
        a('L_prof_end:\ns_mov_b64 exec, -1\ns_getreg_b32 s95, hwreg(HW_REG_XCC_ID)\nv_writelane_b32 v255, s95, 15')
        if cal:
            X, wg, wv, k = cal
            a(f's_cmp_lg_u32 s2, {wg}\ns_cbranch_scc1 L_exit\ns_cmp_lg_u32 s3, {wv}\ns_cbranch_scc1 L_exit')
            a(f'v_readlane_b32 s7, v255, {k}\ns_add_u32 s7, s7, {X*100}')
            a('L_cal:\ns_memrealtime s[96:97]\ns_waitcnt lgkmcnt(0)\ns_sub_u32 s96, s96, s7\ns_cmp_lt_i32 s96, 0\ns_cbranch_scc1 L_cal\ns_branch L_exit')
        a(f'''s_lshl_b32 s7, s2, 3
              s_add_u32 s7, s7, s3
              s_lshl_b32 s7, s7, 6
              s_add_u32 s7, s7, {W_PROF}
              v_mbcnt_lo_u32_b32 v2, -1, 0
              v_lshlrev_b32 v2, 2, v2
              s_mov_b32 s18, 0x400000
              s_mov_b64 exec, 0xffff
              buffer_store_dword v255, v2, s[16:19], s7 offen''')
    a('L_exit:\ns_endpgm\nL_code_end:')
    body = a.text()
    head = open('cdna_kernels/' + NAME + '.s.ref').read().split('; Override launch')[0]
    head += f'; @launch grid=(256,1,1) block=(512,1,1) lds={LDS_BYTES}\n'
    return head, body

def assemble_text(head, body, code_q):
    return head + f'''.amdgcn_target "amdgcn-amd-amdhsa--gfx950"
.text
.set CODE_Q, {code_q}
.globl {NAME}_kernel
.p2align 8
.type {NAME}_kernel,@function
''' + body + f'''.fill 1024, 4, 0xbf810000
.section .rodata,"a"
.p2align 6
.amdhsa_kernel {NAME}_kernel
  .amdhsa_next_free_vgpr 256
  .amdhsa_next_free_sgpr 102
  .amdhsa_accum_offset 256
  .amdhsa_group_segment_fixed_size 0
  .amdhsa_kernarg_size 112
  .amdhsa_user_sgpr_count 2
  .amdhsa_user_sgpr_kernarg_segment_ptr 1
  .amdhsa_system_sgpr_workgroup_id_x 1
.end_amdhsa_kernel
'''

def code_size(text):
    import subprocess, re, tempfile
    d = tempfile.mkdtemp()
    open(d + '/k.s', 'w').write(text)
    r = subprocess.run(['clang', '-x', 'assembler', '-target', 'amdgcn-amd-amdhsa', '-mcpu=gfx950', '-c', d + '/k.s', '-o', d + '/k.o'], capture_output=True, text=True)
    if r.returncode: print(r.stderr[:3000]); raise SystemExit(1)
    o = subprocess.run(['llvm-objdump', '-t', d + '/k.o'], capture_output=True, text=True).stdout
    return int(re.search(r'([0-9a-f]+) .* L_code_end', o).group(1), 16)

def full(**kw):
    head, body = gen(**kw)
    sz = code_size(assemble_text(head, body, 4096))
    q = -(-(sz + 128) // 4096) * 1024
    return assemble_text(head, body, q)

if __name__ == '__main__':
    kw = eval('dict(' + (sys.argv[2] if len(sys.argv) > 2 else '') + ')')
    t = full(**kw)
    open(sys.argv[1], 'w').write(t)
    print('code bytes', code_size(t), 'lines', t.count('\n'))
```

```python
import sys
from collections import deque
sys.path.insert(0, 'work')
from asmlib import Asm

NAME = 'adaLN_cond__gqa_block_cached__swiglu_ffn__decode'
W_EPOCH = 0
W_MOD = 0x1000
W_Q = 0x4000
W_ID = 0x8000
W_RS = 0x8400
W_HM = 0x8800
W_STATS = 0x10000
W_CNT = 0x18000
W_PART = 0x20000
PS = 2176
W_O = 0xa8000
W_Y = 0xb0000
W_Z = 0xc0000
W_H = 0xf8000
def slot(n): return (n >> 1) * 0x4000 + (n & 1) * 0x1000
W_END = W_H + 0x8000
W_PROF = 0x200000
F_Q, F_SCNT, F_P, F_PROG, F_PCNT, F_OCNT, F_TCNT, F_LAST, F_PAIR, F_M, F_RS, F_PUB, F_YL, F_HM, F_CK, F_CTL = 0, 4, 8, 12, 16, 20, 24, 28, 32, 40, 44, 48, 52, 56, 64, 128
L_Q = 0x100
L_BC = 0x800
L_RED = 0x1000
L_SC = 0x3000
HS = 4096 + 64
L_X1 = 0x5100
L_ST2 = 0x5900
L_GB = 0x5a00
L_RED2 = 0x6000
L_EXT = 0x7000
BIG = 0x40000000
NLOG2E = 0xbfb8aa3b
CEXP = 0x3db8aa3b
INV448 = 0x3b124925
EPS = 0x3727c5ac
SPIN = 0x40000
DPPF = 'row_mask:0xf bank_mask:0xf'

def gen(D=5, R=54, E=28, CATCH=4, gmap='xcd', prof=False, cal=None, UNTH=0, wpol='nt', codepf=True,
        QSL=4, SSL=8, MSL=2, QTRIG=40, LASTI=255, TRIGC=200, CK=(), KG=(), CLEN=24, CDLY=8, KW=3, RP='sc1', PP='sc1', GP='sc1', TAB=None, BALL=0, EARLYBAR=True, TRIGR=214, TRIGS=232, HSL=4, HSRC='o', CROT=True, T1SPLIT=8, NE=0, NL1=5, NPU=0, PFP='', PF=True, DPRE=0, RPF=True, FBIAS=True, NB2=0, ROT=3, DHINT=True, DTRIG=2, ZD='ack', HDLY=0, HREP=4, DPF=False, POL=0, PRIO=0, OP='', YC=1, YSEL=0, D0=0, WB=False, CD2=0, ROTV=None, TAB2=None, spol='nt', T1EARLY=0, FASTENTRY=True, SETUPAT=24, ZTAG=False, BIGB=0, PRET=None, PRE0=None, PREB=None, ZMODE='ack', HLIM=8, CNTRIG=2, K3=5, T2BIAS=0, R0=28, T1D=1, T2D=2, T2D4=3, NLATE=16, T1LATE=False, T1W=4, RW=4, SH=32, CSL=2, X='', P1D=5, P2D=3, P3D=2,
        B0=48, BP1=0, BP2=0, BP3=0, BT2=0, force_slow=False, T1SL=0, T2SL=0):
    a = Asm()
    if cal: prof = True
    LDS_BYTES = L_EXT + 4 * E * 1024
    ZS = 7168 if ZTAG else 3584
    W_ZEND = W_Z + 14 * 0x4000
    if ZTAG: K3 = 1
    BMAX = B0 + max(BP1, BP2, BP3, BALL)
    def stamp(k):
        if prof: a(f's_memrealtime s[96:97]\ns_waitcnt lgkmcnt(0)\nv_writelane_b32 v255, s96, {k}')
    def cstamp(k):
        if prof: a(f's_memtime s[96:97]\ns_waitcnt lgkmcnt(0)\nv_writelane_b32 v255, s96, {k}')
    fs = []
    def fstamp():
        if 'f' in X:
            k = len(fs); fs.append(k); a(f's_memtime s[{72+2*k}:{73+2*k}]')
    def fdump(base):
        if 'f' in X:
            a('s_waitcnt lgkmcnt(0)')
            for k in fs: a(f'v_writelane_b32 v255, s{72+2*k}, {base+k}')
            fs.clear()
    def finish(): a('s_branch L_prof_end' if prof else 's_endpgm')
    def srd(d, lo, size):
        a(f's_mov_b32 s{d}, s{lo}\ns_mov_b32 s{d+1}, s{lo+1}\ns_mov_b32 s{d+2}, {size}\ns_mov_b32 s{d+3}, 0x20000')
    def masks():
        a('''v_and_b32 v6, 1, v0
             v_lshlrev_b32 v6, 4, v6
             v_mov_b32 v5, 0xffff
             v_lshlrev_b32 v5, v6, v5
             v_bfe_u32 v6, v0, 1, 2''')
        for j in range(4):
            a(f'v_cmp_eq_u32 vcc, {j}, v6\nv_cndmask_b32 v{8+j}, 0, v5, vcc')
    def abuild(dst, src):
        for j in range(4): a(f'v_and_b32 v{dst+j}, v{src}, v{8+j}')
    def mfma(acc, A, B, first):
        c = '0' if first else f'v[{acc}:{acc+3}]'
        a(f'v_mfma_f32_16x16x32_bf16 v[{acc}:{acc+3}], v[{A}:{A+3}], v[{B}:{B+3}], {c}')
    def pkadd(d, x, y): a(f'v_pk_add_f32 v[{d}:{d+1}], v[{x}:{x+1}], v[{y}:{y+1}]')
    def ldswait(flag, val, tmp, extra='', sleep=1):
        L = a.uniq('L_w'); Ld = L + '_d'
        a(f's_mov_b32 s30, {SPIN}\n{L}:\nds_read_b32 v{tmp}, v7 offset:{flag}')
        a(extra)
        a(f'''s_waitcnt lgkmcnt(0)
              v_readfirstlane_b32 s7, v{tmp}
              s_cmp_ge_u32 s7, {val}
              s_cbranch_scc1 {Ld}
              s_sleep {sleep}
              s_sub_u32 s30, s30, 1
              s_cmp_lg_u32 s30, 0
              s_cbranch_scc1 {L}
              {Ld}:''')
    def ldsflag(flag, op='ds_write_b32', val='1'):
        a(f'v_mov_b32 v6, {val}\ns_mov_b64 exec, 1\n{op} v7, v6 offset:{flag}\ns_mov_b64 exec, -1')
    def allred(op, regs, tmps, width):
        steps = ['quad_perm:[1,0,3,2]', 'quad_perm:[2,3,0,1]', 'row_half_mirror', 'row_mirror']
        n = {8: 3, 16: 4, 32: 4, 64: 4}[width]
        for st_ in steps[:n]:
            for r in regs: a(f'{op}_dpp v{r}, v{r}, v{r} {st_} {DPPF}')
        for wd, ins in ((32, 'v_permlane16_swap_b32'), (64, 'v_permlane32_swap_b32')):
            if width >= wd:
                for r, t in zip(regs, tmps): a(f'v_mov_b32 v{t}, v{r}')
                for r, t in zip(regs, tmps): a(f'{ins} v{r}, v{t}')
                for r, t in zip(regs, tmps): a(f'{op} v{r}, v{r}, v{t}')
    def rnd2(x, y, t):
        a(f'v_cvt_pk_bf16_f32 v{t}, v{x}, v{y}\nv_lshlrev_b32 v{x}, 16, v{t}\nv_and_b32 v{y}, 0xffff0000, v{t}')
    def rnd1(x):
        a(f'v_cvt_pk_bf16_f32 v{x}, v{x}, v{x}\nv_lshlrev_b32 v{x}, 16, v{x}')
    def unpack(x, y, src):
        a(f'v_lshlrev_b32 v{x}, 16, v{src}\nv_and_b32 v{y}, 0xffff0000, v{src}')
    def poll_begin():
        L = a.uniq('L_p')
        a(f's_mov_b32 s30, {SPIN}\n{L}:')
        return L
    def poll_end(L, sleep=0, mask=True):
        Ld = L + '_d'
        a(f's_cbranch_vccz {Ld}')
        if sleep: a(f's_sleep {sleep}')
        if mask: a('s_mov_b64 exec, vcc')
        a(f's_sub_u32 s30, s30, 1\ns_cmp_lg_u32 s30, 0\ns_cbranch_scc1 {L}')
        if mask: a('s_mov_b64 exec, -1')
        a(f'{Ld}:')
    def tagchk(regs, first=True):
        for k, r in enumerate(regs):
            if k == 0 and first: a(f'v_cmp_ne_u32 vcc, s31, v{r}')
            else: a(f'v_cmp_ne_u32 s[100:101], s31, v{r}\ns_or_b64 vcc, vcc, s[100:101]')
    def store2(flagreg, lines):
        L = a.uniq('L_s')
        a(f's_cmp_eq_u32 s{flagreg}, 2\ns_cbranch_scc0 {L}_slow')
        for l in lines: a(l)
        a(f's_branch {L}_done\n{L}_slow:')
        for l in lines: a(l + ' sc1')
        a(f'{L}_done:')
    def parity(dst, src):
        if POL == 2: a(f's_mov_b32 s{dst}, 0')
        else: a(f's_bfe_u32 s{dst}, s{src}, 0x10002\ns_xor_b32 s{dst}, s{dst}, {POL}\ns_lshl_b32 s{dst}, s{dst}, 13')
    def inbox(dst, idx):
        parity(dst, idx)
        a(f'''s_lshr_b32 s7, s{idx}, 1
              s_lshl_b32 s7, s7, 14
              s_add_u32 s{dst}, s{dst}, s7
              s_and_b32 s7, s{idx}, 1
              s_lshl_b32 s7, s7, 12
              s_add_u32 s{dst}, s{dst}, s7
              s_add_u32 s{dst}, s{dst}, {W_Z}''')
    def trole():
        L = a.uniq('L_r')
        a(f'''s_mov_b32 s61, 1
              s_cmp_lt_u32 s5, 14
              s_cbranch_scc1 {L}
              s_sub_u32 s62, s5, 14
              s_lshl_b32 s62, s62, 3
              s_add_u32 s62, s62, s4
              s_cmp_lt_u32 s62, 28
              s_cselect_b32 s61, 2, 0
              s_cmp_ge_u32 s5, 24
              s_cselect_b32 s61, 3, s61
              s_cmp_eq_u32 s5, 18
              s_cselect_b32 s61, 4, s61
              s_sub_u32 s7, s62, 40
              s_cmp_lt_u32 s7, 28
              s_cselect_b32 s61, 5, s61
              {L}:''')

    a(f'{NAME}_kernel:')
    if FASTENTRY:
        assert gmap == 'xcd' or True
        a('''s_load_dwordx16 s[32:47], s[0:1], 0
             s_load_dwordx8 s[48:55], s[0:1], 64
             s_load_dwordx4 s[56:59], s[0:1], 96
             v_readfirstlane_b32 s3, v0
             v_and_b32 v0, 63, v0
             v_mov_b32 v7, 0
             v_lshlrev_b32 v2, 2, v0
             ds_write_b32 v2, v7''')
        if prof: a('v_mov_b32 v255, 0\ns_memrealtime s[96:97]')
        if gmap == 'xcd': a('s_and_b32 s4, s2, 7\ns_lshr_b32 s5, s2, 3')
        else: a('s_lshr_b32 s4, s2, 5\ns_and_b32 s5, s2, 31')
        a('''v_lshrrev_b32 v5, 4, v0
             v_and_b32 v1, 3, v0
             v_lshlrev_b32 v1, 4, v1
             s_lshl_b32 s6, s4, 5
             s_add_u32 s6, s6, s5
             v_lshl_add_u32 v1, v5, 6, v1
             v_and_b32 v6, 12, v0
             s_lshl_b32 s28, s3, 6
             s_lshr_b32 s3, s3, 6
             v_lshl_add_u32 v1, v6, 7, v1
             s_mov_b32 s11, 0x20000''')
        if ROT is None:
            a('s_lshl_b32 s7, s6, 19\ns_bfm_b32 s10, 1, 19')
        else:
            a(f's_mul_i32 s7, s4, {32*ROT}\ns_add_u32 s7, s7, s5\n' + ('s_and_b32 s7, s7, 1023\n' if ROT > 4 else '') + f's_lshl_b32 s7, s7, 14\ns_add_u32 s28, s28, s7\ns_lshl_b32 s7, s4, 24\ns_bfm_b32 s10, 1, 24')
        a('''s_cmpk_ge_u32 s2, 256
             s_cbranch_scc1 L_exit
             s_cmp_ge_u32 s3, 4
             s_waitcnt lgkmcnt(0)
             s_barrier''')
        if prof: a('v_writelane_b32 v255, s96, 0')
        a('''s_cbranch_scc1 L_helper
             s_add_u32 s8, s34, s7
             s_addc_u32 s9, s35, 0''')
    else:
        a('''s_load_dwordx16 s[32:47], s[0:1], 0
         s_load_dwordx8 s[48:55], s[0:1], 64
         s_load_dwordx4 s[56:59], s[0:1], 96
         s_cmp_ge_u32 s2, 256
         s_cbranch_scc1 L_exit
         v_lshrrev_b32 v1, 6, v0
         v_and_b32 v0, 63, v0
         v_readfirstlane_b32 s3, v1
         v_mov_b32 v7, 0
         v_lshlrev_b32 v2, 2, v0
         ds_write_b32 v2, v7''')
        if gmap == 'xcd': a('s_and_b32 s4, s2, 7\ns_lshr_b32 s5, s2, 3')
        else: a('s_lshr_b32 s4, s2, 5\ns_and_b32 s5, s2, 31')
        a('''s_lshl_b32 s6, s4, 5
         s_add_u32 s6, s6, s5
         s_lshl_b32 s7, s6, 19
         v_lshrrev_b32 v5, 4, v0
         v_bfe_u32 v6, v0, 2, 2
         v_and_b32 v1, 3, v0
         v_lshlrev_b32 v1, 4, v1
         v_lshl_add_u32 v1, v5, 6, v1
         v_lshl_add_u32 v1, v6, 9, v1
         s_lshl_b32 s28, s3, 12
         s_mov_b32 s10, 0x80000
         s_mov_b32 s11, 0x20000''')
        if prof: a('v_mov_b32 v255, 0\ns_memrealtime s[96:97]')
        a('''s_waitcnt lgkmcnt(0)
         s_add_u32 s8, s34, s7
         s_addc_u32 s9, s35, 0''')
        if prof: a('v_writelane_b32 v255, s96, 0')
        if EARLYBAR: a('s_barrier\ns_cmp_ge_u32 s3, 4\ns_cbranch_scc1 L_helper')
        else: a('s_cmp_ge_u32 s3, 4\ns_cbranch_scc1 L_hbar')


    RB = 36
    st = dict(issued=0, done=-1, lds=0)
    free = deque(RB + 4 * k for k in range(R))
    loc = {}; rdseq = {}
    progs = sorted(set([QTRIG, TRIGC, TRIGR, TRIGS]))
    assert min(LASTI, TRIGC, TRIGR, TRIGS) >= 128 + R and QTRIG < R + E and (not CK or CK[0] >= R + E)
    C0 = (CK[0] + CDLY) if CK else 1000
    C2X = (CK[NB2] + CDLY if NB2 < len(CK) else 256) if NB2 else 0
    def depth(i): return (D + 2 if i < C2X else D + 1) if (B0 <= i < BMAX or i >= C0) else D
    def vwait(n):
        a(f's_waitcnt vmcnt({n})'); st['done'] = max(st['done'], st['issued'] - 1 - n)
    def inlds(i): return R <= i < R + E
    def can_issue(): return st['issued'] < 256 and (inlds(st['issued']) or len(free) > 0)
    def issue():
        i = st['issued']; d = depth(i)
        if i >= max(d, D0) and i < 256 - UNTH:
            if inlds(i): a(f's_add_u32 m0, s63, {(i-R)*1024 - (((i>>1)&1)*2048 + (i&1)*256) + 4096}')
            if d > D:
                L = a.uniq('L_b')
                a(f's_cmpk_gt_u32 s61, {i}\ns_cbranch_scc1 {L}')
                if i >= C0: a(f's_cmpk_le_u32 s60, {i}\ns_cbranch_scc1 {L}_n\ns_waitcnt vmcnt({D-2})\n{L}_n:')
                a(f's_waitcnt vmcnt({D-1})\n{L}:')
            if st['done'] < i - d: vwait(d - 1)
        if i == D: stamp(8)
        if i in (208, 232, 244) and 'u' in X: stamp({208: 9, 232: 10, 244: 11}[i])
        if i < 128:
            off = ((i >> 1) & 1) * 2048 + (i & 1) * 256
            if inlds(i):
                a(f'buffer_load_dwordx4 v1, s[8:11], s28 offen offset:{off} {spol} lds')
            else:
                r = loc[i] = free.popleft()
                a(f'buffer_load_dwordx4 v[{r}:{r+3}], v1, s[8:11], s28 offen offset:{off} {spol}')
            if i % 4 == 3 and i < 127: a('s_add_u32 s28, s28, 0x4000' if ROT is None else 's_add_u32 s28, s28, 0x80000\ns_bitset0_b32 s28, 24')
        else:
            r = loc[i] = free.popleft()
            a(f'buffer_load_dwordx4 v[{r}:{r+3}], v2, s[12:15], s29 offen offset:{(i&1)*2048} {spol}')
            if i % 4 == 1: a('s_add_u32 s29, s29, 0x1000')
            if i % 4 == 3 and i < 255: a('s_add_u32 s29, s29, 0x3000' if ROT is None else 's_add_u32 s29, s29, 0x7f000\ns_bitset0_b32 s29, 24')
        st['issued'] += 1
        if i in progs:
            ldsflag(F_PROG, 'ds_max_u32', i); st['lds'] += 1
        if i == LASTI: ldsflag(F_LAST, 'ds_add_u32')
        for n, c in enumerate(CK):
            for role, pos in ((0, c), (1, c + T2BIAS)) if T2BIAS else ((None, c),):
                if i not in (pos, pos + CDLY - 2, pos + CDLY - 1, pos + CDLY + CD2 - 2, pos + CDLY + CD2 - 1): continue
                L = a.uniq('L_c')
                if role is not None: a(f's_cmp_lg_u32 s64, {role}\ns_cbranch_scc1 {L}')
                if i == pos:
                    a(f'v_mov_b32 v6, 1\ns_mov_b64 exec, 1\nds_add_rtn_u32 v253, v7, v6 offset:{F_CK+4*n}\ns_mov_b64 exec, -1')
                elif i in (pos + CDLY - 2, pos + CDLY + CD2 - 2):
                    a(f'ds_read_b32 v254, v7 offset:{F_CTL+4*n}')
                else:
                    a(f'''s_waitcnt lgkmcnt(0)
                          v_readfirstlane_b32 s7, v253
                          v_readfirstlane_b32 s65, v254
                          s_mul_i32 s7, s7, {KW}
                          s_sub_u32 s7, s7, {(3*KW)//2}
                          s_add_u32 s7, s7, s65
                          s_add_u32 s61, s7, {pos+CDLY}
                          s_sub_u32 s60, {pos+CDLY}, s7''')
                a(f'{L}:')
    def ensure(i):
        if st['done'] < i: vwait(st['issued'] - 1 - i)
    for i in range(D): issue()
    if FASTENTRY:
        if PRIO: a(f's_setprio {PRIO}')
        while st['issued'] < SETUPAT: issue()
        a('v_lshrrev_b32 v6, 2, v6')
    elif not EARLYBAR: a('L_hbar:\ns_barrier\ns_cmp_ge_u32 s3, 4\ns_cbranch_scc1 L_helper')
    a(f'''s_add_u32 s12, s36, s7
          s_addc_u32 s13, s37, 0
          s_mov_b32 s14, s10
          s_mov_b32 s15, 0x20000
          s_and_b32 s24, s3, 1
          s_lshr_b32 s25, s3, 1
          s_lshl_b32 s29, s25, 13
          s_lshl_b32 s7, s24, 8
          s_add_u32 s29, s29, s7
          s_mul_i32 s7, s4, {32*(ROT or 0)}
          s_add_u32 s7, s7, s5
          s_and_b32 s7, s7, 1023
          s_lshl_b32 s7, s7, 14
          s_add_u32 s29, s29, {'0' if ROT is None else 's7'}
          v_and_b32 v2, 15, v0
          v_lshlrev_b32 v2, 4, v2
          v_lshl_add_u32 v2, v5, 9, v2
          s_lshl_b32 s7, s25, 11
          s_add_u32 s7, s7, {L_SC}
          v_bfe_u32 v4, v0, 3, 1
          v_mul_u32_u24 v4, {HS}, v4
          v_lshl_add_u32 v4, v5, 4, v4
          v_add_u32 v4, s7, v4
          s_lshl_b32 s26, s24, 3
          s_add_u32 s7, s7, s26
          v_and_b32 v3, 1, v5
          v_mul_u32_u24 v3, {HS}, v3
          v_lshl_add_u32 v3, v6, 4, v3
          v_lshrrev_b32 v12, 5, v0
          v_lshl_add_u32 v3, v12, 2, v3
          v_add_u32 v3, s7, v3
          v_bfe_u32 v12, v0, 2, 1
          v_lshlrev_b32 v12, 9, v12
          v_lshl_add_u32 v12, v5, 6, v12
          v_and_b32 v13, 3, v0
          v_lshl_add_u32 v12, v13, 4, v12
          s_mul_i32 s63, s3, {E*1024}
          s_add_u32 s63, s63, {L_EXT}
          v_lshl_add_u32 v252, v0, 4, s63
          s_sub_u32 s63, s63, 4096''')
    srd(16, 58, W_END)
    masks()
    trole()
    a(f'''s_cmp_eq_u32 s61, 2
          s_cselect_b32 s64, 1, 0
          s_mov_b32 s68, s64
          s_cmp_eq_u32 s61, {5 if FBIAS else 2}
          s_cselect_b32 s64, 1, s64
          s_mov_b32 s69, s62
          s_mov_b32 s60, 0
          s_cmp_ge_u32 s2, {256-106}
          s_cselect_b32 s7, {BP3}, {BALL}
          s_cmp_ge_u32 s2, {256-78}
          s_cselect_b32 s7, {BP2}, s7
          s_cmp_ge_u32 s2, {256-14}
          s_cselect_b32 s7, {BP1}, s7
          s_add_u32 s61, s7, {B0}''')
    while st['issued'] < R + E: issue()
    stamp(1)
    ldswait(F_Q, 0 if 's' in X else 1, 5, extra=f'ds_read_b128 v[28:31], v12 offset:{L_Q}\nds_read_b128 v[32:35], v12 offset:{L_Q+256}')
    stamp(2)
    a('v_bfe_u32 v5, v0, 3, 1\nv_cmp_eq_u32 vcc, 0, v5')
    for k in range(8): a(f'v_cndmask_b32 v{20+k}, 0, v{28+k}, vcc')
    a('v_cmp_eq_u32 vcc, 1, v5')
    for k in range(8): a(f'v_cndmask_b32 v{28+k}, 0, v{28+k}, vcc')
    def post_group(gm):
        d = 12 + 4 * (gm & 1)
        a(f'''v_mov_b32_dpp v5, v{d} quad_perm:[0,0,0,0] {DPPF}
              v_add_f32_dpp v5, v{d+1}, v5 quad_perm:[1,1,1,1] {DPPF}
              v_add_f32_dpp v5, v{d+2}, v5 quad_perm:[2,2,2,2] {DPPF}
              v_add_f32_dpp v5, v{d+3}, v5 quad_perm:[3,3,3,3] {DPPF}
              ds_write_b32 v3, v5 offset:{gm*64}''')
        st['lds'] += 1
    def consumeK(i):
        k = i + 4
        if inlds(k):
            ensure(k)
            r = loc[k] = free.popleft()
            a(f'ds_read_b128 v[{r}:{r+3}], v252 offset:{(k-R)*1024}')
            rdseq[k] = st['lds']; st['lds'] += 1
        if inlds(i): a(f's_waitcnt lgkmcnt({min(15, st["lds"] - rdseq[i] - 1)})')
        else: ensure(i)
        gm, q = i >> 2, i & 3
        mfma(12 + 4 * (gm & 1), 20 + 4 * q, loc[i], q == 0)
        free.append(loc[i])
        if q == 2 and gm > 0: post_group(gm - 1)
        if i == 127:
            post_group(31)
            ldsflag(F_SCNT, 'ds_add_u32')
    def consumeV(i):
        t = i - 128
        ab = 20 + 4 * (t & 1); pb = 28 + 4 * ((t >> 2) & 1)
        if t & 3 == 0:
            a('s_waitcnt lgkmcnt(0)')
            if t + 4 < 128:
                pn = 28 + 4 * (((t >> 2) + 1) & 1)
                a(f'ds_read_b128 v[{pn}:{pn+3}], v4 offset:{((t>>2)+1)*64}')
        abuild(ab, pb + (t & 3))
        ensure(i)
        mfma(12, ab, loc[i], t == 0)
        free.append(loc[i])
        if i == 200:
            a(f'''s_lshl_b32 s7, s3, 10
                  s_add_u32 s7, s7, {L_RED2}
                  v_lshl_add_u32 v3, v0, 4, s7
                  v_xor_b32 v1, 0x800, v3
                  s_lshl_b32 s7, s24, 2
                  v_mov_b32 v16, s7
                  v_mov_b32 v17, 1
                  v_lshrrev_b32 v5, 5, v0
                  v_bfe_u32 v6, v0, 1, 3
                  v_lshl_add_u32 v5, v5, 4, v6
                  v_mul_u32_u24 v5, {PS}, v5
                  v_and_b32 v6, 1, v0
                  v_lshl_add_u32 v5, v6, 5, v5
                  v_bfe_u32 v6, v0, 4, 1
                  v_lshl_add_u32 v18, v6, 4, v5
                  s_lshl_b32 s28, s4, 2
                  s_add_u32 s28, s28, s24
                  s_mul_i32 s28, s28, {8*PS}
                  s_lshl_b32 s7, s5, 6
                  s_add_u32 s28, s28, s7
                  s_add_u32 s28, s28, {W_PART}''')
    def run(consume, c0, c1):
        c = c0
        while c < c1:
            n_is = st['issued']; lag = n_is - c
            if n_is >= 256 - UNTH and can_issue():
                issue(); continue
            dd = depth(n_is)
            if lag > dd or n_is >= 256:
                n = min(CATCH, c1 - c, max(1, lag - dd)) if n_is < 256 else c1 - c
                for _ in range(n): consume(c); c += 1
            if can_issue(): issue()
    run(consumeK, 0, 128)
    stamp(3)
    while can_issue(): issue()
    assert st['issued'] == 128 + R
    stamp(4)
    ldswait(F_P, 0 if ('s' in X or 'M' in X) else 1, 5, extra='ds_read_b128 v[28:31], v4')
    a('s_mov_b32 s62, 2' if ('s' in X or 'M' in X) else 's_mov_b32 s62, s7')
    stamp(5)
    run(consumeV, 128, 253)
    if not ('s' in X or 'T' in X): ldswait(F_RS, 1, 5, sleep=1)
    run(consumeV, 253, 256)
    stamp(6)
    a(f'''ds_write_b128 v3, v[12:15]
          s_mov_b64 exec, 1
          ds_add_rtn_u32 v5, v16, v17 offset:{F_PAIR}
          s_mov_b64 exec, -1
          ds_read_b128 v[40:43], v1
          s_mov_b64 exec, 1
          ds_add_u32 v7, v17 offset:{F_OCNT}
          s_mov_b64 exec, -1
          s_waitcnt lgkmcnt(1)
          v_readfirstlane_b32 s7, v5''')
    pkadd(12, 12, 40); pkadd(14, 14, 42)
    a('s_cmp_lg_u32 s7, 1\ns_cbranch_scc1 L_stream_end')
    if 'n' not in X: store2(62, ['buffer_store_dwordx4 v[12:15], v18, s[16:19], s28 offen'])
    ldsflag(F_PUB, 'ds_add_u32')
    stamp(7)
    a('L_stream_end:')
    if not ('s' in X or 'T' in X): a('s_cmp_eq_u32 s68, 1\ns_cbranch_scc1 L_D')
    finish()

    a('.p2align 6\nL_helper:')
    stamp(1)
    srd(16, 58, W_END)
    if 's' in X: finish()
    a('s_load_dword s31, s[58:59], 0\ns_getreg_b32 s24, hwreg(HW_REG_XCC_ID, 0, 4)')
    a(f'''s_sub_u32 s60, s3, 4
          s_mul_i32 s7, s60, 112
          v_lshrrev_b32 v1, 3, v0
          v_and_b32 v2, 7, v0
          v_mul_u32_u24 v13, 14, v1
          v_add_u32 v13, s7, v13
          v_lshl_add_u32 v12, v2, 1, v13
          v_cmp_eq_u32 vcc, 7, v2
          v_lshlrev_b32 v14, 1, v12
          v_lshlrev_b32 v15, 2, v12
          v_mov_b32 v3, {BIG}
          v_cndmask_b32 v14, v14, v3, vcc
          v_cndmask_b32 v15, v15, v3, vcc
          s_sub_u32 s62, 255, s2
          s_cmp_ge_u32 s62, 106
          s_cbranch_scc1 L_noP
          s_cmp_ge_u32 s62, 78
          s_cbranch_scc1 L_P3
          s_cmp_ge_u32 s62, 14
          s_cbranch_scc1 L_P2''')
    def wtile(base, srdn, stride, n, voff, sreg, dep, m0, m1):
        for m in range(m0, m1):
            if m >= dep: a(f's_waitcnt vmcnt({dep-1})')
            a(f'buffer_load_dwordx4 v[{base+4*m}:{base+4*m+3}], v{voff}, s[{srdn}:{srdn+3}], s{sreg} offen {wpol}')
            if m < n - 1: a(f's_add_u32 s{sreg}, s{sreg}, {stride}')
    def common_addrs():
        a(f'''s_lshl_b32 s7, s60, 9
              s_add_u32 s7, s7, {L_BC}
              v_lshl_add_u32 v16, v0, 3, s7
              v_lshl_add_u32 v17, v1, 6, s7
              s_lshl_b32 s7, s60, 10
              s_add_u32 s7, s7, {L_RED}
              v_lshl_add_u32 v18, v0, 4, s7
              v_bfe_u32 v5, v0, 2, 3
              v_bfe_u32 v6, v0, 1, 1
              v_lshl_add_u32 v5, v6, 4, v5
              v_and_b32 v6, 1, v0
              v_lshlrev_b32 v6, 3, v6
              v_lshl_add_u32 v19, v5, 4, v6
              v_lshlrev_b32 v4, 3, v0
              v_cmp_lt_u32 vcc, 31, v0
              v_cndmask_b32 v4, v4, v3, vcc''')
        masks()
        L = a.uniq('L_i')
        a(f'''s_waitcnt lgkmcnt(0)
              s_mul_i32 s31, s31, 1664525
              s_add_u32 s31, s31, 1013904223
              s_xor_b32 s24, s24, s31
              v_and_b32 v63, 31, v0
              v_lshlrev_b32 v63, 2, v63
              s_lshl_b32 s27, s4, 7
              s_add_u32 s27, s27, {W_ID}
              s_cmp_lg_u32 s60, 0
              s_cbranch_scc1 {L}
              s_lshl_b32 s7, s5, 2
              v_mov_b32 v5, s7
              v_mov_b32 v6, s24
              s_mov_b64 exec, 1
              buffer_store_dword v6, v5, s[16:19], s27 offen
              s_mov_b64 exec, -1
              {L}:''')
    def mktag(): pass
    def idflag(r):
        a(f'v_cmp_ne_u32 vcc, s24, v{r}\ns_cmp_eq_u64 vcc, 0\ns_cselect_b32 s25, {1 if force_slow else 2}, 1')
    def p1body(dep, crit):
        if crit:
            a(f'''v_bfe_u32 v5, v0, 4, 1
                  v_mul_u32_u24 v5, 1792, v5
                  v_lshrrev_b32 v6, 5, v0
                  v_lshl_add_u32 v5, v6, 12, v5
                  v_and_b32 v6, 15, v0
                  v_lshl_add_u32 v5, v6, 4, v5
                  v_lshrrev_b32 v6, 1, v0
                  v_lshlrev_b32 v6, {8 if CROT else 10}, v6
                  v_cmp_lt_u32 vcc, {63 if CROT else 15}, v0
                  v_cndmask_b32 v6, v6, v3, vcc
                  v_and_b32 v40, 1, v0
                  v_lshl_add_u32 v6, v40, 4, v6
                  s_lshl_b32 s28, s60, 14
                  s_lshl_b32 s7, s62, 8
                  s_add_u32 s28, s28, s7
                  s_add_u32 s28, s28, {W_Y}
                  s_lshl_b32 s29, s60, 13
                  s_add_u32 s29, s29, {W_CNT}
                  s_cmp_eq_u32 s62, 8
                  s_cselect_b32 s7, {W_H - W_CNT}, 0
                  s_add_u32 s29, s29, s7
                  s_cmp_ge_u32 s62, {0 if 'y' in X else 9}
                  s_cbranch_scc1 L_noclr
                  s_cmp_lt_u32 s62, 7
                  s_cselect_b32 s28, s28, s29
                  s_cselect_b32 s7, -1, 0
                  s_cselect_b64 vcc, -1, 0
                  v_mov_b32 v40, s7
                  v_mov_b32 v41, s7
                  v_mov_b32 v42, s7
                  v_mov_b32 v43, s7
                  v_cndmask_b32 v5, v6, v5, vcc
                  buffer_store_dwordx4 v[40:43], v5, s[16:19], s28 offen {RP}
                  s_cbranch_vccz L_noclr''')
            a(f's_add_u32 s28, s28, 0x2000\nbuffer_store_dwordx4 v[40:43], v5, s[16:19], s28 offen {RP}')
            a('L_noclr:')
        srd(8, 52, 0 if ('w' in X or 'm' in X) else 448 * 5376)
        srd(12, 50, 896)
        a('''buffer_load_dword v52, v14, s[12:15], 0 offen nt
             v_mul_u32_u24 v53, 5376, v13
             v_lshl_add_u32 v53, v2, 4, v53
             s_lshl_b32 s28, s62, 7''')
        wtile(64, 8, 5376, 14, 53, 28, dep, 0, dep)
        a(f's_lshl_b32 s63, s62, 8\ns_add_u32 s63, s63, {W_MOD}')
        common_addrs()
        a(f's_waitcnt vmcnt({dep})')
        unpack(54, 55, 52)
        for r in (54, 55): a(f'v_mul_f32 v{r+2}, {NLOG2E}, v{r}')
        for r in (54, 55): a(f'v_exp_f32 v{r+2}, v{r+2}')
        for r in (54, 55): a(f'v_add_f32 v{r+2}, 1.0, v{r+2}')
        for r in (54, 55): a(f'v_rcp_f32 v{r+2}, v{r+2}')
        for r in (54, 55): a(f'v_mul_f32 v{r}, v{r}, v{r+2}')
        wtile(64, 8, 5376, 14, 53, 28, dep, dep, 14)
        a('s_mov_b32 s25, 1')
        if crit: a(f'v_lshlrev_b32 v62, 6, v0\nv_cmp_gt_u32 vcc, 16, v0\nv_cndmask_b32 v62, v3, v62, vcc\ns_lshl_b32 s26, s62, 2\ns_add_u32 s26, s26, {W_HM}')
        else: a('v_mov_b32 v62, v3\ns_mov_b32 s26, 0')
        stamp(12)
        a('s_branch L_Pgemv')
    p1body(P1D, True)
    a('L_P3:\ns_sub_u32 s62, s62, 64')
    p1body(P3D, False)

    a('L_P2:\ns_sub_u32 s62, s62, 14')
    a(f's_and_b32 s26, s62, 15\ns_lshl_b32 s26, s26, 6\ns_add_u32 s26, s26, {W_HM}')
    if gmap == 'xcd':
        a('s_lshr_b32 s62, s62, 3\ns_lshl_b32 s7, s4, 3\ns_add_u32 s62, s62, s7')
    srd(8, 38, 0 if ('w' in X or 'q' in X) else 448 * 8192)
    srd(12, 32, 896)
    a('''v_lshlrev_b32 v5, 4, v0
         buffer_load_dwordx4 v[20:23], v5, s[12:15], 0 offen nt
         buffer_load_dword v52, v14, s[12:15], 0 offen nt
         v_lshlrev_b32 v53, 13, v13
         v_lshl_add_u32 v53, v2, 4, v53
         s_lshl_b32 s28, s62, 7''')
    wtile(64, 8, 8192, 14, 53, 28, P2D, 0, P2D)
    a(f's_lshl_b32 s63, s62, 8\ns_add_u32 s63, s63, {W_Q}')
    common_addrs()
    wtile(64, 8, 8192, 14, 53, 28, P2D, P2D, min(14, 2 * P2D))
    if P2D == 14: a('s_waitcnt vmcnt(14)')
    for k in range(4): unpack(24 + 2 * k, 25 + 2 * k, 20 + k)
    a('v_add_f32 v32, v24, v25')
    for k in range(2, 8): a(f'v_add_f32 v32, v32, v{24+k}')
    allred('v_add_f32', [32], [33], 64)
    a(f'v_mul_f32 v32, {INV448}, v32')
    for k in range(8): a(f'v_sub_f32 v{24+k}, v{24+k}, v32')
    a('v_mul_f32 v34, v24, v24')
    for k in range(1, 8): a(f'v_fmac_f32 v34, v{24+k}, v{24+k}')
    a('v_cmp_gt_u32 vcc, 56, v0\nv_cndmask_b32 v34, 0, v34, vcc')
    allred('v_add_f32', [34], [33], 64)
    a(f'v_mul_f32 v34, {INV448}, v34')
    def ln_tail(mu, var, t, x0, x1):
        rnd2(mu, var, t)
        a(f'v_add_f32 v{var}, {EPS}, v{var}')
        a(f'v_sub_f32 v{x0}, v{x0}, v{mu}\nv_sub_f32 v{x1}, v{x1}, v{mu}')
        rnd1(var)
        a(f'v_sqrt_f32 v{var}, v{var}')
        rnd2(x0, x1, t)
        rnd1(var)
        a(f'v_rcp_f32 v{var}, v{var}')
        a(f'v_mul_f32 v{x0}, v{x0}, v{var}\nv_mul_f32 v{x1}, v{x1}, v{var}')
        rnd2(x0, x1, t)
    unpack(54, 55, 52)
    ln_tail(32, 34, 33, 54, 55)
    wtile(64, 8, 8192, 14, 53, 28, P2D, min(14, 2 * P2D), 14)
    mktag()
    stamp(12)
    a(f's_mov_b32 s28, {W_MOD}\nv_cmp_ne_u32 s[98:99], 7, v2\nv_mov_b32 v62, v3')
    a('s_cmp_lg_u32 s60, 0\ns_cbranch_scc1 L_mw')
    L = a.uniq('L_hm')
    a(f's_mov_b32 s30, {SPIN}\n{L}:\ns_load_dwordx16 s[76:91], s[58:59], s26 glc\ns_mov_b32 s7, 0\ns_waitcnt lgkmcnt(0)')
    for r in range(14): a(f's_cmp_eq_u32 s{76+r}, s31\ns_addc_u32 s7, s7, 0')
    a(f's_cmp_ge_u32 s7, 14\ns_cbranch_scc1 {L}_d\ns_sleep {HSL}\ns_sub_u32 s30, s30, 1\ns_cmp_lg_u32 s30, 0\ns_cbranch_scc1 {L}\n{L}_d:')
    ldsflag(F_M)
    a('L_mw:')
    ldswait(F_M, 1, 5, sleep=1)
    a('buffer_load_dword v35, v63, s[16:19], s27 offen sc1')
    L = poll_begin()
    a(f'''buffer_load_dwordx2 v[56:57], v15, s[16:19], s28 offen {PP}
         buffer_load_dwordx2 v[58:59], v15, s[16:19], s28 offen offset:1792 {PP}
         s_waitcnt vmcnt(0)''')
    tagchk([57, 59]); a('s_and_b64 vcc, vcc, s[98:99]')
    poll_end(L, sleep=MSL, mask=False)
    stamp(2)
    if gmap == 'xcd': idflag(35)
    else: a('s_mov_b32 s25, 1')
    unpack(60, 61, 58)
    a('v_add_f32 v60, 1.0, v60\nv_add_f32 v61, 1.0, v61')
    rnd2(60, 61, 33)
    a('v_mul_f32 v54, v54, v60\nv_mul_f32 v55, v55, v61')
    rnd2(54, 55, 33)
    unpack(60, 61, 56)
    a('v_add_f32 v54, v54, v60\nv_add_f32 v55, v55, v61')

    a('L_Pgemv:')
    def bcast14(x0, x1):
        a(f'''v_cvt_pk_bf16_f32 v{x0}, v{x0}, v{x0}
              v_cvt_pk_bf16_f32 v{x1}, v{x1}, v{x1}
              ds_write_b64 v16, v[{x0}:{x1}]''')
        for k in range(4): a(f'ds_read_b128 v[{20+4*k}:{23+4*k}], v17 offset:{16*k}')
    bcast14(54, 55)
    a('s_waitcnt lgkmcnt(0)')
    stamp(13)
    for m in range(14):
        ab = 36 + 4 * (m & 1)
        abuild(ab, 20 + m)
        a(f's_waitcnt vmcnt({13-m})')
        mfma(44, ab, 64 + 4 * m, m == 0)
    def red8(cnt, skip):
        a(f'''v_mov_b32 v6, 1
              ds_write_b128 v18, v[44:47]
              s_mov_b64 exec, 1
              ds_add_rtn_u32 v5, v7, v6 offset:{cnt}
              s_mov_b64 exec, -1''')
        for w in range(4):
            for x in range(2):
                r = 20 + 4 * w + 2 * x
                a(f'ds_read_b64 v[{r}:{r+1}], v19 offset:{L_RED + w*1024 + x*640}')
        a(f'''s_waitcnt lgkmcnt(0)
              v_readfirstlane_b32 s7, v5''')
        for stp in (2, 4, 8):
            for r in range(20, 36, 2 * stp): pkadd(r, r, r + stp)
        a(f's_cmp_lg_u32 s7, 3\ns_cbranch_scc1 {skip}')
    stamp(14)
    red8(F_PCNT, 'L_Pdone')
    a(f'''v_cvt_pk_bf16_f32 v20, v20, v21
         v_mov_b32 v21, s31''')
    store2(25, ['buffer_store_dwordx2 v[20:21], v4, s[16:19], s63 offen'])
    a('buffer_store_dword v21, v62, s[16:19], s26 offen sc1')
    stamp(3)
    a('s_branch L_Pdone')

    a('L_noP:')
    if codepf:
        a(f'''s_cmp_ge_u32 s2, 16
              s_cbranch_scc1 L_nopf
              s_getpc_b64 s[42:43]
              L_pc:
              s_sub_u32 s42, s42, L_pc-{NAME}_kernel
              s_subb_u32 s43, s43, 0
              s_mul_i32 s7, s60, CODE_Q
              v_lshl_add_u32 v5, v0, 4, s7
              .rept CODE_Q/1024
              global_load_dwordx4 v[20:23], v5, s[42:43]
              v_add_u32 v5, 0x400, v5
              .endr
              L_nopf:''')
    common_addrs()
    mktag()
    a('L_Pdone:')
    trole()
    a('s_cmp_lg_u32 s60, 0\ns_cbranch_scc1 L_early')
    a(f'''v_lshlrev_b32 v48, 4, v0
          v_mov_b32 v40, -1
          v_mov_b32 v41, -1
          v_mov_b32 v42, -1
          v_mov_b32 v43, -1
          s_cmp_lg_u32 s61, {7 if ('z' in X or ZTAG) else 2}
          s_cbranch_scc1 L_rs2
          s_nop 0''')
    inbox(29, 62)
    a(f'''v_lshlrev_b32 v5, 3, v0
          buffer_store_dwordx4 v[40:43], v48, s[16:19], s29 offen {RP}
          buffer_store_dwordx4 v[40:43], v48, s[16:19], s29 offen offset:1024 {RP}
          buffer_store_dwordx4 v[40:43], v48, s[16:19], s29 offen offset:2048 {RP}
          buffer_store_dwordx2 v[40:41], v5, s[16:19], s29 offen offset:3072 {RP}''')
    a(f'''L_rs2:
          s_lshl_b32 s28, s4, 11
          s_add_u32 s28, s28, {W_Q}''')
    ldswait(F_PROG, QTRIG, 5, sleep=4)
    L = poll_begin()
    a(f'''buffer_load_dwordx4 v[20:23], v48, s[16:19], s28 offen {PP}
         buffer_load_dwordx4 v[24:27], v48, s[16:19], s28 offen offset:1024 {PP}
         s_waitcnt vmcnt(0)
         s_mov_b64 exec, -1''')
    tagchk([21, 23, 25, 27])
    poll_end(L, sleep=QSL)
    a(f'''v_lshlrev_b32 v6, 3, v0
          v_add_u32 v6, {L_Q}, v6
          ds_write2_b32 v6, v20, v22 offset0:0 offset1:1
          ds_write2_b32 v6, v24, v26 offset0:128 offset1:129''')
    ldsflag(F_Q)
    stamp(4)
    a('buffer_load_dword v20, v63, s[16:19], s27 offen sc1\ns_waitcnt vmcnt(0)')
    idflag(20)
    a('L_early:')
    def t1loads(dep, n0=0, n1=8):
        n = 0
        for t in range(4):
            for hf in range(2):
                r = 64 + 8 * t + 4 * hf
                n += 1
                if not n0 <= n - 1 < n1: continue
                if n - 1 >= dep: a(f's_waitcnt vmcnt({dep-1})')
                a(f'buffer_load_dwordx4 v[{r}:{r+3}], v250, s[8:11], s{66+2*hf+(t>>1)} offen offset:{1792*(t&1)} {wpol}')
    tl2 = []
    for base, sr, so in ((64, 8, 66), (120, 12, 68)):
        for t in range(7):
            for hf in range(2):
                r = base + 8 * t + 4 * hf
                tl2.append((f'buffer_load_dwordx4 v[{r}:{r+3}], v250, s[{sr}:{sr+3}], s{so+hf} offen {wpol}', f's_add_u32 s{so+hf}, s{so+hf}, {4*3584}'))
    def guaddr(idx):
        a(f'''v_mad_u32_u24 v250, v253, 28, v254
              v_mul_u32_u24 v250, 3584, v250
              v_lshl_add_u32 v250, v2, 4, v250
              s_mul_i32 s66, s60, {112*3584}
              s_lshl_b32 s7, s{idx}, 7
              s_add_u32 s66, s66, s7
              s_add_u32 s67, s66, {2*3584}
              s_mov_b32 s68, s66
              s_mov_b32 s69, s67''')
    a('''v_lshrrev_b32 v5, 5, v0
         v_bfe_u32 v6, v0, 3, 1
         v_lshl_add_u32 v253, v5, 1, v6
         v_bfe_u32 v254, v0, 4, 1
         v_mov_b32 v250, v3
         v_mov_b32 v251, v3
         v_mov_b32 v252, v3''')
    a('s_cmp_lg_u32 s61, 1\ns_cbranch_scc1 L_early2')
    srd(8, 40, 0 if 'o' in X else 4096 * 896)
    a(f'''s_and_b32 s64, s5, 1
          s_lshl_b32 s66, s4, 1
          s_add_u32 s66, s66, s64
          s_lshl_b32 s66, s66, 8
          s_lshl_b32 s7, s60, 6
          s_add_u32 s66, s66, s7
          s_mul_i32 s66, s66, 896
          s_lshr_b32 s7, s5, 1
          s_lshl_b32 s7, s7, 7
          s_add_u32 s66, s66, s7
          s_add_u32 s67, s66, {4*896}
          s_add_u32 s68, s66, {32*896}
          s_add_u32 s69, s66, {36*896}
          v_lshl_add_u32 v250, v253, 3, v254
          v_mul_u32_u24 v250, 896, v250
          v_lshl_add_u32 v250, v2, 4, v250''')
    if not T1LATE: t1loads(T1D)
    elif T1EARLY: t1loads(T1D, 0, T1EARLY)
    a('L_early2:\ns_cmp_lg_u32 s61, 2\ns_cbranch_scc1 L_early3')
    srd(8, 44, 0 if 't' in X else 448 * 3584)
    srd(12, 46, 0 if 't' in X else 448 * 3584)
    guaddr(62)
    a('s_cmp_eq_u32 s60, 0\ns_cselect_b64 vcc, -1, 0')
    for n, (ld, nx) in enumerate(tl2[:NE]):
        if n >= T2D and T2D4 > T2D:
            L = a.uniq('L_e')
            a(f's_cbranch_vccnz {L}\ns_waitcnt vmcnt({T2D-1})\n{L}:')
        if n >= T2D4: a(f's_waitcnt vmcnt({T2D4-1})')
        a(ld); a(nx)
    srd(20, 32, 896)
    a(f'''v_lshrrev_b32 v5, 5, v0
          v_bfe_u32 v6, v0, 3, 2
          v_mad_u32_u24 v6, v6, 7, v2
          v_cmp_ne_u32 s[98:99], 7, v2
          s_mul_i32 s7, s60, 112
          v_lshl_add_u32 v12, v6, 2, s7
          v_mul_u32_u24 v13, 1792, v5
          v_lshl_add_u32 v13, v12, 2, v13
          v_cndmask_b32 v13, v3, v13, s[98:99]
          v_lshl_add_u32 v12, v5, 1, v12
          v_lshlrev_b32 v14, 1, v12
          v_lshlrev_b32 v15, 2, v12
          v_add_u32 v184, {L_X1}, v15
          v_cndmask_b32 v14, v3, v14, s[98:99]
          v_cndmask_b32 v15, v3, v15, s[98:99]
          v_mov_b32 v16, {L_X1 + 1792}
          v_cndmask_b32 v184, v16, v184, s[98:99]
          s_mov_b32 s28, {W_MOD + 4*896}
          s_lshl_b32 s7, s62, 4
          v_and_b32 v61, 3, v0
          v_lshlrev_b32 v61, 2, v61
          v_lshrrev_b32 v5, 4, v0
          v_add3_u32 v61, v61, v5, s7
          v_lshrrev_b32 v62, 1, v61
          v_lshlrev_b32 v62, 3, v62
          s_mov_b32 s29, {W_MOD + 4*2240}''')
    ldswait(F_Q, 1, 5, sleep=8)
    a('buffer_load_dword v52, v14, s[20:23], 0 offen')
    L = poll_begin()
    a('''buffer_load_dwordx2 v[20:21], v15, s[16:19], s28 offen sc1
         buffer_load_dwordx2 v[22:23], v15, s[16:19], s28 offen offset:1792 sc1
         buffer_load_dwordx2 v[24:25], v15, s[16:19], s28 offen offset:3584 sc1
         buffer_load_dwordx2 v[26:27], v62, s[16:19], s29 offen sc1
         s_waitcnt vmcnt(0)''')
    tagchk([21, 23, 25]); a('s_and_b64 vcc, vcc, s[98:99]'); tagchk([27], first=False)
    poll_end(L, sleep=8, mask=False)
    unpack(176, 177, 52)
    unpack(178, 179, 20)
    unpack(182, 183, 22)
    unpack(180, 181, 24)
    a('v_add_f32 v180, 1.0, v180\nv_add_f32 v181, 1.0, v181')
    rnd2(180, 181, 28)
    a('v_and_b32 v28, 0xffff0000, v26\nv_lshlrev_b32 v26, 16, v26')
    a(f'''v_and_b32 v5, 1, v61
          v_cmp_eq_u32 vcc, 1, v5
          v_cndmask_b32 v26, v26, v28, vcc
          v_lshlrev_b32 v5, 3, v0
          ds_write_b64 v5, v[26:27] offset:{L_GB}''')
    a('L_early3:')
    stamp(12)
    if CK:
        a('s_cmp_lg_u32 s60, 1\ns_cbranch_scc1 L_noctl')
        for n, (c, kg) in enumerate(zip(CK, KG)):
            tab = (TAB2 if n < NB2 else TAB) or [8 * r - R0 for r in range(8)]
            tv = sum((t & 255) << (8 * r) for r, t in enumerate(tab))
            a(f's_mov_b32 s90, {tv & 0xffffffff}\ns_mov_b32 s91, {tv >> 32}')
            a(f'''s_and_b32 s26, s2, 7
                  s_mul_i32 s26, s26, {(5, 9, 3, 13, 7, 11, 15, 1)[n]}
                  s_lshr_b32 s29, s2, 3
                  s_add_u32 s29, s29, s26
                  s_and_b32 s29, s29, 31
                  s_lshl_b32 s29, s29, 10
                  s_add_u32 s29, s29, {W_CNT + (n&3)*256*CROT + 4*n}
                  s_mov_b32 s94, 1''')
            ldswait(F_CK + 4 * n, CNTRIG, 5, sleep=CSL)
            a(f'''{'s_mov_b32 s94, 3' if 'a' in X else 's_atomic_add s94, s[58:59], s29 glc'}
                  s_waitcnt lgkmcnt(0)
                  s_min_u32 s7, s94, 7
                  s_lshl_b32 s7, s7, 3
                  s_lshr_b64 s[92:93], s[90:91], s7
                  s_sext_i32_i8 s7, s92
                  s_mul_i32 s7, s7, {kg}
                  s_ashr_i32 s7, s7, 4
                  s_min_i32 s7, s7, {CLEN}
                  s_max_i32 s7, s7, {-CLEN}''')
            ldsflag(F_CTL + 4 * n, val='s7')
        a('L_noctl:')
    a('s_cmp_lg_u32 s60, 0\ns_cbranch_scc1 L_tail')
    if 'M' in X: a('s_branch L_tail')
    a(f'''v_lshrrev_b32 v5, 5, v0
          v_mul_u32_u24 v5, {HS}, v5
          v_and_b32 v6, 31, v0
          v_lshl_add_u32 v60, v6, 4, v5
          v_mov_b32 v62, {CEXP}
          v_lshlrev_b32 v61, 7, v6
          v_lshlrev_b32 v247, 4, v0
          s_lshl_b32 s28, s6, 7
          s_add_u32 s28, s28, {W_STATS}
          s_lshl_b32 s29, s4, 12
          s_add_u32 s29, s29, {W_STATS}''')
    ldswait(F_SCNT, 4, 5, sleep=4)
    stamp(5)
    for n in range(8): a(f'ds_read_b128 v[{20+4*n}:{23+4*n}], v60 offset:{L_SC + 512*n}')
    for n in range(8):
        a(f's_waitcnt lgkmcnt({7-n})')
        rnd2(20 + 4 * n, 21 + 4 * n, 5)
        rnd2(22 + 4 * n, 23 + 4 * n, 6)
    a('v_max_f32 v52, v20, v21')
    for k in range(22, 52, 2): a(f'v_max3_f32 v52, v52, v{k}, v{k+1}')
    allred('v_max_f32', [52], [53], 32)
    for k in range(20, 52): a(f'v_sub_f32 v{k}, v{k}, v52')
    for k in range(20, 52): a(f'v_mul_f32 v{k}, v62, v{k}')
    for k in range(20, 52): a(f'v_exp_f32 v{k}, v{k}')
    a('v_add_f32 v54, v20, v21\nv_add_f32 v55, v22, v23')
    for k in range(24, 52, 2): a(f'v_add_f32 v54, v54, v{k}\nv_add_f32 v55, v55, v{k+1}')
    a('v_add_f32 v54, v54, v55')
    allred('v_add_f32', [54], [53], 32)
    a('''v_readlane_b32 s90, v52, 0
         v_readlane_b32 s91, v52, 32
         v_readlane_b32 s92, v54, 32
         s_pack_hh_b32_b16 s90, s90, s91
         v_mov_b32 v56, s90
         v_mov_b32 v57, v54
         v_mov_b32 v58, s92
         v_mov_b32 v59, s31
         s_waitcnt vmcnt(0)
         s_mov_b64 exec, 0xff''')
    store2(25, ['buffer_store_dwordx4 v[56:59], v247, s[16:19], s28 offen'])
    a('s_mov_b64 exec, -1')
    stamp(6)
    L = poll_begin()
    a(f'''buffer_load_dwordx4 v[240:243], v61, s[16:19], s29 offen {PP}
         s_waitcnt vmcnt(0)
         s_mov_b64 exec, -1''')
    tagchk([243])
    poll_end(L, sleep=SSL)
    stamp(7)
    unpack(244, 245, 240)
    a('''v_cmp_lt_u32 vcc, 31, v0
         v_cndmask_b32 v244, v244, v245, vcc
         v_cndmask_b32 v241, v241, v242, vcc
         v_mov_b32 v246, v244''')
    allred('v_max_f32', [246], [53], 32)
    a('''v_sub_f32 v244, v244, v246
         v_sub_f32 v52, v52, v246
         v_mul_f32 v244, v62, v244
         v_mul_f32 v52, v62, v52
         v_exp_f32 v244, v244
         v_exp_f32 v52, v52
         v_mul_f32 v241, v241, v244''')
    allred('v_add_f32', [241], [53], 32)
    a('v_rcp_f32 v241, v241\nv_mul_f32 v52, v52, v241')
    for n in range(8):
        for k in range(20 + 4 * n, 24 + 4 * n): a(f'v_mul_f32 v{k}, v52, v{k}')
        for k in range(20 + 4 * n, 24 + 4 * n): a(f'v_cvt_pk_bf16_f32 v{k}, v{k}, v{k}')
        a(f'ds_write_b128 v60, v[{20+4*n}:{23+4*n}] offset:{L_SC + 512*n}')
    ldsflag(F_P, val='s25')
    stamp(8)

    def smf(acc, A, B): a(f'v_smfmac_f32_16x16x64_bf16 v[{acc}:{acc+3}], v[{A}:{A+3}], v[{B}:{B+7}], v19')
    def sbuild(dst, p0, p1):
        a(f'v_and_b32 v{dst}, v{p0}, v8\nv_and_b32 v{dst+1}, v{p1}, v9\nv_and_b32 v{dst+2}, v{p0}, v10\nv_and_b32 v{dst+3}, v{p1}, v11')
    def pkop(op, d, x, y, mod=''): a(f'v_pk_{op}_f32 v[{d}:{d+1}], v[{x}:{x+1}], v[{y}:{y+1}] {mod}')
    def spin_back(L, sleep=0):
        if sleep: a(f's_sleep {sleep}')
        a(f's_sub_u32 s30, s30, 1\ns_cmp_lg_u32 s30, 0\ns_cbranch_scc1 {L}')
    a('L_tail:')
    if 'T' in X: finish()
    a(f'''s_cmp_lg_u32 s61, 3
          s_cbranch_scc1 L_noRclr
          s_cmp_lg_u32 s60, 2
          s_cbranch_scc1 L_noRclr
          s_sub_u32 s7, s5, 24
          s_lshl_b32 s7, s7, 2
          s_lshl_b32 s72, s4, 5
          s_add_u32 s7, s7, s72
          s_mul_i32 s72, s7, {PS}
          s_add_u32 s72, s72, {W_PART}
          s_add_u32 s73, s72, {2*PS}
          s_lshl_b32 s63, s7, 5
          s_add_u32 s63, s63, {W_O}
          s_lshl_b32 s26, s7, 2
          s_add_u32 s26, s26, {W_RS}
          v_lshlrev_b32 v13, 4, v0
          v_cmp_gt_u32 vcc, 8, v0
          v_cndmask_b32 v14, v3, v13, vcc''')
    for k in range(4): a(f'v_mov_b32 v{20+k}, -1\nv_mov_b32 v{24+k}, s31')
    ldswait(F_PROG, TRIGR, 5, sleep=4)
    ldswait(F_P, 1, 5, sleep=1)
    a('s_mov_b32 s25, s7')
    if PREB:
        for k in range(8): a(f'buffer_load_dwordx4 v[28:31], v13, s[16:19], s{72+(k>>2)} offen offset:{((k>>1)&1)*PS + (k&1)*1024} {PREB}')
        a(f'buffer_load_dwordx4 v[28:31], v14, s[16:19], s63 offen {PREB}\ns_waitcnt vmcnt(0)')
    store2(25, [f'buffer_store_dwordx4 v[20:23], v13, s[16:19], s{72+(k>>2)} offen offset:{((k>>1)&1)*PS + (k&1)*1024}' for k in range(8)]
               + ['buffer_store_dwordx4 v[20:23], v14, s[16:19], s63 offen'])
    a('s_waitcnt vmcnt(0)\ns_mov_b64 exec, 1')
    store2(25, ['buffer_store_dwordx4 v[24:27], v7, s[16:19], s26 offen'])
    a('s_mov_b64 exec, -1\nL_noRclr:')
    def rswatch():
        L0 = a.uniq('L_rw')
        a(f's_cmp_lg_u32 s60, 3\ns_cbranch_scc1 {L0}\ns_add_u32 s27, s27, {W_RS - W_ID}')
        ldswait(F_PROG, TRIGS, 5, sleep=4)
        L = poll_begin()
        a('buffer_load_dword v6, v63, s[16:19], s27 offen sc1\ns_waitcnt vmcnt(0)')
        tagchk([6])
        poll_end(L, sleep=2, mask=False)
        ldsflag(F_RS)
        a(f'{L0}:')
    a('s_cmp_eq_u32 s61, 2\ns_cbranch_scc1 L_norw')
    rswatch()
    a('L_norw:')
    a(f'''s_cmp_eq_u32 s61, 0
          s_cbranch_scc1 L_helper_end
          v_cmp_gt_u32 vcc, 4, v2
          v_mov_b32 v5, 0xffff
          v_cndmask_b32 v8, 0, v5, vcc
          v_xor_b32 v9, v5, v8
          v_lshlrev_b32 v10, 16, v8
          v_lshlrev_b32 v11, 16, v9
          v_and_b32 v6, 3, v0
          v_mul_u32_u24 v19, 0x5555, v6
          v_lshlrev_b32 v245, 2, v0
          v_lshrrev_b32 v5, 5, v0
          v_lshlrev_b32 v244, 9, v5
          v_lshl_add_u32 v244, v2, 5, v244
          v_bfe_u32 v6, v0, 4, 1
          v_lshl_add_u32 v244, v6, 4, v244
          s_lshl_b32 s7, s60, 10
          s_add_u32 s7, s7, {L_RED}
          v_add_u32 v244, s7, v244
          s_mov_b32 s50, 0x00ff00ff
          s_mov_b32 s51, 0xff00ff00
          s_cmp_eq_u32 s61, 2
          s_cbranch_scc1 L_T2''')
    a('s_cmp_eq_u32 s61, 3\ns_cbranch_scc1 L_R\ns_cmp_eq_u32 s61, 4\ns_cbranch_scc1 L_H\ns_cmp_eq_u32 s61, 5\ns_cbranch_scc1 L_F')
    srd(8, 40, 0 if 'o' in X else 4096 * 896)
    a(f'''s_lshl_b32 s63, s4, 1
          s_add_u32 s63, s63, s64
          s_lshl_b32 s72, s63, 9
          s_mul_i32 s63, s64, 1792
          s_lshr_b32 s7, s5, 1
          s_lshl_b32 s7, s7, 8
          s_add_u32 s63, s63, s7
          s_lshr_b32 s7, s4, 1
          s_lshl_b32 s7, s7, 14
          s_add_u32 s63, s63, s7
          s_and_b32 s7, s4, 1
          s_lshl_b32 s7, s7, 12
          s_add_u32 s63, s63, s7
          s_add_u32 s63, s63, {W_Y}
          s_add_u32 s74, s63, 0x2000
          s_lshl_b32 s7, s60, 7
          s_add_u32 s72, s72, s7
          s_add_u32 s72, s72, {W_O}
          v_lshlrev_b32 v13, 4, v1
          v_lshlrev_b32 v4, 2, v0
          v_mov_b32 v16, 1''')
    for k in range(44, 48): a(f'v_mov_b32 v{k}, 0')
    ldswait(F_LAST, 4, 5, sleep=2)
    stamp(9)
    if T1LATE: t1loads(8, T1EARLY, T1SPLIT)
    ldswait(F_RS, 1, 5, sleep=1)
    if T1W: ldswait(F_OCNT, T1W, 5, sleep=1)
    if T1LATE: t1loads(8, T1SPLIT, 8)
    stamp(13)
    ldo = f'buffer_load_dwordx4 v[20:23], v13, s[16:19], s72 offen {PP}'
    a(ldo + '\ns_nop 15\n' + ldo + '\ns_nop 15')
    L = poll_begin()
    a(f'''{ldo}
          s_waitcnt vmcnt(2)
          v_max3_u32 v24, v20, v21, v22
          v_max_u32 v24, v24, v23
          v_cmp_eq_u32 vcc, -1, v24''')
    poll_end(L, mask=False)
    stamp(10)
    if prof: a(f's_sub_u32 s7, {SPIN+1}, s30\nv_writelane_b32 v255, s7, 14')
    sbuild(36, 20, 20)
    sbuild(40, 21, 21); smf(44, 36, 64)
    sbuild(32, 22, 22); smf(44, 40, 72)
    sbuild(36, 23, 23); smf(44, 32, 80)
    smf(44, 36, 88)
    a(f'''s_mov_b64 exec, s[50:51]
          ds_write_b128 v244, v[44:47]
          s_mov_b64 exec, 1
          ds_add_rtn_u32 v5, v7, v16 offset:{F_TCNT}
          s_mov_b64 exec, -1''')
    for w in range(4): a(f'ds_read2st64_b32 v[{24+2*w}:{25+2*w}], v245 offset0:{L_RED//256+4*w} offset1:{L_RED//256+4*w+2}')
    a('s_waitcnt lgkmcnt(0)\nv_readfirstlane_b32 s7, v5')
    pkadd(24, 24, 26); pkadd(28, 28, 30); pkadd(24, 24, 28)
    a('''s_cmp_lg_u32 s7, 3
         v_add_f32 v24, v24, v25
         s_cbranch_scc1 L_helper_end
         buffer_store_dword v24, v4, s[16:19], s63 offen sc1''')
    a('buffer_store_dword v24, v4, s[16:19], s74 offen sc1')
    stamp(11)
    a('L_helper_end:')
    finish()

    a(f'''.p2align 6
          L_R:
          s_sub_u32 s7, s5, 24
          s_lshl_b32 s7, s7, 2
          s_add_u32 s7, s7, s60
          s_lshl_b32 s72, s4, 5
          s_add_u32 s7, s7, s72
          s_mul_i32 s72, s7, {PS}
          s_add_u32 s72, s72, {W_PART}
          s_lshl_b32 s63, s7, 5
          s_add_u32 s63, s63, {W_O}
          s_bfe_u32 s70, s7, 0x20003
          s_lshl_b32 s70, s70, 3
          s_add_u32 s70, s70, s4
          s_lshl_b32 s70, s70, 3
          s_and_b32 s7, s7, 7
          s_add_u32 s70, s70, s7
          s_mul_i32 s70, s70, 7168
          s_add_u32 s71, s70, 4096
          s_mov_b32 s20, s48
          s_mov_b32 s21, s49
          s_mov_b32 s22, {0 if 't' in X else 1792 * 896}
          s_mov_b32 s23, 0x20000
          v_lshlrev_b32 v13, 4, v0
          v_and_b32 v4, 3, v0
          v_lshlrev_b32 v4, 3, v4
          v_lshrrev_b32 v5, 5, v0
          v_lshl_add_u32 v4, v5, 2, v4
          v_bfe_u32 v5, v0, 2, 3
          v_cmp_ne_u32 vcc, 0, v5
          v_cndmask_b32 v4, v4, v3, vcc''')
    ldr = f'buffer_load_dwordx4 v[20:23], v13, s[16:19], s72 offen {PP}\nbuffer_load_dwordx4 v[24:27], v13, s[16:19], s72 offen offset:1024 {PP}'
    ldswait(F_RS, 1, 5, sleep=4)
    if PRET: a(ldr.replace(PP, PRET))
    ldswait(F_P, 1, 5, sleep=1)
    a('s_mov_b32 s25, s7')
    ldswait(F_LAST, 4, 5, sleep=2)
    stamp(9)
    if PRE0: a(ldr.replace(PP, PRE0))
    if RW: ldswait(F_OCNT, RW, 5, sleep=1)
    stamp(13)
    a(ldr + '\ns_nop 15\ns_nop 15')
    L = poll_begin()
    a(ldr + '\ns_waitcnt vmcnt(2)')
    pkadd(28, 20, 24); pkadd(30, 22, 26)
    a('v_permlane32_swap_b32 v28, v30\nv_permlane32_swap_b32 v29, v31')
    pkadd(28, 28, 30)
    a('v_cmp_u_f32 vcc, v28, v29')
    poll_end(L, mask=False)
    stamp(10)
    if prof: a(f's_sub_u32 s7, {SPIN+1}, s30\nv_writelane_b32 v255, s7, 14')
    a(f'''v_add_f32_dpp v28, v28, v28 row_ror:4 {DPPF}
          v_add_f32_dpp v29, v29, v29 row_ror:4 {DPPF}
          v_add_f32_dpp v30, v28, v28 row_ror:8 {DPPF}
          v_add_f32_dpp v31, v29, v29 row_ror:8 {DPPF}
          v_add_f32_dpp v28, v28, v28 row_ror:8 {DPPF}
          v_add_f32_dpp v29, v29, v29 row_ror:8 {DPPF}
          v_permlane16_swap_b32 v28, v30
          v_permlane16_swap_b32 v29, v31''')
    pkadd(28, 28, 30)
    a('v_cvt_pk_bf16_f32 v28, v28, v29')
    store2(25, ['buffer_store_dword v28, v4, s[16:19], s63 offen'])
    stamp(11)
    if RPF:
        a('s_waitcnt vmcnt(0)\ns_barrier')
        for m in range(7): a(f'buffer_load_dwordx4 v[32:35], v13, s[20:23], s{70 + (m>>2)} offen offset:{1024*(m&3)} {PFP}')
    finish()

    a(f'''.p2align 6
          L_H:
          s_cmp_lg_u32 s60, 2
          s_cbranch_scc1 L_helper_end
          s_lshl_b32 s72, s4, 10
          s_add_u32 s72, s72, {W_O}
          s_add_u32 s63, s4, {W_H}
          s_add_u32 s65, s63, 0x4000
          v_lshlrev_b32 v13, 4, v0
          v_lshlrev_b32 v4, 8, v0
          v_cmp_gt_u32 vcc, {112}, v63
          v_cndmask_b32 v4, v3, v4, vcc
          v_cmp_gt_u32 vcc, {32 if HREP == 1 else 64}, v0
          v_cndmask_b32 v4, v3, v4, vcc
          v_mov_b32 v16, 1
          s_mul_i32 s73, s4, {32*PS}
          s_add_u32 s73, s73, {W_PART}
          v_lshrrev_b32 v5, 5, v0
          v_mul_u32_u24 v5, {8*PS}, v5
          v_lshl_add_u32 v14, v63, 4, v5''')
    ldp = 'buffer_load_dword v24, v14, s[16:19], s73 offen sc1'
    ldswait(F_RS, 1, 5, sleep=4)
    a(ldo)
    if HSRC == 'part':
        ldswait(F_LAST, 4, 5, sleep=2)
        a(ldp)
        ldswait(F_OCNT, 4, 5, sleep=1)
        a(ldp + '\ns_nop 15')
        L = poll_begin()
        a(f'{ldp}\ns_waitcnt vmcnt(1)\nv_cmp_eq_u32 vcc, -1, v24')
    else:
        ldswait(F_OCNT, 4, 5, sleep=1)
        a(ldo + '\ns_nop 15\n' + ldo + '\ns_nop 15')
        L = poll_begin()
        a(f'''{ldo}
              s_waitcnt vmcnt(2)
              v_max3_u32 v24, v20, v21, v22
              v_max_u32 v24, v24, v23
              v_cmp_eq_u32 vcc, -1, v24''')
    poll_end(L, mask=False)
    for _ in range(HDLY): a(f'{ldp}\ns_waitcnt vmcnt(0)')
    a('buffer_store_byte v16, v4, s[16:19], s63 offen sc1')
    if HREP == 4: a('buffer_store_byte v16, v4, s[16:19], s65 offen sc1')
    if WB: a('s_waitcnt vmcnt(0)\nbuffer_wbl2 sc1')
    stamp(11)
    finish()

    a('.p2align 6\nL_F:')
    if PF:
        srd(12, 46, 0 if 't' in X else 448 * 3584)
        srd(20, 48, 0 if 't' in X else 1792 * 896)
        a('s_sub_u32 s62, s62, 40')
        guaddr(62)
        t0 = 7 - NPU // 2
        a(f'''s_add_u32 s68, s68, {t0*4*3584}
              s_add_u32 s69, s69, {t0*4*3584}
              s_lshl_b32 s70, s62, 2
              s_add_u32 s70, s70, s60
              s_mul_i32 s70, s70, {14*1024}
              v_lshlrev_b32 v13, 4, v0''')
        pl = [(ld.replace(wpol, PFP) if wpol else ld + PFP, nx) for ld, nx in tl2[28 - NPU:]] if NPU else []
        for m in range(0 if RPF else 14): pl.append((f'buffer_load_dwordx4 v[20:23], v13, s[20:23], s70 offen offset:{1024*(m&3)} {PFP}', 's_add_u32 s70, s70, 4096' if m & 3 == 3 else ''))
        ldswait(F_LAST, 4, 5, sleep=2)
        for n, (ld, nx) in enumerate(pl):
            if n == NL1: ldswait(F_PUB, 2, 5, sleep=1)
            a(ld); a(nx)
        if prof: a('s_waitcnt vmcnt(0)')
        stamp(10)
    finish()

    a('.p2align 6\nL_T2:')
    srd(8, 44, 0 if 't' in X else 448 * 3584)
    srd(12, 46, 0 if 't' in X else 448 * 3584)
    a(f'''s_lshl_b32 s7, s60, 3
          s_add_u32 s7, s7, {L_ST2}
          v_bfe_u32 v6, v0, 4, 1
          v_lshl_add_u32 v243, v6, 2, s7
          v_mov_b32 v248, {INV448}
          v_mov_b32 v249, {INV448}''')
    parity(7, 62)
    for n in range(8): a(f's_add_u32 s{72+n}, s7, {W_Y + slot(n)}\ns_mov_b64 s[{80+2*n}:{81+2*n}], -1')
    a('s_waitcnt lgkmcnt(0)')
    for k in range(20, 52): a(f'v_mov_b32 v{k}, -1')
    rswatch()
    ldswait(F_LAST, 4, 5, sleep=1)
    stamp(9)
    cstamp(6)
    for n, (ld, nx) in enumerate(tl2[NE:]):
        if n == NL1: ldswait(F_PUB, 2, 5, sleep=1)
        a(ld); a(nx)
    if 28 - NE <= NL1: ldswait(F_PUB, 2, 5, sleep=1)
    if prof and 'v' in X: a('s_waitcnt vmcnt(0)')
    stamp(10)
    Lh = a.uniq('L_h')
    def yld(n): return f'buffer_load_dwordx4 v[{20+4*n}:{23+4*n}], v13, s[16:19], s{72+n} offen sc1'
    a(f'''s_mov_b32 s30, {SPIN}
          s_mov_b32 s40, 0x01010101
          s_mov_b32 s41, s40
          s_mov_b32 s46, s40
          v_mov_b32 v6, 1
          {Lh}:
          ds_read_b64 v[16:17], v7 offset:{F_HM}
          s_sub_u32 s30, s30, 1
          s_cbranch_scc1 {Lh}_all
          s_waitcnt lgkmcnt(0)
          v_readfirstlane_b32 s42, v16
          v_readfirstlane_b32 s43, v17
          s_and_b64 s[42:43], s[42:43], s[40:41]
          s_cbranch_scc0 {Lh}
          s_andn2_b64 s[40:41], s[40:41], s[42:43]''')
    for n in range(8):
        a(f's_bitcmp0_b64 s[42:43], {8*n}\ns_cbranch_scc1 {Lh}_r{n}\n{yld(n)}\n{Lh}_r{n}:')
    a(f's_bcnt1_i32_b64 s7, s[40:41]\ns_cbranch_scc0 {Lh}_last\ns_cmp_gt_u32 s7, 1\ns_cbranch_scc1 {Lh}')
    for n in range(7): a(f's_bitcmp1_b64 s[40:41], {8*n}\ns_cbranch_scc1 {Lh}_o{n}')
    for n in (7, 0, 1, 2, 3, 4, 5, 6):
        a(f'''{Lh}_o{n}:
              ds_read_b32 v16, v7 offset:{F_HM + 4*(n>>2)}
              s_sub_u32 s30, s30, 1
              s_cbranch_scc1 {Lh}_all
              s_waitcnt lgkmcnt(0)
              v_cmp_ne_u32 vcc, s46, v16
              s_cbranch_vccnz {Lh}_o{n}
              {yld(n)}
              s_branch {Lh}_last''')
    a(f'''{Lh}_last:
          s_mov_b64 exec, 1
          ds_add_u32 v7, v6 offset:{F_YL}
          s_mov_b64 exec, -1
          s_mov_b32 s30, {SPIN - 1}''')
    stamp(2)
    a(f's_branch {Lh}_chk')
    a(f'{Lh}_all:')
    L = poll_begin()
    for n in range(8):
        a(f's_cmp_eq_u64 s[{80+2*n}:{81+2*n}], 0\ns_cbranch_scc1 {L}_s{n}')
        a(f'buffer_load_dwordx4 v[{20+4*n}:{23+4*n}], v13, s[16:19], s{72+n} offen sc1\n{L}_s{n}:')
    a(f'{Lh}_chk:\ns_waitcnt vmcnt(0)')
    for n in range(1, 8):
        for k in (0, 2): pkadd(60 + k, 20 + k if n == 1 else 60 + k, 20 + 4 * n + k)
    a('v_permlane32_swap_b32 v60, v62\nv_permlane32_swap_b32 v61, v63')
    pkadd(60, 60, 62)
    a(f'v_cmp_u_f32 vcc, v60, v61\ns_cbranch_vccz {L}_d')
    for n in range(8): a(f'v_cmp_eq_u32 s[{80+2*n}:{81+2*n}], -1, v{20+4*n}')
    a(f's_and_b32 s7, s30, 15\ns_cbranch_scc1 {L}_k')
    for n in range(8): a(f's_mov_b32 s{80+2*n}, 1')
    a(f'{L}_k:')
    spin_back(L, T2SL)
    a(f'{L}_d:')
    if 'f' not in X:
        stamp(11)
        cstamp(4)
        if prof: a(f's_sub_u32 s7, {SPIN+1}, s30\nv_writelane_b32 v255, s7, 3')
    fstamp()
    rnd2(60, 61, 22)
    pkop('mul', 60, 178, 60)
    rnd2(60, 61, 22)
    pkadd(52, 176, 60)
    rnd2(52, 53, 22)
    fstamp()
    a(f'''v_mul_f32 v25, v52, v52
          v_add_f32 v24, v52, v53
          v_fmac_f32 v25, v53, v53
          ds_write_b64 v184, v[52:53]
          v_mov_b32 v44, 0
          v_permlane16_swap_b32 v24, v25
          v_add_f32 v24, v24, v25
          v_mov_b32 v45, 0
          v_mov_b32 v46, 0
          v_add_f32_dpp v24, v24, v24 quad_perm:[1,0,3,2] {DPPF}
          v_mov_b32 v47, 0
          v_mov_b32 v48, 0
          v_add_f32_dpp v24, v24, v24 quad_perm:[2,3,0,1] {DPPF}
          v_mov_b32 v49, 0
          v_mov_b32 v50, 0
          v_add_f32_dpp v24, v24, v24 row_half_mirror {DPPF}
          v_mov_b32 v51, 0
          s_nop 0
          v_add_f32_dpp v25, v24, v24 row_mirror {DPPF}
          v_add_f32_dpp v24, v24, v24 row_mirror {DPPF}
          v_permlane32_swap_b32 v24, v25
          v_add_f32 v24, v24, v25''')
    fstamp()
    a(f'''s_mov_b64 exec, 0x10001
          ds_write_b32 v243, v24
          s_mov_b64 exec, -1
          s_waitcnt lgkmcnt(0)
          s_barrier''')
    if 'f' not in X: cstamp(7)
    fstamp()
    a(f'''ds_read_b128 v[24:27], v7 offset:{L_ST2}
          ds_read_b128 v[28:31], v7 offset:{L_ST2+16}
          s_waitcnt lgkmcnt(1)''')
    pkadd(24, 24, 26); a('s_waitcnt lgkmcnt(0)'); pkadd(28, 28, 30); pkadd(24, 24, 28)
    fstamp()
    pkop('mul', 24, 24, 248)
    a(f'''v_fma_f32 v25, -v24, v24, v25
          v_max_f32 v25, 0, v25
          v_cvt_pk_bf16_f32 v22, v24, v25
          v_and_b32 v26, 0xffff0000, v22
          v_add_f32 v26, {EPS}, v26
          v_cvt_pk_bf16_f32 v26, v26, v26
          v_lshlrev_b32 v26, 16, v26
          v_sqrt_f32 v26, v26
          v_lshlrev_b32 v24, 16, v22
          v_cvt_pk_bf16_f32 v26, v26, v26
          v_lshlrev_b32 v26, 16, v26
          v_rcp_f32 v26, v26''')
    fstamp()
    pkop('add', 52, 52, 24, 'op_sel_hi:[1,0] neg_lo:[0,1] neg_hi:[0,1]')
    rnd2(52, 53, 22)
    pkop('mul', 52, 52, 26, 'op_sel_hi:[1,0]')
    rnd2(52, 53, 22)
    pkop('mul', 52, 52, 180)
    rnd2(52, 53, 22)
    pkadd(52, 52, 182)
    def dand(d, src, q, m): a(f'v_and_b32_dpp v{d}, v{src}, v{m} quad_perm:[{q},{q},{q},{q}] {DPPF}')
    def smf_pairs(n, q0, q1, m1, acc0, acc1, B0_, B1_, bstep, pre=lambda t: None):
        def half(t, h):
            if t >= n: return
            ab = 36 + 4 * (t & 1)
            if h == 0: dand(ab, *q0(t), 8); dand(ab + 2, *q0(t), 10)
            else: dand(ab + 1, *q1(t), m1[0]); dand(ab + 3, *q1(t), m1[1])
        half(0, 0); pre(-1); half(0, 1); half(1, 0)
        for t in range(n):
            ab = 36 + 4 * (t & 1)
            pre(t)
            smf(acc0, ab, B0_ + bstep * t)
            half(t + 1, 1)
            smf(acc1, ab, B1_ + bstep * t)
            half(t + 2, 0)
    fstamp()
    a(f'v_cvt_pk_bf16_f32 v52, v52, v53\nv_mov_b32_dpp v53, v52 row_half_mirror {DPPF}')
    smf_pairs(7, lambda t: (52, t) if t < 4 else (53, 7 - t), lambda t: (53, 3 - t) if t < 4 else (52, t - 4), (9, 11), 44, 48, 64, 120, 8)
    fstamp()
    a('''s_mov_b64 exec, s[50:51]
         ds_write_b128 v244, v[44:47]
         ds_write_b128 v244, v[48:51] offset:256
         s_mov_b64 exec, -1''')
    fstamp()
    a('s_waitcnt lgkmcnt(0)')
    fstamp()
    a('s_barrier')
    fstamp(); fdump(1)
    if 'f' not in X: cstamp(8)
    finish()

    a('.p2align 6\nL_D:')
    srd(20, 48, 0 if 't' in X else 1792 * 896)
    srd(24, 54, 896)
    a(f'''s_mov_b64 exec, -1
          v_mov_b32 v3, {BIG}
          v_and_b32 v2, 7, v0
          v_cmp_gt_u32 vcc, 4, v2
          v_mov_b32 v5, 0xffff
          v_cndmask_b32 v8, 0, v5, vcc
          v_xor_b32 v9, v5, v8
          v_lshlrev_b32 v10, 16, v8
          v_lshlrev_b32 v11, 16, v9
          v_and_b32 v6, 3, v0
          v_mul_u32_u24 v19, 0x5555, v6
          v_lshlrev_b32 v245, 2, v0
          v_lshrrev_b32 v5, 5, v0
          v_bfe_u32 v6, v0, 3, 1
          v_cmp_ne_u32 vcc, v5, v6
          v_lshl_add_u32 v253, v5, 1, v6
          v_bfe_u32 v254, v0, 4, 1
          v_lshrrev_b32 v247, 2, v2
          v_lshlrev_b32 v247, 14, v247
          v_bfe_u32 v6, v2, 1, 1
          v_lshl_add_u32 v247, v6, 12, v247
          v_lshl_add_u32 v247, v5, 6, v247
          v_and_b32 v6, 1, v0
          v_lshl_add_u32 v247, v6, 5, v247
          v_lshl_add_u32 v247, v254, 4, v247
          v_cndmask_b32 v247, v247, v3, vcc
          s_lshl_b32 s63, s3, 16
          s_lshl_b32 s7, s69, 7
          s_add_u32 s63, s63, s7
          s_add_u32 s65, s63, {W_Z + 0x8000 + (0x2000 if POL == 0 else 0)}
          s_add_u32 s63, s63, {W_Z + (0x2000 if POL == 1 else 0)}
          s_mov_b32 s18, {W_ZEND}
          v_mul_u32_u24 v5, 7, v254
          v_lshl_add_u32 v5, v253, 3, v5
          v_mul_u32_u24 v5, 896, v5
          v_lshl_add_u32 v240, v2, 4, v5
          v_mul_u32_u24 v5, 1792, v254
          v_sub_u32 v5, 896, v5
          v_add_u32 v241, v240, v5
          v_add_u32 v242, v241, v5
          v_add_u32 v243, v242, v5
          s_mul_i32 s70, s69, {64*896}
          s_lshl_b32 s7, s3, 8
          s_add_u32 s70, s70, s7
          s_add_u32 s71, s70, {32*896}
          s_lshl_b32 s7, s69, 4
          v_and_b32 v5, 3, v0
          v_lshlrev_b32 v5, 2, v5
          v_lshrrev_b32 v6, 4, v0
          v_add3_u32 v5, v5, v6, s7
          v_lshlrev_b32 v248, 2, v5
          v_lshlrev_b32 v249, 1, v5
          v_bfe_u32 v5, v0, 2, 2
          v_cmp_ne_u32 vcc, 0, v5
          v_cndmask_b32 v249, v249, v3, vcc
          v_lshlrev_b32 v250, 4, v0
          v_cmp_lt_u32 vcc, 31, v0
          v_cndmask_b32 v251, v250, v3, vcc
          v_lshlrev_b32 v5, 3, v0
          s_nop 0''')
    inbox(28, 69)
    for k in range(56, 64): a(f'v_mov_b32 v{k}, 0')
    for t in range(4):
        for k in range(184 + 16 * t, 192 + 16 * t): a(f'v_mov_b32 v{k}, 0')
    def dloads(k):
        for t in range(4):
            for hf in range(2):
                r = 176 + 16 * t + 8 * k + 4 * hf
                a(f'buffer_load_dwordx4 v[{r}:{r+3}], v{240+t}, s[20:23], s{70+hf} offen offset:{128*k} {wpol}')
    Ld = a.uniq('L_dh')
    a(f'''s_and_b32 s7, s3, {HREP-1}
          s_lshl_b32 s7, s7, 5
          s_add_u32 s7, s7, s69
          s_lshl_b32 s7, s7, 8
          s_add_u32 s7, s7, {W_H}
          s_add_u32 s56, s58, s7
          s_addc_u32 s57, s59, 0
          s_mov_b32 s30, {SPIN}
          s_mov_b64 s[42:43], 0
          s_mov_b32 s44, 0x01010101
          s_mov_b32 s45, s44
          s_mov_b64 exec, 0x0fffffff
          {Ld}:
          s_load_dwordx2 s[40:41], s[56:57], 0 glc
          s_sub_u32 s30, s30, 1
          s_cbranch_scc1 {Ld}_d
          s_waitcnt lgkmcnt(0)
          s_andn2_b64 s[46:47], s[40:41], s[42:43]
          s_cbranch_scc0 {Ld}''')
    if DPF: a('s_ff1_i32_b64 s7, s[46:47]\ns_mul_i32 s7, s7, 448\nbuffer_load_dword v55, v18, s[12:15], s7 offen sc1')
    a(f'''v_mov_b32 v16, s40
          v_mov_b32 v17, s41
          s_mov_b64 exec, 1
          ds_or_b64 v7, v[16:17] offset:{F_HM}
          s_mov_b64 exec, 0x0fffffff
          s_mov_b64 s[42:43], s[40:41]
          s_cmp_lg_u64 s[40:41], s[44:45]
          s_cbranch_scc1 {Ld}
          {Ld}_d:
          s_mov_b64 exec, -1''')
    stamp(11)
    if DTRIG: ldswait(F_YL, 4, 6, sleep=0)
    else: a('s_barrier')
    dloads(0)
    if DTRIG == 2: a('s_barrier')
    a('s_cmp_eq_u32 s3, 3\ns_cbranch_scc1 L_D3')
    dloads(1)
    a('L_D3:')
    if DTRIG == 1: a('s_barrier')
    a(f'''          ds_read_b32 v54, v248 offset:{L_X1}
          ds_read_b64 v[52:53], v5 offset:{L_GB}
          s_waitcnt lgkmcnt(0)
          s_barrier''')
    if 'f' not in X: cstamp(9)
    fstamp()
    for w in range(4):
        for x in range(2):
            r = 20 + 4 * w + 2 * x
            a(f'ds_read2st64_b32 v[{r}:{r+1}], v245 offset0:{L_RED//256+4*w+2*x} offset1:{L_RED//256+4*w+2*x+1}')
    for n in range(1, 8):
        a(f's_waitcnt lgkmcnt({7-n})'); pkadd(20, 20, 20 + 2 * n)
    fstamp()
    a(f'''v_cvt_pk_bf16_f32 v21, v20, v21
          v_lshlrev_b32 v20, 16, v21
          v_mul_f32 v22, {NLOG2E}, v20
          v_exp_f32 v22, v22
          v_and_b32 v21, 0xffff0000, v21
          v_add_f32 v22, 1.0, v22
          v_rcp_f32 v22, v22
          v_mul_f32 v20, v20, v22''')
    rnd1(20)
    a(f'''v_mul_f32 v20, v20, v21
          v_mov_b32_dpp v21, v20 row_half_mirror {DPPF}
          v_cvt_pk_bf16_f32 v20, v20, v21''')
    fstamp()
    smf_pairs(4, lambda t: (20, t), lambda t: (20, 3 - t), (11, 9), 56, 60, 176, 184, 16, pre=lambda t: a('s_waitcnt vmcnt(0)') if t == 0 else None)
    fstamp()
    a('''buffer_store_dwordx4 v[56:59], v247, s[16:19], s63 offen sc1
         s_cmp_eq_u32 s3, 3
         s_cbranch_scc1 L_T3
         buffer_store_dwordx4 v[60:63], v247, s[16:19], s65 offen sc1''')
    fstamp(); fdump(8)
    if 'f' not in X:
        stamp(12)
        cstamp(10)
    finish()
    a('L_T3:')
    if ZD == 'ack': a('s_waitcnt vmcnt(0)')
    if ZD == 'sld': a('s_load_dword s40, s[56:57], 0 glc\ns_waitcnt lgkmcnt(0)')
    L = poll_begin()
    for n in range(4): a(f'buffer_load_dwordx4 v[{64+4*n}:{67+4*n}], v{250 if n < 3 else 251}, s[16:19], s28 offen offset:{1024*n} sc1')
    for n in range(1, 4):
        a(f's_waitcnt vmcnt({3-n})')
        for k in (0, 2): pkadd(20 + k, 64 + k if n == 1 else 20 + k, 64 + 4 * n + k)
    a('v_permlane32_swap_b32 v20, v22\nv_permlane32_swap_b32 v21, v23')
    pkadd(20, 20, 22)
    a('v_cmp_u_f32 vcc, v20, v21')
    poll_end(L, mask=False)
    stamp(13)
    a(f'''v_permlane16_swap_b32 v20, v21
          v_add_f32 v20, v20, v21
          v_add_f32_dpp v20, v20, v20 row_ror:4 {DPPF}
          v_add_f32_dpp v20, v20, v20 row_ror:8 {DPPF}''')
    rnd1(20)
    a('v_mul_f32 v20, v52, v20')
    rnd1(20)
    a(f'''v_add_f32 v20, v54, v20
         v_cvt_pk_bf16_f32 v20, v20, v20
         buffer_store_short v20, v249, s[24:27], 0 offen {OP}
         s_cmp_lg_u32 s69, 0
         s_cbranch_scc1 L_T3_end
         s_mov_b64 exec, 1
         buffer_store_dword v53, v7, s[16:19], 0 offen sc1''')
    a('L_T3_end:')
    stamp(14)
    finish()
    if prof:
        a('L_prof_end:\ns_mov_b64 exec, -1\ns_getreg_b32 s95, hwreg(HW_REG_XCC_ID)\nv_writelane_b32 v255, s95, 15')
        if cal:
            X, wg, wv, k = cal
            a(f's_cmp_lg_u32 s2, {wg}\ns_cbranch_scc1 L_exit\ns_cmp_lg_u32 s3, {wv}\ns_cbranch_scc1 L_exit')
            a(f'v_readlane_b32 s7, v255, {k}\ns_add_u32 s7, s7, {X*100}')
            a('L_cal:\ns_memrealtime s[96:97]\ns_waitcnt lgkmcnt(0)\ns_sub_u32 s96, s96, s7\ns_cmp_lt_i32 s96, 0\ns_cbranch_scc1 L_cal\ns_branch L_exit')
        a(f'''s_lshl_b32 s7, s2, 3
              s_add_u32 s7, s7, s3
              s_lshl_b32 s7, s7, 6
              s_add_u32 s7, s7, {W_PROF}
              v_mbcnt_lo_u32_b32 v2, -1, 0
              v_lshlrev_b32 v2, 2, v2
              s_mov_b32 s18, 0x400000
              s_mov_b64 exec, 0xffff
              buffer_store_dword v255, v2, s[16:19], s7 offen''')
    a('L_exit:\ns_endpgm\nL_code_end:')
    body = a.text()
    head = open('cdna_kernels/' + NAME + '.s.ref').read().split('; Override launch')[0]
    head += f'; @launch grid=(256,1,1) block=(512,1,1) lds={LDS_BYTES}\n'
    return head, body

def assemble_text(head, body, code_q):
    return head + f'''.amdgcn_target "amdgcn-amd-amdhsa--gfx950"
.text
.set CODE_Q, {code_q}
.globl {NAME}_kernel
.p2align 8
.type {NAME}_kernel,@function
''' + body + f'''.fill 1024, 4, 0xbf810000
.section .rodata,"a"
.p2align 6
.amdhsa_kernel {NAME}_kernel
  .amdhsa_next_free_vgpr 256
  .amdhsa_next_free_sgpr 102
  .amdhsa_accum_offset 256
  .amdhsa_group_segment_fixed_size 0
  .amdhsa_kernarg_size 112
  .amdhsa_user_sgpr_count 2
  .amdhsa_user_sgpr_kernarg_segment_ptr 1
  .amdhsa_system_sgpr_workgroup_id_x 1
.end_amdhsa_kernel
'''

def code_size(text):
    import subprocess, re, tempfile
    d = tempfile.mkdtemp()
    open(d + '/k.s', 'w').write(text)
    r = subprocess.run(['clang', '-x', 'assembler', '-target', 'amdgcn-amd-amdhsa', '-mcpu=gfx950', '-c', d + '/k.s', '-o', d + '/k.o'], capture_output=True, text=True)
    if r.returncode: print(r.stderr[:3000]); raise SystemExit(1)
    o = subprocess.run(['llvm-objdump', '-t', d + '/k.o'], capture_output=True, text=True).stdout
    return int(re.search(r'([0-9a-f]+) .* L_code_end', o).group(1), 16)

def full(**kw):
    head, body = gen(**kw)
    sz = code_size(assemble_text(head, body, 4096))
    q = -(-(sz + 128) // 4096) * 1024
    return assemble_text(head, body, q)

if __name__ == '__main__':
    kw = eval('dict(' + (sys.argv[2] if len(sys.argv) > 2 else '') + ')')
    t = full(**kw)
    open(sys.argv[1], 'w').write(t)
    print('code bytes', code_size(t), 'lines', t.count('\n'))
```
